```python
import torch

def _softmax(x, axis=-1):
    return torch.softmax(x, dim=axis)
def _gelu(x):
    return torch.nn.functional.gelu(x, approximate="tanh")
def _silu(x):
    return torch.nn.functional.silu(x)
def _sigmoid(x):
    return torch.sigmoid(x)
def _layernorm(x, axis=-1, eps=1e-5):
    m = x.mean(dim=axis, keepdim=True)
    v = x.var(dim=axis, keepdim=True, unbiased=False)
    return (x - m) / torch.sqrt(v + eps)
def _scatter_add(tgt, idx, src, axis=0):
    return tgt.clone().index_add_(axis, idx, src)
def _segment_sum(src, seg, n):
    out = torch.zeros((n,) + src.shape[1:], dtype=src.dtype)
    return out.index_add_(0, seg, src)
def _pad(x, pw):
    flat = tuple(v for pair in reversed(pw) for v in pair)
    return torch.nn.functional.pad(x, flat)

kernel_name = 'sequential_preLN__ssm_conv_s4d__mixer_s_mlp__prompt'

def setup_inputs():

    _w = (lambda a: (lambda t: t.to(torch.bfloat16) if t.is_floating_point() else t)(torch.as_tensor(a)))
    def _A_setup():
        Bsz, L, D, N = 1, 2048, 640, 192
        return {
            "u": _w((lambda *s: torch.randn(*s, dtype=torch.bfloat16) * 0.05)(Bsz, L, D)),
            "log_A_real": _w((lambda *s: torch.randn(*s, dtype=torch.bfloat16) * 6.4)(D, N) * 0.5),
            "A_imag": _w((lambda *s: torch.randn(*s, dtype=torch.bfloat16) * 0.05)(D, N) * 3.14),
            "C_real": _w((lambda *s: torch.randn(*s, dtype=torch.bfloat16) * 0.05)(D, N) / N ** 0.5),
            "C_imag": _w((lambda *s: torch.randn(*s, dtype=torch.bfloat16) * 0.05)(D, N) / N ** 0.5),
            "log_dt": _w((lambda *s: torch.randn(*s, dtype=torch.bfloat16) * 0.05)(D) * 0.5 - 4.0),
            "D_skip": _w((lambda *s: torch.randn(*s, dtype=torch.bfloat16) * 0.05)(D)),
        }
    _A_in = _A_setup()

    def _B_setup():
        B, S, D, F = 1, 2048, 640, 1536
        return {
            "x":  _w((lambda *s: torch.randn(*s, dtype=torch.bfloat16) * 0.05)(B, S, D)),
            "w1": _w((lambda *s: torch.randn(*s, dtype=torch.bfloat16) * 6.4)(D, D) * (D ** -0.5)),
            "w2": _w((lambda *s: torch.randn(*s, dtype=torch.bfloat16) * 6.4)(D, D) * (D ** -0.5)),
            "w3": _w((lambda *s: torch.randn(*s, dtype=torch.bfloat16) * 6.4)(D, F) * (D ** -0.5)),
            "w4": _w((lambda *s: torch.randn(*s, dtype=torch.bfloat16) * 3.2)(F, D) * (F ** -0.5)),
        }
    _B_in = _B_setup()

    return {
        "A_u": _A_in["u"],
        "A_log_A_real": _A_in["log_A_real"],
        "A_A_imag": _A_in["A_imag"],
        "A_C_real": _A_in["C_real"],
        "A_C_imag": _A_in["C_imag"],
        "A_log_dt": _A_in["log_dt"],
        "A_D_skip": _A_in["D_skip"],
        "B_x": _B_in["x"],
        "B_w1": _B_in["w1"],
        "B_w2": _B_in["w2"],
        "B_w3": _B_in["w3"],
        "B_w4": _B_in["w4"],
    }

def reference(A_u, A_log_A_real, A_A_imag, A_C_real, A_C_imag, A_log_dt, A_D_skip, B_x, B_w1, B_w2, B_w3, B_w4):
    def _A_ref(u, log_A_real, A_imag, C_real, C_imag, log_dt, D_skip):
        L = u.shape[1]
        dt = torch.exp(log_dt)
        A = -torch.exp(log_A_real) + 1j * A_imag
        C = (C_real + 1j * C_imag) * dt[:, None]
        pos = (lambda x, dt: x.to(dt))(torch.arange(L), log_dt.dtype)
        P = torch.exp((A * dt[:, None])[:, :, None] * pos[None, None, :])
        K = 2.0 * torch.einsum("dn,dnl->dl", C, P).real
        L2 = 2 * L
        u_t = (lambda x, *d: x.permute(*d))(u, 0, 2, 1)
        Kf = (lambda x, *a, **k: torch.fft.rfft(x.float(), *a, **k))(K, L2)
        Uf = (lambda x, *a, **k: torch.fft.rfft(x.float(), *a, **k))(u_t, L2)
        y = (lambda x, *a, **k: torch.fft.irfft(x, *a, **k).to(torch.bfloat16))(Uf * Kf[None, :, :], L2)[:, :, :L]
        y = (lambda x, *d: x.permute(*d))(y, 0, 2, 1)
        return y + u * D_skip[None, None, :]

    def _B_ref(x, w1, w2, w3, w4):
        B, S, D = x.shape
        h = _gelu(_layernorm(x, axis=-1) @ w1)
        c = D // 4
        g0 = _pad(h[:, :, 0*c:1*c], ((0, 0), (1, 0), (0, 0)))[:, :S, :]
        g1 = _pad(h[:, :, 1*c:2*c], ((0, 0), (0, 1), (0, 0)))[:, 1:, :]
        g2 = _pad(h[:, :, 2*c:3*c], ((0, 0), (2, 0), (0, 0)))[:, :S, :]
        g3 = _pad(h[:, :, 3*c:   ], ((0, 0), (0, 2), (0, 0)))[:, 2:, :]
        hs = torch.concatenate([g0, g1, g2, g3], axis=-1) @ w2
        x1 = x + hs
        h2 = _gelu(_layernorm(x1, axis=-1) @ w3) @ w4
        return x1 + h2

    x = A_u
    h = x + _A_ref(_layernorm(x, axis=-1), A_log_A_real, A_A_imag, A_C_real, A_C_imag, A_log_dt, A_D_skip)
    h2 = h + _B_ref(_layernorm(h, axis=-1), B_w1, B_w2, B_w3, B_w4)
    return h2
```

```python
import re

TRANS = ('v_exp_', 'v_log_', 'v_rcp_', 'v_rsq_', 'v_sqrt_', 'v_sin_', 'v_cos_')
DPP_RE = re.compile(r'\b(row_shr|row_shl|row_ror|quad_perm|row_bcast|row_newbcast|wave_shr|wave_shl|wave_ror|wave_rol|row_mirror|row_half_mirror)\b')
REG_RE = re.compile(r'^(-|\|)?(?:abs\(|neg\()?([vsa])(?:(\d+)|\[(\d+):(\d+)\])\)?\|?$')


def parse_reg(tok):
    tok = tok.strip()
    if tok in ('vcc',): return {('s', 'vcc_lo'), ('s', 'vcc_hi')}
    if tok in ('vcc_lo', 'vcc_hi', 'exec_lo', 'exec_hi', 'm0'): return {('s', tok)}
    if tok == 'exec': return {('s', 'exec_lo'), ('s', 'exec_hi')}
    m = REG_RE.match(tok)
    if not m: return None
    k = m.group(2)
    if m.group(3) is not None: return {(k, int(m.group(3)))}
    return {(k, i) for i in range(int(m.group(4)), int(m.group(5)) + 1)}


class Ins:
    __slots__ = ('text', 'op', 'ops', 'mods', 'wr', 'rd', 'kind', 'passes', 'C', 'A', 'B', 'D', 'trans', 'dpp',
                 'label', 'target', 'nopn', 'wide', 'data', 'opsel_dst', 'nowait', 'lds_dma', 'dl', 'addr')

    def __init__(self, text):
        self.text = text
        self.label = None; self.target = None
        self.wr = set(); self.rd = set(); self.kind = 'other'; self.passes = 0
        self.C = self.A = self.B = self.D = frozenset()
        self.trans = False; self.dpp = False; self.nopn = 1; self.wide = False; self.data = set()
        self.opsel_dst = False; self.nowait = False; self.lds_dma = False; self.dl = False
        t = text.split(';')[0].strip()
        if t.startswith('@'):
            self.text = t[1:] if t.endswith(':') else '  ' + t[1:]
            self.kind = 'directive'; self.nopn = 0; self.op = ''; return
        if t.endswith(':'):
            self.label = t[:-1]; self.kind = 'label'; self.nopn = 0; self.op = ''; return
        if not t or t.startswith('.'):
            self.kind = 'directive'; self.nopn = 0; self.op = ''; return
        sp = t.split(None, 1)
        op = sp[0]; self.op = op
        rest = sp[1] if len(sp) > 1 else ''
        parts = []; cur = ''; depth = 0
        for ch in rest:
            if ch in '[(': depth += 1
            if ch in '])': depth -= 1
            if ch == ',' and depth == 0: parts.append(cur.strip()); cur = ''
            else: cur += ch
        if cur.strip(): parts.append(cur.strip())
        mods = ''
        if parts:
            last = parts[-1].split(None, 1)
            if len(last) > 1:
                parts[-1] = last[0]; mods = last[1]
        self.ops = parts; self.mods = mods
        R = [parse_reg(p) or set() for p in parts]
        U = lambda l: set().union(*l) if l else set()
        if op.startswith('v_mfma'):
            self.kind = 'mfma'
            self.passes = 8 if '32x32x16' in op else 4 if '16x16x32' in op or '16x16x16' in op else None
            assert self.passes, op
            self.D, self.A, self.B, self.C = [frozenset(r) for r in R[:4]]
            self.wr = set(R[0]); self.rd = U(R[1:4])
        elif op.startswith('v_'):
            self.kind = 'valu'
            self.trans = op.startswith(TRANS)
            self.dpp = bool(DPP_RE.search(mods)) or op.endswith('_dpp')
            self.dl = op.startswith('v_dot')
            if op.startswith('v_cmp'):
                assert not op.startswith('v_cmpx')
                self.wr = set(R[0]); self.rd = U(R[1:])
            elif op.startswith(('v_readfirstlane', 'v_readlane')):
                self.wr = set(R[0]); self.rd = U(R[1:])
            elif op.startswith('v_permlane') and 'swap' in op:
                self.wr = U(R[:2]); self.rd = U(R[:2])
            elif '_co_' in op or op.startswith('v_div_scale') or op.startswith('v_mad_u64'):
                self.wr = U(R[:2]); self.rd = U(R[2:])
            elif op == 'v_nop':
                pass
            else:
                self.wr = set(R[0]); self.rd = U(R[1:])
                if op.startswith(('v_fmac', 'v_mac', 'v_dot2c', 'v_dot4c', 'v_writelane', 'v_pk_fmac')) or self.dpp \
                        or 'sdwa' in op or op.startswith(('v_fma_mixhi', 'v_fma_mixlo')):
                    self.rd |= R[0]
                if op.startswith('v_cndmask') and len(parts) == 3:
                    self.rd |= parse_reg('vcc')
            if 'sdwa' in op or op.startswith(('v_fma_mixhi', 'v_fma_mixlo')) or ('op_sel' in mods and not op.startswith('v_pk_')):
                self.opsel_dst = True
        elif op.startswith(('buffer_', 'global_')):
            self.kind = 'vmem'
            lds = bool(re.search(r'\blds\b', mods)) or op.startswith('global_load_lds')
            if op.startswith(('buffer_wbl2', 'buffer_inv')):
                pass
            elif lds:
                self.lds_dma = True
                self.rd = U(R) | {('s', 'm0')}
            elif 'load' in op:
                self.wr = set(R[0]); self.rd = U(R[1:])
            elif 'atomic' in op:
                self.rd = U(R)
                if re.search(r'\bsc0\b', mods):
                    self.wr = set(R[0])
                self.data = set(R[0]) if op.startswith('buffer') else set(R[1])
            else:
                self.rd = U(R)
                self.data = set(R[0]) if op.startswith('buffer') else set(R[1])
                self.wide = op.endswith(('x3', 'x4'))
        elif op.startswith('ds_'):
            self.kind = 'ds'
            if op.startswith(('ds_read', 'ds_bpermute', 'ds_permute', 'ds_swizzle')) or '_rtn_' in op:
                self.wr = set(R[0]); self.rd = U(R[1:])
            else:
                self.rd = U(R)
            if 'addtid' in op: self.rd |= {('s', 'm0')}; self.lds_dma = True
        elif op.startswith('s_'):
            if op.startswith(('s_load', 's_buffer_load', 's_memtime', 's_memrealtime')):
                self.kind = 'smem'; self.wr = set(R[0]); self.rd = U(R[1:])
            elif op == 's_nop':
                self.kind = 'nop'; self.nopn = int(parts[0], 0) + 1
            elif op == 's_waitcnt':
                self.kind = 'wait'
            elif op in ('s_branch',) or op.startswith('s_cbranch'):
                self.kind = 'branch'; self.target = parts[0]
                if 'vcc' in op: self.rd = parse_reg('vcc')
                if 'exec' in op: self.rd = parse_reg('exec')
            elif op == 's_endpgm':
                self.kind = 'end'
            elif op in ('s_barrier', 's_sleep', 's_setprio', 's_sethalt'):
                self.kind = 'sctl'
            elif op.startswith('s_cmp') or op.startswith('s_bitcmp'):
                self.kind = 'salu'; self.rd = U(R)
            else:
                self.kind = 'salu'; self.wr = set(R[0]); self.rd = U(R[1:])
                if 'saveexec' in op:
                    self.wr |= parse_reg('exec'); self.rd |= parse_reg('exec')
                if op.startswith(('s_addk', 's_mulk', 's_cmov', 's_bitset')): self.rd |= R[0]
        else:
            raise ValueError('unknown instr: ' + text)


def vregs(s): return {r for r in s if r[0] in 'va'}
def sregs(s): return {r for r in s if r[0] == 's'}


def need_between(p, c):
    n = 0
    pv = vregs(p.wr)
    if p.kind == 'valu':
        if c.kind == 'mfma' and pv & c.rd: n = max(n, 2)
        if c.kind == 'valu':
            if c.dpp and pv & c.rd: n = max(n, 2)
            if c.op.startswith('v_permlane') and pv & c.rd: n = max(n, 2)
            if c.op.startswith(('v_readlane', 'v_readfirstlane')) and pv & c.rd: n = max(n, 1)
            if p.trans and not c.trans and pv & c.rd: n = max(n, 1)
            if p.trans and c.trans and pv & c.rd: n = max(n, 1)
            if p.opsel_dst and pv & (c.rd | c.wr): n = max(n, 1)
            if p.dl and pv & (c.rd | c.wr):
                same_c = (c.op == p.op and ((len(c.ops) >= 4 and parse_reg(c.ops[3]) == pv and not (pv & ((parse_reg(c.ops[1]) or set()) | (parse_reg(c.ops[2]) or set()))))
                                            or (c.op.startswith('v_dot2c') and c.wr == pv and not (pv & ((parse_reg(c.ops[1]) or set()) | (parse_reg(c.ops[2]) or set()))))))
                if not same_c: n = max(n, 3)
            ps = sregs(p.wr)
            if ps & c.rd:
                n = max(n, 4 if c.op.startswith(('v_readlane', 'v_writelane', 'v_div_fmas')) else 2)
        if p.dl and c.kind in ('vmem', 'ds', 'mfma') and pv & c.rd: n = max(n, 3)
        if c.kind == 'vmem' and sregs(p.wr) & c.rd: n = max(n, 5)
        if p.trans and c.kind in ('vmem', 'ds') and pv & c.rd: n = max(n, 1)
    if p.kind == 'mfma':
        P = p.passes
        if c.kind == 'mfma':
            if p.D & (c.A | c.B): n = max(n, P + 4)
            if p.D & c.C:
                if not (p.D == c.C and c.passes == P): n = max(n, P + 2)
            elif p.D & c.D: n = max(n, P + 4)
        elif c.kind in ('valu', 'vmem', 'ds'):
            if p.D & (c.rd | c.wr): n = max(n, P + 4)
        if c.kind == 'valu' and p.C & c.wr: n = max(n, P - 1)
        if c.kind in ('vmem', 'ds') and p.C & c.wr: n = max(n, P - 1)
    if p.kind == 'salu' and ('s', 'm0') in p.wr and c.lds_dma: n = max(n, 1)
    if p.kind == 'vmem' and p.wide and p.data & c.wr: n = max(n, 2)
    return n

MAXD = 16


class Prog:
    def __init__(self):
        self.L = []

    def __call__(self, text, *a):
        for ln in text.split('\n'):
            if ln.strip(): self.L.append(Ins(ln.strip() if ln.strip().endswith(':') else '  ' + ln.strip()))

    def raw(self, ins): self.L.append(ins)

    def _succ(self, L):
        lab = {x.label: i for i, x in enumerate(L) if x.label}
        succ = []
        for i, x in enumerate(L):
            s = []
            if x.kind == 'end': pass
            elif x.kind == 'branch':
                s.append(lab[x.target])
                if x.op != 's_branch' and i + 1 < len(L): s.append(i + 1)
            elif i + 1 < len(L): s.append(i + 1)
            succ.append(s)
        return succ

    def auto_wait(self):
        L = self.L
        succ = self._succ(L)
        ins_wait = {}
        WRE = re.compile(r'(vmcnt|lgkmcnt)\((\d+)\)')

        def apply(st, vm, lg):
            V, G = st
            if vm is not None and len(V) > vm: V = V[len(V) - vm:] if vm else ()
            if lg is not None:
                if lg == 0: G = ()
                elif len(G) > lg and not any(g[0] for g in G): G = G[len(G) - lg:]
            return (V, G)

        changed = True
        while changed:
            changed = False
            seen = set(); stack = [(0, ((), ()))]
            steps = 0
            while stack:
                i, st = stack.pop()
                while True:
                    x = L[i]
                    if x.label or x.kind == 'branch':
                        key = (i, st)
                        if key in seen: break
                        seen.add(key)
                    steps += 1
                    assert steps < 5_000_000, 'auto_wait: state explosion'
                    if i in ins_wait: st = apply(st, *ins_wait[i])
                    V, G = st
                    touch = x.rd | x.wr
                    if touch and x.kind not in ('wait',):
                        vm = lg = None
                        for k in range(len(V) - 1, -1, -1):
                            if V[k] & touch: vm = min(63, len(V) - 1 - k); break
                        for k in range(len(G) - 1, -1, -1):
                            if G[k][1] & touch:
                                lg = 0 if any(g[0] for g in G) else min(15, len(G) - 1 - k); break
                        if vm is not None or lg is not None:
                            cur = ins_wait.get(i, [None, None])
                            new = [vm if cur[0] is None else cur[0] if vm is None else min(vm, cur[0]),
                                   lg if cur[1] is None else cur[1] if lg is None else min(lg, cur[1])]
                            if new != cur: ins_wait[i] = new; changed = True
                            st = apply(st, *new); V, G = st
                    if x.kind == 'wait':
                        d = dict((a, int(b)) for a, b in WRE.findall(x.text))
                        st = apply(st, d.get('vmcnt'), d.get('lgkmcnt'))
                    elif x.kind == 'vmem':
                        V = V + (frozenset(x.wr),)
                        if len(V) > 64: V = (V[0] | V[1],) + V[2:]
                        st = (V, G)
                    elif x.kind == 'ds':
                        G = G + ((False, frozenset(x.wr)),)
                        if len(G) > 24: G = ((G[0][0] or G[1][0], G[0][1] | G[1][1]),) + G[2:]
                        st = (V, G)
                    elif x.kind == 'smem':
                        st = (V, G + ((True, frozenset(x.wr)),))
                    V, G = st
                    while V and not V[0]: V = V[1:]
                    while G and not G[0][1] and not G[0][0]: G = G[1:]
                    st = (V, G)
                    s = succ[i]
                    if not s: break
                    for t in s[1:]: stack.append((t, st))
                    i = s[0]
        out = []
        for i, x in enumerate(L):
            if i in ins_wait:
                vm, lg = ins_wait[i]
                t = '  s_waitcnt' + (f' vmcnt({vm})' if vm is not None else '') + (f' lgkmcnt({lg})' if lg is not None else '')
                out.append(Ins(t))
            out.append(x)
        self.L = out

    def fix_hazards(self):
        L = list(self.L)
        i = 0
        def preds_map(L):
            succ = self._succ(L); pr = [[] for _ in L]
            for a, s in enumerate(succ):
                for b in s: pr[b].append(a)
            return pr
        pr = preds_map(L)
        pad = [0] * len(L)
        for i, c in enumerate(L):
            if c.kind in ('label', 'directive', 'nop', 'wait', 'sctl', 'end', 'branch', 'salu', 'smem'): continue
            need = 0
            stack = [(p, 0) for p in pr[i]]
            seen = {}
            while stack:
                j, d = stack.pop()
                if j in seen and seen[j] <= d: continue
                seen[j] = d
                p = L[j]
                if p.kind in ('valu', 'mfma', 'salu', 'vmem'):
                    n = need_between(p, c)
                    if n > d: need = max(need, n - d)
                d2 = d + p.nopn + pad[j]
                if d2 < MAXD:
                    for q in pr[j]: stack.append((q, d2))
            pad[i] = need
        out = []
        for i, x in enumerate(L):
            if pad[i]: out.append(Ins(f'  s_nop {pad[i] - 1}'))
            out.append(x)
        self.L = out
        return sum(1 for p in pad if p)

    def finish(self):
        self.auto_wait()
        self.fix_hazards()
        return '\n'.join(x.text for x in self.L) + '\n'

    def max_regs(self):
        mv = ma = ms = -1
        for x in self.L:
            for k, r in x.rd | x.wr:
                if isinstance(r, int):
                    if k == 'v': mv = max(mv, r)
                    elif k == 'a': ma = max(ma, r)
                    else: ms = max(ms, r)
        return mv + 1, ma + 1, ms + 1


def v(i, n=1): return f'v{i}' if n == 1 else f'v[{i}:{i + n - 1}]'
def a(i, n=1): return f'a{i}' if n == 1 else f'a[{i}:{i + n - 1}]'
def s(i, n=1): return f's{i}' if n == 1 else f's[{i}:{i + n - 1}]'


def kernel_text(name, prog):
    body = prog.finish()
    nv, na, ns = prog.max_regs()
    acc = max(4, (nv + 3) // 4 * 4)
    tot = acc + na if na else nv
    tot = (tot + 7) // 8 * 8
    code = f'.globl {name}\n.p2align 8\n.type {name},@function\n{name}:\n{body}'
    desc = f'''.p2align 6
.amdhsa_kernel {name}
  .amdhsa_next_free_vgpr {tot}
  .amdhsa_next_free_sgpr {max(ns, 16)}
  .amdhsa_accum_offset {acc}
  .amdhsa_group_segment_fixed_size 0
  .amdhsa_kernarg_size 120
  .amdhsa_user_sgpr_count 2
  .amdhsa_user_sgpr_kernarg_segment_ptr 1
  .amdhsa_system_sgpr_workgroup_id_x 1
.end_amdhsa_kernel
'''
    return code, desc


def file_text(kernels, header=''):
    out = header
    if len(kernels) == 1 and kernels[0][0].startswith('sequential'):
        n, p, g, b, l = kernels[0]
        out += f'; @launch grid=({g},1,1) block=({b},1,1) lds={l}\n'
    else:
        for n, p, g, b, l in kernels:
            out += f'; @launch kernel={n} grid=({g},1,1) block=({b},1,1) lds={l}\n'
    out += '.amdgcn_target "amdgcn-amd-amdhsa--gfx950"\n.text\n'
    descs = ''; done = set()
    for n, p, g, b, l in kernels:
        if n in done: continue
        done.add(n)
        c, d = kernel_text(n, p)
        out += c; descs += d
    out += '.section .rodata,"a"\n' + descs
    return out


def sched(texts, lat_valu=2, lat_trans=3, lat_ds=16, lat_mfma=4, prio_bias=None):
    I = [Ins(t) for t in texts]
    n = len(I)
    preds = [[] for _ in range(n)]
    lastw = {}; readers = {}
    last_ds = None; last_vm = None
    for i, x in enumerate(I):
        for r in x.rd:
            if r in lastw:
                p = I[lastw[r]]
                l = lat_trans if p.trans else lat_ds if p.kind == 'ds' else lat_mfma if p.kind == 'mfma' else lat_valu
                if p.kind == 'mfma' and x.kind == 'mfma' and p.D == x.C: l = 1
                elif p.kind == 'mfma': l = p.passes + 5
                elif p.kind == 'valu' and x.kind == 'mfma': l = max(l, 3)
                preds[i].append((lastw[r], l))
        for r in x.wr:
            if r in lastw: preds[i].append((lastw[r], 1))
            for q in readers.get(r, []):
                if q != i: preds[i].append((q, 1))
        if x.kind == 'ds':
            if last_ds is not None: preds[i].append((last_ds, 1))
            last_ds = i
        if x.kind == 'vmem':
            if last_vm is not None: preds[i].append((last_vm, 1))
            last_vm = i
        for r in x.rd: readers.setdefault(r, []).append(i)
        for r in x.wr: lastw[r] = i; readers[r] = []
    succs = [[] for _ in range(n)]
    for i in range(n):
        for p, l in preds[i]: succs[p].append((i, l))
    cp = [0] * n
    for i in range(n - 1, -1, -1):
        cp[i] = 1 + max([l + cp[j] - 1 for j, l in succs[i]], default=0)
    done = {}; out = []; t = 0
    remaining = set(range(n)); npred = [len(set(p for p, _ in preds[i])) for i in range(n)]
    ready = [i for i in range(n) if npred[i] == 0]
    while remaining:
        best = None
        for i in ready:
            est = max([done[p] + l for p, l in preds[i]], default=0)
            key = (max(est - t, 0), -cp[i], i)
            if best is None or key < best[0]: best = (key, i, est)
        _, i, est = best
        t = max(t, est)
        done[i] = t; t += 2 if I[i].trans else 1
        out.append(texts[i]); ready.remove(i); remaining.discard(i)
        for j in set(j for j, _ in succs[i]):
            npred[j] -= 1
            if npred[j] == 0: ready.append(j)
    return out


def _mark(self): return len(self.L)
def _vm_since(self, m): return sum(1 for x in self.L[m:] if x.kind == 'vmem')
def _wait_vm(self, m, lgkm=None):
    n = min(63, self.vm_since(m))
    self(f's_waitcnt vmcnt({n})' + (f' lgkmcnt({lgkm})' if lgkm is not None else ''))
Prog.mark = _mark; Prog.vm_since = _vm_since; Prog.wait_vm = _wait_vm
```

```python
import struct, math
from asmlib import *
from layout import *

def f2u(x): return '0x%08x' % struct.unpack('<I', struct.pack('<f', x))[0]

SC = ''
PTR = dict(x=64, logA=66, Aim=68, Cr=70, Ci=72, logdt=74, D=76, Bx=78, w1=80, w2=82, w3=84, w4=86, out=88, dbg=90, ws=92)
EPS = 1e-5

def prologue(p, nwg, lab):
    p(f'''
    s_cmp_ge_u32 s2, {nwg}
    s_cbranch_scc1 {lab}_end
    s_load_dwordx16 s[64:79], s[0:1], 0
    s_load_dwordx8 s[80:87], s[0:1], 64
    s_load_dwordx4 s[88:91], s[0:1], 96
    s_load_dwordx2 s[92:93], s[0:1], 112
    v_lshrrev_b32 v1, 6, v0
    v_and_b32 v0, 63, v0
    v_readfirstlane_b32 s3, v1
    s_mov_b32 s6, 0x10000000
    s_mov_b32 s7, 0x20000
    s_mov_b32 s4, s92
    s_mov_b32 s5, s93
    ''')

def srd(p, d, name, nbytes):
    b = PTR[name]
    p(f'''
    s_mov_b32 s{d}, s{b}
    s_mov_b32 s{d+1}, s{b+1}
    s_mov_b32 s{d+2}, {nbytes}
    s_mov_b32 s{d+3}, 0x20000
    ''')

def row16_reduce(p, r):
    for k in (8, 4, 2, 1):
        p(f'v_add_f32_dpp v{r}, v{r}, v{r} row_ror:{k} row_mask:0xf bank_mask:0xf')

def emit_ln(p, stile, lds0=0):
    srd(p, 8, 'x', 2048 * 1280)
    X = 8; F = 32
    p(f'''
    v_lshrrev_b32 v1, 4, v0
    v_and_b32 v2, 15, v0
    v_mul_u32_u24 v3, 1280, v1
    v_lshl_add_u32 v3, v2, 4, v3
    s_lshl_b32 s24, s{stile}, 2
    s_add_u32 s24, s24, s3
    s_mul_i32 s24, s24, {4 * 1280}
    ''')
    for i in range(5):
        p(f'buffer_load_dwordx4 {v(X + 4 * i, 4)}, v3, s[8:11], s24 offen offset:{256 * i}')
    p(f'''
    s_lshl_b32 s25, s3, 2
    v_and_b32 v4, 7, v0
    v_lshl_add_u32 v4, v4, 1, v1
    v_add_u32 v4, s25, v4
    v_and_b32 v4, 15, v4
    v_lshlrev_b32 v4, 3, v4
    v_lshl_add_u32 v4, v2, 8, v4
    s_and_b32 s25, s3, 1
    s_lshl_b32 s25, s25, 2
    v_add_u32 v5, s25, v1
    v_add_u32 v5, v5, v0
    v_and_b32 v5, 7, v5
    v_lshlrev_b32 v5, 4, v5
    v_lshrrev_b32 v6, 3, v0
    v_lshl_add_u32 v5, v6, 7, v5
    s_lshl_b32 s25, s3, 10
    s_add_u32 s26, s25, {lds0}
    v_add_u32 v5, s26, v5
    v_lshlrev_b32 v6, 4, v0
    s_mul_i32 s26, s{stile}, 20480
    s_add_u32 s26, s26, s25
    s_add_u32 s27, s26, {XQ - UQ}
    s_mov_b32 s28, 0xffff0000
    ''')
    if lds0: p(f'v_add_u32 v4, {lds0}, v4')
    for i in range(5):
        p(f'ds_write_b64 v4, {v(X + 4 * i, 2)} offset:{20480 + 4096 * i}')
        p(f'ds_write_b64 v4, {v(X + 4 * i + 2, 2)} offset:{20480 + 4096 * i + 128}')
        for d in range(4):
            k = 4 * i + d
            p(f'v_lshlrev_b32 v{F + 2 * k}, 16, v{X + k}')
            p(f'v_and_b32 v{F + 2 * k + 1}, s28, v{X + k}')
        if i == 0:
            p(f'v_pk_add_f32 v[72:73], {v(F, 2)}, {v(F + 2, 2)}')
            p(f'v_pk_add_f32 v[74:75], {v(F + 4, 2)}, {v(F + 6, 2)}')
        else:
            for d in range(4):
                a_ = 72 + 2 * (d & 1)
                p(f'v_pk_add_f32 {v(a_, 2)}, {v(a_, 2)}, {v(F + 8 * i + 2 * d, 2)}')
    p('v_pk_add_f32 v[72:73], v[72:73], v[74:75]')
    p('v_add_f32 v72, v72, v73')
    row16_reduce(p, 72)
    p(f'v_mul_f32 v72, {f2u(1 / 640)}, v72')
    for k in range(20):
        p(f'v_pk_add_f32 {v(F + 2 * k, 2)}, {v(F + 2 * k, 2)}, v[72:73] op_sel_hi:[1,0] neg_lo:[0,1] neg_hi:[0,1]')
    for k in range(20):
        a_ = 74 + 2 * (k & 1)
        if k < 2: p(f'v_pk_mul_f32 {v(a_, 2)}, {v(F + 2 * k, 2)}, {v(F + 2 * k, 2)}')
        else: p(f'v_pk_fma_f32 {v(a_, 2)}, {v(F + 2 * k, 2)}, {v(F + 2 * k, 2)}, {v(a_, 2)}')
    p('v_pk_add_f32 v[74:75], v[74:75], v[76:77]')
    p('v_add_f32 v74, v74, v75')
    row16_reduce(p, 74)
    p(f'''
    v_mov_b32 v75, {f2u(EPS)}
    v_fmac_f32 v75, {f2u(1 / 640)}, v74
    v_rsq_f32 v74, v75
    ''')
    for i in range(5):
        for d in range(4):
            k = 4 * i + d
            p(f'v_pk_mul_f32 {v(F + 2 * k, 2)}, {v(F + 2 * k, 2)}, v[74:75] op_sel_hi:[1,0]')
        for d in range(4):
            k = 4 * i + d
            p(f'v_cvt_pk_bf16_f32 v{X + k}, v{F + 2 * k}, v{F + 2 * k + 1}')
        p(f'ds_write_b64 v4, {v(X + 4 * i, 2)} offset:{4096 * i}')
        p(f'ds_write_b64 v4, {v(X + 4 * i + 2, 2)} offset:{4096 * i + 128}')
    p('s_waitcnt lgkmcnt(0)\ns_barrier')
    for i in range(10):
        p(f'ds_read_b128 {v(F + 4 * i, 4)}, v5 offset:{4096 * i}')
    for i in range(10):
        so = 26 if i < 5 else 27
        p(f'buffer_store_dwordx4 {v(F + 4 * i, 4)}, v6, s[4:7], s{so} offen{SC}')
        if i not in (4, 9): p(f's_add_u32 s{so}, s{so}, 4096')

def emit_relayout(p, su, lab, lds0=0):
    p(f'''
    s_cmp_lt_u32 s{su}, 10
    s_cbranch_scc1 {lab}_w1
    s_cmp_lt_u32 s{su}, 20
    s_cbranch_scc1 {lab}_w2
    s_cmp_lt_u32 s{su}, 44
    s_cbranch_scc1 {lab}_w3
    ''')
    def params(name, rs, nrows, u0, dest, nt, ns, sp, cs):
        srd(p, 8, name, nrows * rs)
        if name == 'w4':
            p(f'''
            s_sub_u32 s24, s{su}, 44
            s_mul_i32 s35, s24, 205
            s_lshr_b32 s35, s35, 11
            s_mul_i32 s25, s35, 10
            s_sub_u32 s24, s24, s25
            s_lshl_b32 s35, s35, 4
            s_add_u32 s35, s35, s3
            s_lshl_b32 s25, s35, 5
            s_mov_b32 s38, 4
            ''')
        else:
            p(f's_sub_u32 s24, s{su}, {u0}\ns_mov_b32 s35, s3\ns_mov_b32 s38, 5')
            if sp:
                p('''
                s_lshr_b32 s25, s3, 1
                s_mul_i32 s25, s25, 80
                s_and_b32 s26, s3, 1
                s_lshl_b32 s26, s26, 5
                s_add_u32 s25, s25, s26
                ''')
            else:
                p('s_lshl_b32 s25, s3, 5')
        p(f's_mul_i32 s25, s25, {rs}')
        p(f's_mov_b32 s26, {(160 if sp else 128) * rs}')
        if sp:
            p(f's_mul_i32 s27, s3, {160 * rs}\ns_add_u32 s27, s27, {64 * rs}')
            o = (80, 8, 88)
        else:
            p(f's_add_u32 s27, s25, {512 * rs}')
            o = (8, 16, 24)
        p(f'''
        s_mov_b32 s28, {o[0] * rs}
        s_mov_b32 s29, {o[1] * rs}
        s_mov_b32 s30, {o[2] * rs}
        s_mov_b32 s31, {rs}
        s_mov_b32 s32, {dest}
        s_mov_b32 s33, {nt}
        s_mov_b32 s34, {ns * nt}
        s_mov_b32 s36, {cs}
        s_mov_b32 s37, {205 if nt == 5 else 171}
        ''')
    for g in range(40): assert (g * 205) >> 10 == g // 5
    for g in range(96): assert (g * 171) >> 10 == g // 6
    for g in range(30): assert (g * 205) >> 11 == g // 10
    params('w4', 1280, 1536, 44, W4F, 5, 48, False, 0); p(f's_branch {lab}_go')
    p(f'{lab}_w1:'); params('w1', 1280, 640, 0, W1F, 5, 20, False, CS1); p(f's_branch {lab}_go')
    p(f'{lab}_w2:'); params('w2', 1280, 640, 10, W2F, 5, 20, True, 0); p(f's_branch {lab}_go')
    p(f'{lab}_w3:'); params('w3', 3072, 640, 20, W3F, 6, 20, True, CS3)
    p(f'{lab}_go:')
    p(f'''
    v_lshrrev_b32 v1, 3, v0
    v_mul_lo_u32 v1, v1, s31
    v_lshrrev_b32 v2, 1, v0
    v_lshrrev_b32 v3, 4, v0
    v_xor_b32 v2, v2, v3
    v_and_b32 v2, 3, v2
    v_lshl_add_u32 v1, v2, 5, v1
    v_and_b32 v2, 1, v0
    v_lshl_add_u32 v1, v2, 4, v1
    s_lshl_b32 s39, s24, 7
    v_add_u32 v1, s39, v1
    s_mul_i32 s40, s3, 20480
    s_add_u32 s40, s40, {lds0}
    s_mov_b32 m0, s40
    s_lshl_b32 s41, s31, 3
    ''')
    for i in range(5):
        if i == 4:
            p(f's_cmp_eq_u32 s38, 4\ns_cbranch_scc1 {lab}_ld_done')
        for k in range(4):
            if i < 4:
                if k == 0: p('s_mov_b32 s42, s25')
                else: p('s_add_u32 s42, s42, s41')
            else:
                if k == 0: p('s_mov_b32 s42, s27')
                else: p(f's_add_u32 s42, s27, s{27 + k}')
            p('buffer_load_dwordx4 v1, s[8:11], s42 offen lds')
            p('s_add_u32 m0, m0, 1024')
        if i < 3: p('s_add_u32 s25, s25, s26')
    p(f'{lab}_ld_done:')
    p(f'''
    v_lshrrev_b32 v2, 2, v0
    v_lshrrev_b32 v3, 3, v0
    v_and_b32 v3, 3, v3
    v_and_b32 v9, 3, v0
    v_lshlrev_b32 v9, 3, v9
    v_lshl_add_u32 v9, v2, 7, v9
    v_add_u32 v9, s40, v9
    v_lshlrev_b32 v8, 4, v0
    v_mov_b32 v10, 0x3f803f80
    v_mov_b32 v11, 0x3f803f80
    v_mov_b32 v12, 0x3f803f80
    v_mov_b32 v13, 0x3f803f80
    s_mul_i32 s43, s35, s33
    ''')
    for t in range(4):
        p(f'''
        v_xor_b32 v{4 + t}, {t}, v3
        v_lshl_add_u32 v{4 + t}, v{4 + t}, 5, v9
        s_lshl_b32 s48, s24, 2
        s_add_u32 s48, s48, {t}
        s_mul_i32 s49, s48, s37
        s_lshr_b32 s49, s49, 10
        s_mul_i32 s50, s49, s33
        s_sub_u32 s48, s48, s50
        s_mul_i32 s49, s49, s34
        s_add_u32 s48, s48, s49
        s_add_u32 s48, s48, s43
        s_lshl_b32 s48, s48, 10
        s_add_u32 s{44 + t}, s48, s32
        ''')
        for r in range(4): p(f'v_mov_b32 v{16 + 4 * t + r}, 0')
    p('s_lshl_b32 s43, s33, 12')
    p('s_waitcnt vmcnt(0)')
    for i in range(5):
        if i == 4:
            p(f's_cmp_eq_u32 s38, 4\ns_cbranch_scc1 {lab}_st_done')
        R = 32 + 16 * (i & 1)
        for t in range(4):
            p(f'ds_read_b64_tr_b16 {v(R + 4 * t, 2)}, v{4 + t} offset:{4096 * i}')
            p(f'ds_read_b64_tr_b16 {v(R + 4 * t + 2, 2)}, v{4 + t} offset:{4096 * i + 2048}')
        for t in range(4):
            p(f'buffer_store_dwordx4 {v(R + 4 * t, 4)}, v8, s[4:7], s{44 + t} offen{SC}')
            p(f's_add_u32 s{44 + t}, s{44 + t}, s43')
            p(f'v_mfma_f32_16x16x32_bf16 {v(16 + 4 * t, 4)}, {v(R + 4 * t, 4)}, v[10:13], {v(16 + 4 * t, 4)}')
    p(f'{lab}_st_done:')
    CSL = lds0 + 81920
    p(f'''
    s_cmp_eq_u32 s36, 0
    s_cbranch_scc1 {lab}_done
    s_lshl_b32 s48, s3, 8
    s_add_u32 s48, s48, {CSL}
    v_and_b32 v2, 48, v0
    v_add_u32 v2, s48, v2
    s_mov_b32 s50, 0x00010001
    s_mov_b32 s51, 0x00010001
    s_mov_b64 exec, s[50:51]
    ''')
    for t in range(4): p(f'ds_write_b128 v2, {v(16 + 4 * t, 4)} offset:{64 * t}')
    p(f'''
    s_mov_b64 exec, -1
    s_waitcnt lgkmcnt(0)
    s_barrier
    s_cmp_lg_u32 s3, 0
    s_cbranch_scc1 {lab}_done
    v_lshlrev_b32 v2, 2, v0
    v_add_u32 v3, {CSL}, v2
    ds_read_b32 v4, v3
    ds_read_b32 v5, v3 offset:256
    ds_read_b32 v6, v3 offset:512
    ds_read_b32 v7, v3 offset:768
    s_lshl_b32 s48, s24, 8
    s_add_u32 s48, s48, s36
    v_add_f32 v4, v4, v5
    v_add_f32 v6, v6, v7
    v_add_f32 v4, v4, v6
    buffer_store_dword v4, v2, s[4:7], s48 offen{SC}
    {lab}_done:
    ''')

def k_pre():
    p = Prog()
    prologue(p, 202, 'pre')
    p('s_cmp_ge_u32 s2, 128\ns_cbranch_scc1 pre_rl')
    emit_ln(p, 2)
    p('s_endpgm\npre_rl:\ns_sub_u32 s20, s2, 128')
    emit_relayout(p, 20, 'rl')
    p('pre_end:\ns_endpgm')
    return ('pre_kernel', p, 202, 256, 82944)

LOG2E = 1.4426950408889634
HROW = {}
for hf, tab in enumerate(([0, 1, 2, 3, 4, 5, 6, 7, 1024, 1032, 1280, 1288, 512, 516, 520],
                          [256, 256, 258, 260, 260, 260, 262, 264, 1536, 1544, 1792, 1800, 768, 772, 776])):
    for q_, h_ in enumerate(tab):
        HROW.setdefault(h_, []).append(8 * (q_ >> 2) + 4 * hf + (q_ & 3))

def cmul(D, X, Y):
    return [f'v_pk_mul_f32 {v(D, 2)}, {v(X, 2)}, {v(Y, 2)} op_sel:[0,0] op_sel_hi:[0,1]',
            f'v_pk_fma_f32 {v(D, 2)}, {v(X, 2)}, {v(Y, 2)}, {v(D, 2)} op_sel:[1,1,0] op_sel_hi:[1,0,1] neg_lo:[1,0,0]']

def emit_kgen_loads(p, sq):
    for k, nm in enumerate(('logA', 'Aim', 'Cr', 'Ci')): srd(p, 8 + 4 * k, nm, 640 * 384)
    p(f'''
    s_lshl_b32 s24, s{sq}, 2
    s_add_u32 s24, s24, s3
    s_mul_i32 s25, s24, 384
    s_lshl_b32 s24, s24, 1
    v_lshlrev_b32 v1, 1, v0
    v_mov_b32 v2, 0
    ''')
    for k in range(14): p(f'v_mov_b32 v{8 + k}, 0')
    for st in range(3):
        for k in range(4):
            p(f'buffer_load_short_d16_hi v{8 + 4 * st + k}, v1, s[{8 + 4 * k}:{11 + 4 * k}], s25 offen offset:{128 * st}')
        if st == 0:
            srd(p, 28, 'logdt', 1280); srd(p, 32, 'D', 1280)
            p('buffer_load_short_d16_hi v20, v2, s[28:31], s24 offen')
            p('buffer_load_short_d16_hi v21, v2, s[32:35], s24 offen')

def emit_kgen(p, FB, RC):
    ACC = 24
    FR = 40
    Lr = 104
    T = 136
    p(f'''
    s_mul_i32 s26, s3, 17408
    s_add_u32 s26, s26, {FB}
    s_mov_b32 m0, s26
    v_and_b32 v3, 31, v0
    v_mul_u32_u24 v3, 272, v3
    v_lshrrev_b32 v4, 5, v0
    v_lshl_add_u32 v3, v4, 4, v3
    v_add_u32 v3, s26, v3
    v_mov_b32 v4, 0x3f80
    ds_write_addtid_b32 v4
    s_mul_i32 s27, s3, 4608
    s_add_u32 s27, s27, {RC}
    v_lshlrev_b32 v5, 3, v0
    v_add_u32 v5, s27, v5
    v_mov_b32 v6, 0
    v_mov_b32 v7, 0
    ds_write_b64 v5, v[6:7]
    s_mov_b32 s36, {f2u(LOG2E)}
    s_mov_b32 s37, {f2u(1 / (2 * math.pi))}
    s_mov_b32 s38, 0x41000000
    s_mov_b32 s39, 0x43800000
    ''')
    for k in range(16): p(f'v_mov_b32 v{ACC + k}, 0')
    p(f'''
    v_mul_f32 v20, s36, v20
    v_exp_f32 v20, v20
    v_cvt_pk_bf16_f32 v20, v20, v20
    v_lshlrev_b32 v20, 16, v20
    v_add_f32 v22, v20, v20
    v_cmp_eq_u32 vcc, 0, v0
    v_cndmask_b32 v21, 0, v21, vcc
    ''')
    code = []
    tp = [T]
    def new(n=2):
        r = tp[0]; tp[0] += n; return r
    cv = [0]
    CV = 240
    def put(val, rows, neg):
        r = CV + (cv[0] % 12); cv[0] += 1
        code.append(f'v_cvt_pk_bf16_f32 v{r}, v{val}, {"-" if neg else ""}v{val + 1}')
        for row in rows: code.append(f'ds_write_addtid_b32 v{r} offset:{272 * row}')
    for st in range(3):
        tp[0] = T
        la, ai, cr, ci = [8 + 4 * st + k for k in range(4)]
        E1, E256, G0 = new(), new(), new()
        E8 = Lr
        t = new(10)
        code += [f'v_mul_f32 v{la}, s36, v{la}', f'v_exp_f32 v{la}, v{la}', f'v_cvt_pk_bf16_f32 v{la}, v{la}, v{la}',
                 f'v_lshlrev_b32 v{la}, 16, v{la}', f'v_mul_f32 v{la}, v{la}, v20', f'v_mul_f32 v{la}, -v{la}, s36',
                 f'v_mul_f32 v{ai}, v{ai}, v20', f'v_mul_f32 v{ai}, s37, v{ai}',
                 f'v_mul_f32 v{G0}, v{cr}, v22', f'v_mul_f32 v{G0 + 1}, v{ci}, v22']
        for k, (E, sc) in enumerate(((E8, 's38'), (E1, None), (E256, 's39'))):
            m_, a_ = t + 3 * k, t + 3 * k + 1
            if sc:
                code += [f'v_mul_f32 v{m_}, {sc}, v{la}', f'v_mul_f32 v{a_}, {sc}, v{ai}', f'v_exp_f32 v{m_}, v{m_}', f'v_fract_f32 v{a_}, v{a_}']
            else:
                code += [f'v_exp_f32 v{m_}, v{la}', f'v_fract_f32 v{a_}, v{ai}']
            code += [f'v_cos_f32 v{E}, v{a_}', f'v_sin_f32 v{E + 1}, v{a_}',
                     f'v_mul_f32 v{E}, v{E}, v{m_}', f'v_mul_f32 v{E + 1}, v{E + 1}, v{m_}']
        Lx = lambda j: Lr + 2 * (j - 1)
        put(E8, [1], False)
        put(G0, [32 + r for r in HROW[0]], True)
        tmp = [new() for _ in range(6)]; ti = [0]
        def nt():
            r = tmp[ti[0] % len(tmp)]; ti[0] += 1; return r
        E2, E4 = new(), new()
        G = {0: G0}
        hi = []
        hi.append((E2, E1, E1, None)); hi.append((E4, E2, E2, None))
        for h_, a_, b_ in ((1, 0, E1), (2, 0, E2), (3, 1, E2), (4, 0, E4), (5, 1, E4), (6, 2, E4), (7, 3, E4), (8, 0, E8),
                           (256, 0, E256), (264, 8, E256), (258, 2, E256), (260, 4, E256), (262, 6, E256),
                           (512, 256, E256), (520, 264, E256), (516, 260, E256), (768, 512, E256), (776, 520, E256), (772, 516, E256),
                           (1024, 768, E256), (1032, 776, E256), (1280, 1024, E256), (1288, 1032, E256),
                           (1536, 1280, E256), (1544, 1288, E256), (1792, 1536, E256), (1800, 1544, E256)):
            G[h_] = new()
            hi.append((G[h_], G[a_], b_, h_))
        lo = []
        for j in range(2, 32):
            pw = 1 << (j.bit_length() - 1)
            a_, b_ = (pw // 2, pw // 2) if j == pw else (j - pw, pw)
            lo.append((Lx(j) if j <= 16 else nt(), Lx(a_), Lx(b_), j))
        for k in range(max(len(lo), len(hi))):
            if k < len(lo):
                D_, X_, Y_, j = lo[k]; code += cmul(D_, X_, Y_); put(D_, [j], False)
            if k < len(hi):
                D_, X_, Y_, h_ = hi[k]; code += cmul(D_, X_, Y_)
                if h_ in HROW: put(D_, [32 + r for r in HROW[h_]], True)
        assert tp[0] <= CV, tp[0]
        for m in range(8):
            code.append(f'ds_read_b128 {v(FR + 4 * m, 4)}, v3 offset:{32 * 272 + 32 * m}')
            code.append(f'ds_read_b128 {v(FR + 32 + 4 * m, 4)}, v3 offset:{32 * m}')
        for m in range(8):
            code.append(f'v_mfma_f32_32x32x16_bf16 {v(ACC, 16)}, {v(FR + 4 * m, 4)}, {v(FR + 32 + 4 * m, 4)}, {v(ACC, 16)}')
    for t_ in sched(code): p(t_)
    q = lambda i: f'v{ACC + i}'
    O = FR
    p(f'''
    v_lshlrev_b32 v5, 4, v0
    v_add_u32 v5, s27, v5
    v_lshrrev_b32 v6, 5, v0
    v_lshl_add_u32 v6, v6, 9, v5
    s_mov_b32 s40, 0xaaaaaaaa
    s_mov_b32 s41, 0xaaaaaaaa
    v_add_f32 {q(0)}, {q(0)}, v21
    v_cvt_pk_bf16_f32 v{O}, {q(7)}, {q(6)}
    v_cvt_pk_bf16_f32 v{O + 1}, {q(5)}, {q(4)}
    v_cvt_pk_bf16_f32 v{O + 2}, {q(3)}, {q(2)}
    v_cvt_pk_bf16_f32 v{O + 3}, {q(1)}, {q(0)}
    ds_write_b128 v5, {v(O, 4)} offset:512
    v_cvt_pk_bf16_f32 v{O + 4}, {q(14)}, {q(14)}
    v_cvt_pk_bf16_f32 v{O + 5}, {q(13)}, {q(13)}
    v_cvt_pk_bf16_f32 v{O + 6}, {q(13)}, {q(12)}
    v_cvt_pk_bf16_f32 v{O + 7}, {q(12)}, {q(12)}
    ds_write_b128 v5, {v(O + 4, 4)} offset:{96 * 16}
    ''')
    for k in range(2):
        a_, b_ = q(8 + 2 * k), q(9 + 2 * k); o = O + 8 + 4 * k
        p(f'''
        v_cndmask_b32 v7, {a_}, {b_}, s[40:41]
        v_cvt_pk_bf16_f32 v{o}, {b_}, {b_}
        v_cvt_pk_bf16_f32 v{o + 1}, {b_}, v7
        v_cvt_pk_bf16_f32 v{o + 2}, {a_}, {a_}
        v_mov_b32 v{o + 3}, v{o + 2}
        ds_write_b128 v6, {v(o, 4)} offset:{160 * 16 + 512 * k}
        ''')

def emit_u_dma(p, sq, RAW):
    p(f'''
    v_lshrrev_b32 v23, 3, v0
    v_mul_u32_u24 v23, 20480, v23
    v_and_b32 v7, 7, v0
    v_lshl_add_u32 v23, v7, 4, v23
    s_mul_i32 s42, s3, {32 * 20480}
    s_lshl_b32 s43, s{sq}, 7
    s_add_u32 s42, s42, s43
    s_lshl_b32 s43, s3, 12
    s_add_u32 s43, s43, {RAW + 128}
    s_mov_b32 m0, s43
    ''')
    for i in range(4):
        if i: p(f's_add_u32 m0, m0, 1024\ns_add_u32 s42, s42, {8 * 20480}')
        elif UQ: p(f's_add_u32 s42, s42, {UQ}')
        p(f'buffer_load_dwordx4 v23, s[4:7], s42 offen{SC} lds')

XP = 200
def emit_x_prefetch(p, sq):
    p(f'''
    v_lshrrev_b32 v2, 4, v0
    v_mul_u32_u24 v2, 20480, v2
    v_and_b32 v7, 15, v0
    v_lshl_add_u32 v2, v7, 3, v2
    s_mul_i32 s44, s3, {32 * 20480}
    s_lshl_b32 s45, s{sq}, 7
    s_add_u32 s44, s44, s45
    s_add_u32 s45, s44, {XQ}
    s_add_u32 s44, s44, {HQ}
    ''')
    for k in range(8):
        p(f'buffer_load_dwordx2 {v(XP + 2 * k, 2)}, v2, s[4:7], s45 offen{SC}')
        if k < 7: p(f's_add_u32 s45, s45, {4 * 20480}')

def emit_raw_zero(p, RAW):
    p(f'''
    v_and_b32 v6, 15, v0
    v_lshlrev_b32 v6, 3, v6
    v_add_u32 v5, {RAW}, v6
    v_mov_b32 v6, 0
    v_mov_b32 v7, 0
    ds_write_b64 v5, v[6:7]
    ''')

CHS = 8352
def emit_build_uc(p, RAW, UC):
    p(f'''
    v_lshrrev_b32 v8, 4, v0
    v_bfe_u32 v9, v0, 2, 2
    v_and_b32 v10, 3, v0
    v_lshlrev_b32 v11, 5, v10
    v_lshl_add_u32 v11, v9, 3, v11
    v_mul_u32_u24 v12, {CHS}, v10
    v_lshl_add_u32 v12, v9, 3, v12
    v_and_b32 v13, 1, v8
    v_lshl_add_u32 v14, v13, 3, v11
    v_add_u32 v14, {RAW}, v14
    v_mul_u32_u24 v13, 4160, v13
    v_add_u32 v15, v13, v12
    v_add_u32 v15, {UC}, v15
    s_lshl_b32 s46, s3, 12
    s_add_u32 s46, s46, {RAW + 128}
    v_lshl_add_u32 v11, v8, 7, v11
    v_add_u32 v11, s46, v11
    s_lshl_b32 s46, s3, 10
    s_add_u32 s46, s46, {UC + 32}
    v_lshl_add_u32 v12, v8, 5, v12
    v_add_u32 v12, s46, v12
    ds_read_b64_tr_b16 v[16:17], v14
    ''')
    R = 24
    for mm in range(8):
        p(f'ds_read_b64_tr_b16 {v(R + 4 * mm, 2)}, v11 offset:{512 * mm}')
        p(f'ds_read_b64_tr_b16 {v(R + 4 * mm + 2, 2)}, v11 offset:{512 * mm + 8}')
    p('ds_write_b64 v15, v[16:17]')
    for mm in range(8):
        p(f'ds_write_b64 v12, {v(R + 4 * mm, 2)} offset:{128 * mm}')
        p(f'ds_write_b64 v12, {v(R + 4 * mm + 2, 2)} offset:{128 * mm + 4160}')

def emit_conv(p, UC, RC):
    ACC = 24; KF = [56, 88]; UF = [120, 152]
    p(f'''
    v_and_b32 v8, 15, v0
    v_lshrrev_b32 v9, 4, v0
    v_and_b32 v10, 1, v0
    v_mul_u32_u24 v10, 4158, v10
    v_lshlrev_b32 v11, 1, v8
    v_sub_u32 v11, v11, v10
    v_lshl_add_u32 v11, v9, 4, v11
    s_mul_i32 s46, s3, {CHS}
    s_add_u32 s47, s46, {UC + 4160}
    v_add_u32 v11, s47, v11
    v_add_u32 v12, 1024, v11
    v_add_u32 v13, 2048, v11
    v_add_u32 v14, 3072, v11
    v_lshlrev_b32 v15, 5, v8
    v_lshlrev_b32 v16, 4, v9
    v_sub_u32 v15, v15, v16
    s_mul_i32 s47, s3, 4608
    s_add_u32 s47, s47, {RC + 16 + 512 - 448}
    v_add_u32 v15, s47, v15
    ''')
    def loads(j0):
        b = j0 & 1; out = []
        kf = lambda d: f'ds_read_b128 {v(KF[b] + 4 * d, 4)}, v15 offset:{512 * d - 64 * j0 + 448}'
        out.append(kf(0))
        for jp in range(8):
            o = 128 * (jp & 1) + 16 * j0
            out.append(f'ds_read2_b32 {v(UF[b] + 4 * jp, 2)}, v{11 + (jp >> 1)} offset0:{o} offset1:{o + 1}')
            out.append(f'ds_read2_b32 {v(UF[b] + 4 * jp + 2, 2)}, v{11 + (jp >> 1)} offset0:{o + 2} offset1:{o + 3}')
        out += [kf(d) for d in range(1, 8)]
        return out
    for t_ in loads(0): p(t_)
    p(f'''
    v_mul_u32_u24 v16, 144, v9
    v_lshl_add_u32 v16, v8, 3, v16
    s_add_u32 s47, s46, {UC}
    v_add_u32 v16, s47, v16
    v_bfe_u32 v17, v0, 2, 2
    v_mul_u32_u24 v17, {CHS}, v17
    v_and_b32 v18, 3, v0
    v_mul_u32_u24 v18, 144, v18
    v_add_u32 v17, v17, v18
    v_lshl_add_u32 v17, v9, 3, v17
    s_mul_i32 s47, s3, {2 * 576}
    s_add_u32 s47, s47, {UC}
    v_add_u32 v17, s47, v17
    s_mov_b32 s48, 0xffff0000
    ''')
    order = []
    for d in range(8):
        Is = list(range(d, 8))
        if d == 5: Is = [7, 5, 6]
        if d == 6: Is = [7, 6]
        order += [(I, d) for I in Is]
    for j0 in range(8):
        b = j0 & 1
        nx = loads(j0 + 1) if j0 < 7 else []
        for k, (I, d) in enumerate(order):
            c = v(ACC + 4 * I, 4)
            src = '0' if (j0 == 0 and d == 0) else c
            p(f'v_mfma_f32_16x16x32_bf16 {c}, {v(UF[b] + 4 * (I - d), 4)}, {v(KF[b] + 4 * d, 4)}, {src}')
            if k >= 1 and k - 1 < len(nx): p(nx[k - 1])
    for I in range(8):
        o = 56 + 2 * I
        p(f'v_cvt_pk_bf16_f32 v{o}, v{ACC + 4 * I}, v{ACC + 4 * I + 1}')
        p(f'v_cvt_pk_bf16_f32 v{o + 1}, v{ACC + 4 * I + 2}, v{ACC + 4 * I + 3}')
        p(f'ds_write_b64 v16, {v(o, 2)} offset:{576 * I}')
    p('s_waitcnt lgkmcnt(0)\ns_barrier')
    Y = 72
    for k in range(8):
        p(f'ds_read_b64_tr_b16 {v(Y + 2 * k, 2)}, v17 offset:{576 * (k >> 2) + 32 * (k & 3)}')
    for k in range(8):
        t = 96 + 8 * (k & 1)
        for h_ in range(2):
            y_, x_ = Y + 2 * k + h_, XP + 2 * k + h_
            p(f'''
            v_lshlrev_b32 v{t + 4 * h_}, 16, v{y_}
            v_and_b32 v{t + 4 * h_ + 1}, s48, v{y_}
            v_lshlrev_b32 v{t + 4 * h_ + 2}, 16, v{x_}
            v_and_b32 v{t + 4 * h_ + 3}, s48, v{x_}
            v_pk_add_f32 {v(t + 4 * h_, 2)}, {v(t + 4 * h_, 2)}, {v(t + 4 * h_ + 2, 2)}
            v_cvt_pk_bf16_f32 v{y_}, v{t + 4 * h_}, v{t + 4 * h_ + 1}
            ''')
        p(f'buffer_store_dwordx2 {v(Y + 2 * k, 2)}, v2, s[4:7], s44 offen{SC}')
        if k < 7: p(f's_add_u32 s44, s44, {4 * 20480}')

def k_conv(dump=False):
    p = Prog()
    FB, RC, RAW, UC = 0, 69632, 88064, 16640
    prologue(p, 160, 'cv')
    emit_kgen_loads(p, 2)
    emit_u_dma(p, 2, RAW)
    m = p.mark()
    emit_raw_zero(p, RAW)
    emit_kgen(p, FB, RC)
    emit_x_prefetch(p, 2)
    if dump:
        p(f'''
        s_lshl_b32 s50, s2, 2
        s_add_u32 s50, s50, s3
        s_mul_i32 s50, s50, 4608
        s_add_u32 s50, s50, {DBGW}
        v_lshlrev_b32 v8, 3, v0
        v_add_u32 v9, s27, v8
        ''')
        for k in range(9):
            p(f'ds_read_b64 v[10:11], v9 offset:{512 * k}')
            p(f'buffer_store_dwordx2 v[10:11], v8, s[4:7], s50 offen')
            p('s_add_u32 s50, s50, 512')
    p.wait_vm(m, 0); p('s_barrier')
    emit_build_uc(p, RAW, UC)
    p('s_waitcnt lgkmcnt(0)\ns_barrier')
    emit_conv(p, UC, RC)
    p('cv_end:\ns_endpgm')
    return ('conv_kernel', p, 160, 256, RAW + 16640)
def k_convd(): return k_conv(True)

C0 = -2 * 0.7978845608028654 * LOG2E
C1 = C0 * 0.044715

class G:
    def __init__(self, NT, MT, NS, WF, slots, WL=0):
        self.NT, self.MT, self.NS, self.WF, self.slots, self.WL = NT, MT, NS, WF, slots, WL
        self.ACC = 16
        self.AB = [16 + 4 * NT * MT, 16 + 4 * NT * MT + 4 * NT]
        self.free = self.AB[1] + 4 * NT
        self.marks = {}
    def acc(self, mt, t): return self.ACC + 4 * (mt * self.NT + t)

def gemm_ids(p, g):
    if g.MT == 1:
        p('''
        s_lshr_b32 s28, s2, 3
        s_and_b32 s25, s28, 7
        s_lshr_b32 s28, s28, 3
        s_lshl_b32 s28, s28, 2
        s_and_b32 s24, s2, 7
        s_lshl_b32 s24, s24, 4
        s_add_u32 s24, s24, s28
        s_add_u32 s24, s24, s3
        ''')
    else:
        p('''
        s_lshr_b32 s28, s2, 3
        s_and_b32 s25, s28, 15
        s_lshr_b32 s28, s28, 4
        s_lshl_b32 s28, s28, 2
        s_add_u32 s28, s28, s3
        s_lshl_b32 s28, s28, 1
        s_and_b32 s24, s2, 7
        s_lshl_b32 s24, s24, 4
        s_add_u32 s24, s24, s28
        ''')

def gemm_w_init(p, g):
    p(f'''
    v_lshlrev_b32 v1, 4, v0
    s_mul_i32 s26, s25, {g.NS}
    s_add_u32 s26, s26, s3
    s_mul_i32 s26, s26, {g.NT * 1024}
    s_add_u32 s26, s26, {g.WF}
    s_mul_i32 s27, s3, {g.NT * 1024}
    ''')

def gemm_w_dma(p, g, st):
    slot = st % g.slots
    p(f's_add_u32 m0, s27, {g.WL + slot * 4 * g.NT * 1024}')
    for t in range(g.NT):
        if t == 4: p('s_add_u32 m0, m0, 4096\ns_add_u32 s26, s26, 4096')
        p(f'buffer_load_dwordx4 v1, s[4:7], s26 offen offset:{1024 * (t & 3)}{SC} lds')
    p(f's_add_u32 s26, s26, {4 * g.NT * 1024 - 4096}')
    g.marks[st] = p.mark()

def gemm_main(p, g, xreg, side=None, refill=None):
    NT, MT = g.NT, g.MT
    p(f'v_add_u32 v2, {g.WL}, v1\nv_add_u32 v3, {g.WL + 65536}, v1')
    if g.slots * 4 * NT * 1024 > 131072: p(f'v_add_u32 v15, {g.WL + 131072}, v1')
    def areads(s_):
        o = (((s_ >> 2) % g.slots) * 4 + (s_ & 3)) * NT * 1024
        out = []
        for t in range(NT):
            oo = o + 1024 * t
            out.append(f'ds_read_b128 {v(g.AB[s_ & 1] + 4 * t, 4)}, v{(2, 3, 15)[oo >> 16]} offset:{oo & 65535}')
        return out
    def sync(st):
        p.wait_vm(g.marks[st], 0 if (refill and st) else None); p('s_barrier')
        if refill and st: refill(st - 1 + g.slots)
    sync(0)
    for t_ in areads(0): p(t_)
    for s_ in range(g.NS):
        nx = []
        if s_ + 1 < g.NS:
            if (s_ + 1) % 4 == 0: sync((s_ + 1) // 4)
            nx = areads(s_ + 1)
        sd = side(s_) if side else []
        mf = [f'v_mfma_f32_16x16x32_bf16 {v(g.acc(mt, t), 4)}, {v(g.AB[s_ & 1] + 4 * t, 4)}, {xreg(s_, mt)}, {v(g.acc(mt, t), 4)}'
              for t in range(NT) for mt in range(MT)]
        for t_ in nx: p(t_)
        k = 0
        for i, m_ in enumerate(mf):
            p(m_)
            n = (len(sd) * (i + 1)) // len(mf)
            for t_ in sd[k:n]: p(t_)
            k = n

def qreduce(r, t):
    return [f'v_mov_b32 v{t}, v{r}', f'v_permlane16_swap_b32 v{r}, v{t}', f'v_add_f32 v{r}, v{r}, v{t}',
            f'v_mov_b32 v{t}, v{r}', f'v_permlane32_swap_b32 v{r}, v{t}', f'v_add_f32 v{r}, v{r}, v{t}']

def gelu_code(A, t, K, ONE, out):
    return [f'v_pk_mul_f32 {v(t, 2)}, {v(A, 2)}, {v(A, 2)}',
            f'v_pk_fma_f32 {v(t, 2)}, {v(t, 2)}, {v(K, 2)}, {v(K, 2)} op_sel:[0,1,0] op_sel_hi:[1,1,0]',
            f'v_pk_mul_f32 {v(t, 2)}, {v(t, 2)}, {v(A, 2)}',
            f'v_exp_f32 v{t}, v{t}', f'v_exp_f32 v{t + 1}, v{t + 1}',
            f'v_pk_add_f32 {v(t, 2)}, {v(t, 2)}, {v(ONE, 2)} op_sel_hi:[1,0]',
            f'v_rcp_f32 v{t}, v{t}', f'v_rcp_f32 v{t + 1}, v{t + 1}',
            f'v_pk_mul_f32 {v(A, 2)}, {v(A, 2)}, {v(t, 2)}',
            f'v_cvt_pk_bf16_f32 v{out}, v{A}, v{A + 1}']

def frag_store80(p, O, base):
    p(f'''
    s_mul_i32 s28, s24, 20480
    s_add_u32 s28, s28, {base}
    s_lshl_b32 s29, s25, 11
    s_add_u32 s29, s29, s28
    buffer_store_dwordx4 {v(O, 4)}, v1, s[4:7], s29 offen{SC}
    buffer_store_dwordx4 {v(O + 4, 4)}, v1, s[4:7], s29 offen offset:1024{SC}
    v_permlane32_swap_b32 v{O + 8}, v{O + 10}
    v_permlane32_swap_b32 v{O + 9}, v{O + 11}
    s_lshl_b32 s29, s25, 9
    s_add_u32 s29, s29, s28
    s_add_u32 s29, s29, 16384
    s_mov_b32 exec_hi, 0
    buffer_store_dwordx4 {v(O + 8, 4)}, v1, s[4:7], s29 offen{SC}
    s_mov_b32 exec_hi, -1
    ''')

def cs_loads(p, g, R, base, sreg):
    p(f'''
    v_and_b32 v5, 48, v0
    s_mul_i32 s{sreg}, s25, {g.NT * 64}
    s_add_u32 s{sreg}, s{sreg}, {base}
    ''')
    for t in range(g.NT):
        p(f'buffer_load_dwordx4 {v(R + 4 * t, 4)}, v5, s[4:7], s{sreg} offen offset:{64 * t}{SC}')

def emit_g1(p, g):
    X = 80; CS = 160
    cs_loads(p, g, CS, CS1, 29)
    p(f'''
    v_lshlrev_b32 v4, 3, v0
    s_mul_i32 s30, s24, 20480
    s_add_u32 s30, s30, {HQ}
    ''')
    for st in range(5):
        if st not in g.marks: gemm_w_dma(p, g, st)
        for k in range(4):
            s_ = 4 * st + k
            p(f'buffer_load_dwordx2 {v(X + 4 * s_, 2)}, v4, s[4:7], s30 offen offset:{1024 * k}{SC}')
            p(f'buffer_load_dwordx2 {v(X + 4 * s_ + 2, 2)}, v4, s[4:7], s30 offen offset:{1024 * k + 512}{SC}')
        if st < 4: p('s_add_u32 s30, s30, 4096')
    for k in range(20): p(f'v_mov_b32 v{g.ACC + k}, 0')
    p('v_mov_b32 v8, 0\nv_mov_b32 v9, 0\nv_mov_b32 v10, 0\nv_mov_b32 v11, 0\nv_mov_b32 v12, 0x3f803f80')
    def side(s_):
        out = []
        for d in range(4):
            out.append(f'v_dot2c_f32_bf16 v{8 + (d & 1)}, v{X + 4 * s_ + d}, v12')
            out.append(f'v_dot2c_f32_bf16 v{10 + (d & 1)}, v{X + 4 * s_ + d}, v{X + 4 * s_ + d}')
        return out
    gemm_main(p, g, lambda s_, mt: v(X + 4 * s_, 4), side)
    K, ONE, O, T = 80, 82, 84, 96
    code = [f'v_mov_b32 v{K}, {f2u(C0)}', f'v_mov_b32 v{K + 1}, {f2u(C1)}', f'v_mov_b32 v{ONE}, 1.0',
            'v_add_f32 v8, v8, v9', 'v_add_f32 v10, v10, v11'] + qreduce(8, 9) + qreduce(10, 11) + [
        f'v_mul_f32 v8, {f2u(1 / 640)}, v8', 'v_mul_f32 v9, v8, v8', f'v_mov_b32 v13, {f2u(1 / 640)}',
        'v_fma_f32 v10, v10, v13, -v9', 'v_max_f32 v10, 0, v10', f'v_add_f32 v11, {f2u(EPS)}, v10', 'v_rsq_f32 v14, v11',
        'v_mul_f32 v11, v14, v14', f'v_mov_b32 v13, {f2u(EPS)}', 'v_fma_f32 v11, v11, v10, v13', 'v_rsq_f32 v11, v11',
        'v_mul_f32 v15, -v8, v14', 'v_mul_f32 v10, v14, v11', 'v_mul_f32 v11, v15, v11']
    for k in range(10):
        A = g.ACC + 2 * k; t = T + 2 * k
        code += [f'v_pk_mul_f32 {v(CS + 2 * k, 2)}, {v(CS + 2 * k, 2)}, v[10:11] op_sel:[0,1] op_sel_hi:[1,1]',
                 f'v_pk_fma_f32 {v(A, 2)}, {v(A, 2)}, v[10:11], {v(CS + 2 * k, 2)} op_sel_hi:[1,0,1]']
        code += gelu_code(A, t, K, ONE, O + k)
    for t_ in sched(code): p(t_)
    frag_store80(p, O, H1F)
    p(f'''
    s_cmp_lg_u32 s25, 0
    s_cbranch_scc1 g1_nost
    s_lshl_b32 s29, s24, 7
    s_add_u32 s29, s29, {ST1}
    s_mov_b64 exec, 0xffff
    buffer_store_dwordx2 v[14:15], v4, s[4:7], s29 offen{SC}
    s_mov_b64 exec, -1
    g1_nost:
    ''')

def unpack(dst, src, sm):
    return [f'v_lshlrev_b32 v{dst}, 16, v{src}', f'v_and_b32 v{dst + 1}, s{sm}, v{src}']

def emit_g2(p, g):
    X = 80; H = 160; HP = 180
    p(f'''
    v_lshlrev_b32 v4, 3, v0
    v_and_b32 v9, 15, v0
    v_lshlrev_b32 v10, 3, v9
    s_lshl_b32 s29, s24, 7
    s_add_u32 s29, s29, {ST1}
    buffer_load_dwordx2 v[12:13], v10, s[4:7], s29 offen{SC}
    s_mul_i32 s30, s24, 20480
    s_mul_i32 s31, s25, 2560
    s_add_u32 s31, s31, s30
    s_add_u32 s30, s31, {HQ}
    s_add_u32 s31, s31, {HXQ}
    ''')
    for t in range(5):
        p(f'buffer_load_dwordx2 {v(HP + 2 * t, 2)}, v4, s[4:7], s30 offen offset:{512 * t}{SC}')
    p('''
    s_lshl_b32 s29, s24, 4
    v_add_u32 v9, s29, v9
    v_and_b32 v10, 48, v0
    v_lshlrev_b32 v10, 4, v10
    s_movk_i32 s32, 0x800
    v_bfrev_b32 v15, 1
    ''')
    for gi, d in enumerate((-1, 1, -2, 2)):
        r = 5 + gi
        p(f'''
        v_add_u32 v11, {d}, v9
        v_cmp_gt_u32 vcc, s32, v11
        v_lshrrev_b32 v14, 4, v11
        v_mul_u32_u24 v14, 20480, v14
        v_and_b32 v11, 15, v11
        v_lshl_add_u32 v14, v11, 4, v14
        v_add_u32 v14, v14, v10
        v_cndmask_b32 v{r}, v15, v14, vcc
        ''')
    p(f's_mov_b32 s30, {H1F}')
    for st in range(5):
        if st not in g.marks: gemm_w_dma(p, g, st)
        for k in range(4):
            s_ = 4 * st + k
            gi = st if st < 4 else k
            p(f'buffer_load_dwordx4 {v(X + 4 * s_, 4)}, v{5 + gi}, s[4:7], s30 offen offset:{1024 * k}{SC}')
        if st < 4: p('s_add_u32 s30, s30, 4096')
    p('s_mov_b32 s33, 0xffff0000')
    for k in range(10):
        for t_ in unpack(H + 2 * k, HP + k, 33): p(t_)
        p(f'v_pk_fma_f32 {v(g.ACC + 2 * k, 2)}, {v(H + 2 * k, 2)}, v[12:13], v[12:13] op_sel:[0,0,1] op_sel_hi:[1,0,1]')
    gemm_main(p, g, lambda s_, mt: v(X + 4 * s_, 4))
    O = 84; HO = 96
    code = ['v_mov_b32 v8, 0', 'v_mov_b32 v9, 0', 'v_mov_b32 v10, 0', 'v_mov_b32 v11, 0', 'v_mov_b32 v12, 0x3f803f80']
    for k in range(10):
        A = g.ACC + 2 * k
        code += [f'v_cvt_pk_bf16_f32 v{O + k}, v{A}, v{A + 1}',
                 f'v_pk_add_f32 {v(H + 2 * k, 2)}, {v(H + 2 * k, 2)}, {v(A, 2)}',
                 f'v_cvt_pk_bf16_f32 v{HO + k}, v{H + 2 * k}, v{H + 2 * k + 1}',
                 f'v_dot2c_f32_bf16 v{8 + 2 * (k & 1)}, v{O + k}, v12', f'v_dot2c_f32_bf16 v{9 + 2 * (k & 1)}, v{O + k}, v{O + k}']
    code += ['v_pk_add_f32 v[8:9], v[8:9], v[10:11]'] + qreduce(8, 10) + qreduce(9, 11)
    for t_ in sched(code): p(t_)
    frag_store80(p, O, X1F)
    p(f'''
    s_lshl_b32 s29, s24, 3
    s_add_u32 s29, s29, s25
    s_lshl_b32 s29, s29, 7
    s_add_u32 s29, s29, {PS2}
    s_mov_b64 exec, 0xffff
    buffer_store_dwordx2 v[8:9], v4, s[4:7], s29 offen{SC}
    s_mov_b64 exec, -1
    ''')
    for t in range(5):
        p(f'buffer_store_dwordx2 {v(HO + 2 * t, 2)}, v4, s[4:7], s31 offen offset:{512 * t}{SC}')

def emit_g3(p, g):
    CS = 112; PS = 136
    p(f'''
    v_and_b32 v6, 15, v0
    v_and_b32 v7, 48, v0
    v_lshlrev_b32 v7, 4, v7
    v_lshl_add_u32 v7, v6, 3, v7
    s_lshl_b32 s29, s24, 10
    s_add_u32 s29, s29, {PS2}
    ''')
    for mt in range(2):
        for i in range(2):
            p(f'buffer_load_dwordx2 {v(PS + 4 * mt + 2 * i, 2)}, v7, s[4:7], s29 offen offset:{1024 * mt + 128 * i}{SC}')
    cs_loads(p, g, CS, CS3, 29)
    p(f'''
    s_mul_i32 s30, s24, 20480
    s_add_u32 s30, s30, {X1F}
    s_add_u32 s31, s30, 20480
    ''')
    for st in range(5):
        if st not in g.marks: gemm_w_dma(p, g, st)
        for k in range(4):
            s_ = 4 * st + k
            for mt in range(2):
                p(f'buffer_load_dwordx4 {a(8 * s_ + 4 * mt, 4)}, v1, s[4:7], s{30 + mt} offen offset:{1024 * k}{SC}')
        if st < 4: p('s_add_u32 s30, s30, 4096\ns_add_u32 s31, s31, 4096')
    code = [f'v_mov_b32 v13, {f2u(1 / 640)}']
    for mt in range(2):
        r = PS + 4 * mt
        code += [f'v_pk_add_f32 {v(r, 2)}, {v(r, 2)}, {v(r + 2, 2)}'] + qreduce(r, r + 2) + qreduce(r + 1, r + 3) + [
            f'v_mul_f32 v{r}, v13, -v{r}', f'v_mul_f32 v{r + 2}, v{r}, v{r}', f'v_fma_f32 v{r + 1}, v{r + 1}, v13, -v{r + 2}',
            f'v_max_f32 v{r + 1}, 0, v{r + 1}', f'v_add_f32 v{r + 1}, {f2u(EPS)}, v{r + 1}', f'v_rsq_f32 v{r + 1}, v{r + 1}']
        for k in range(12):
            code.append(f'v_pk_mul_f32 {v(g.acc(mt, 0) + 2 * k, 2)}, {v(CS + 2 * k, 2)}, {v(r, 2)} op_sel_hi:[1,0]')
    for t_ in sched(code): p(t_)
    gemm_main(p, g, lambda s_, mt: a(8 * s_ + 4 * mt, 4))
    K, ONE, O, T = 8, 10, 64, 144
    code = [f'v_mov_b32 v{K}, {f2u(C0)}', f'v_mov_b32 v{K + 1}, {f2u(C1)}', f'v_mov_b32 v{ONE}, 1.0',
            f's_mul_i32 s30, s24, 49152', 's_mul_i32 s31, s25, 3072', 's_add_u32 s30, s30, s31', f's_add_u32 s30, s30, {H3F}',
            's_add_u32 s31, s30, 49152']
    for t_ in code: p(t_)
    for mt in range(2):
        code = []
        for k in range(12):
            A = g.acc(mt, 0) + 2 * k; t = T + 2 * k
            code.append(f'v_pk_mul_f32 {v(A, 2)}, {v(A, 2)}, {v(PS + 4 * mt, 2)} op_sel:[0,1] op_sel_hi:[1,1]')
            code += gelu_code(A, t, K, ONE, O + 12 * mt + k)
            if k % 4 == 3:
                code.append(f'buffer_store_dwordx4 {v(O + 12 * mt + k - 3, 4)}, v1, s[4:7], s{30 + mt} offen offset:{1024 * (k // 4)}{SC}')
        for t_ in sched(code): p(t_)

def emit_g4(p, g):
    HP = 80
    p(f'''
    v_lshlrev_b32 v4, 3, v0
    s_mul_i32 s30, s24, 20480
    s_mul_i32 s31, s25, 2560
    s_add_u32 s30, s30, s31
    s_add_u32 s30, s30, {HXQ}
    ''')
    for t in range(5):
        p(f'buffer_load_dwordx2 {v(HP + 2 * t, 2)}, v4, s[4:7], s30 offen offset:{512 * t}{SC}')
    p(f's_mul_i32 s30, s24, 49152\ns_add_u32 s30, s30, {H3F}')
    def stage(st):
        if st >= 12: return
        if st not in g.marks: gemm_w_dma(p, g, st)
        for k in range(4):
            p(f'buffer_load_dwordx4 {a(16 * st + 4 * k, 4)}, v1, s[4:7], s30 offen offset:{1024 * k}{SC}')
        p('s_add_u32 s30, s30, 4096')
    for st in range(g.slots): stage(st)
    srd(p, 8, 'out', 2048 * 1280)
    p('s_mov_b32 s33, 0xffff0000')
    for k in range(10):
        for t_ in unpack(g.ACC + 2 * k, HP + k, 33): p(t_)
    p('''
    v_and_b32 v5, 15, v0
    v_mul_u32_u24 v5, 1280, v5
    v_lshrrev_b32 v7, 4, v0
    v_lshl_add_u32 v6, v7, 3, v5
    v_and_b32 v8, 1, v7
    v_lshl_add_u32 v5, v8, 5, v5
    v_lshrrev_b32 v7, 1, v7
    v_lshl_add_u32 v5, v7, 4, v5
    s_mul_i32 s31, s24, 20480
    s_mul_i32 s32, s25, 160
    s_add_u32 s31, s31, s32
    ''')
    gemm_main(p, g, lambda s_, mt: a(4 * s_, 4), None, stage)
    O = 80
    for pr in range(2):
        o = O + 4 * pr
        for h_ in range(2):
            A = g.acc(0, 2 * pr + h_)
            p(f'v_cvt_pk_bf16_f32 v{o + 2 * h_}, v{A}, v{A + 1}\nv_cvt_pk_bf16_f32 v{o + 2 * h_ + 1}, v{A + 2}, v{A + 3}')
        p(f'v_permlane16_swap_b32 v{o}, v{o + 2}\nv_permlane16_swap_b32 v{o + 1}, v{o + 3}')
        p(f'buffer_store_dwordx4 {v(o, 4)}, v5, s[8:11], s31 offen offset:{64 * pr}')
    A = g.acc(0, 4)
    p(f'v_cvt_pk_bf16_f32 v{O + 8}, v{A}, v{A + 1}\nv_cvt_pk_bf16_f32 v{O + 9}, v{A + 2}, v{A + 3}')
    p(f'buffer_store_dwordx2 {v(O + 8, 2)}, v6, s[8:11], s31 offen offset:128')

def _kg(name, g, emit, lds):
    p = Prog()
    prologue(p, 256, name)
    gemm_ids(p, g); gemm_w_init(p, g)
    emit(p, g)
    p(f'{name}_end:\ns_endpgm')
    return (name + '_kernel', p, 256, 256, lds)
def k_g1(): return _kg('g1', G(5, 1, 20, W1F, 5), emit_g1, 102400)
def k_g2(): return _kg('g2', G(5, 1, 20, W2F, 5), emit_g2, 102400)
def k_g3(): return _kg('g3', G(6, 2, 20, W3F, 5), emit_g3, 122880)
def k_g4(): return _kg('g4', G(5, 1, 48, W4F, 7), emit_g4, 143360)
```

```python
UQ   = 0x0000000
XQ   = 0x0280000
HQ   = 0x0500000
H1F  = 0x0780000
X1F  = 0x0A00000
HXQ  = 0x0C80000
H3F  = 0x0F00000
W1F  = 0x1500000
W2F  = 0x1600000
W3F  = 0x1700000
W4F  = 0x1900000
CS1  = 0x1B00000
CS3  = 0x1B01000
ST1  = 0x1B04000
PS2  = 0x1B08000
FLG  = 0x1B40000
DBGW = 0x1C00000
ACT  = 128 * 20480

def kmap_std(s, q, e):
    return 32 * s + (4 * q + e if e < 4 else 16 + 4 * q + e - 4)

def kmap_sp(s, q, e):
    if s < 16:
        return 80 * (s >> 1) + 32 * (s & 1) + (4 * q + e if e < 4 else 16 + 4 * q + e - 4)
    p = s - 16
    return 80 * (2 * p + (q >> 1)) + 64 + 4 * (q & 1) + (e if e < 4 else 8 + e - 4)
```

```python
import sys
sys.path.insert(0, 'gen')
from kern import *
import kern
HDR = ''.join(l for l in open('sequential_preLN__ssm_conv_s4d__mixer_s_mlp__prompt.s.ref') if l.startswith(';') and '@launch' not in l and 'Override' not in l and 'grid=ceil' not in l)
def build_multi(path, names):
    ks = [getattr(kern, 'k_' + n)() for n in names]
    open(path, 'w').write(file_text(ks, HDR))
if __name__ == '__main__':
    build_multi(sys.argv[1], sys.argv[2].split(','))
```

```python
import struct, math
from asmlib import *
from layout import *

def f2u(x): return '0x%08x' % struct.unpack('<I', struct.pack('<f', x))[0]

SC = ''
PTR = dict(x=64, logA=66, Aim=68, Cr=70, Ci=72, logdt=74, D=76, Bx=78, w1=80, w2=82, w3=84, w4=86, out=88, dbg=90, ws=92)
EPS = 1e-5

def prologue(p, nwg, lab):
    p(f'''
    s_cmp_ge_u32 s2, {nwg}
    s_cbranch_scc1 {lab}_end
    s_load_dwordx16 s[64:79], s[0:1], 0
    s_load_dwordx8 s[80:87], s[0:1], 64
    s_load_dwordx4 s[88:91], s[0:1], 96
    s_load_dwordx2 s[92:93], s[0:1], 112
    v_lshrrev_b32 v1, 6, v0
    v_and_b32 v0, 63, v0
    v_readfirstlane_b32 s3, v1
    s_mov_b32 s6, 0x10000000
    s_mov_b32 s7, 0x20000
    s_mov_b32 s4, s92
    s_mov_b32 s5, s93
    ''')

def srd(p, d, name, nbytes):
    b = PTR[name]
    p(f'''
    s_mov_b32 s{d}, s{b}
    s_mov_b32 s{d+1}, s{b+1}
    s_mov_b32 s{d+2}, {nbytes}
    s_mov_b32 s{d+3}, 0x20000
    ''')

def row16_reduce(p, r):
    for k in (8, 4, 2, 1):
        p(f'v_add_f32_dpp v{r}, v{r}, v{r} row_ror:{k} row_mask:0xf bank_mask:0xf')

def emit_ln(p, stile, ntiles=1):
    srd(p, 8, 'x', 2048 * 1280)
    XS = [8, 100]; F = 32
    p(f'''
    v_lshrrev_b32 v1, 4, v0
    v_and_b32 v2, 15, v0
    v_mul_u32_u24 v3, 1280, v1
    v_lshl_add_u32 v3, v2, 4, v3
    s_lshl_b32 s24, s{stile}, 2
    s_add_u32 s24, s24, s3
    s_mul_i32 s24, s24, {4 * 1280}
    ''')
    for n in range(ntiles):
        if n: p('s_add_u32 s24, s24, 20480')
        for i in range(5):
            p(f'buffer_load_dwordx4 {v(XS[n] + 4 * i, 4)}, v3, s[8:11], s24 offen offset:{256 * i}')
    p(f'''
    s_lshl_b32 s25, s3, 2
    v_and_b32 v4, 7, v0
    v_lshl_add_u32 v4, v4, 1, v1
    v_add_u32 v4, s25, v4
    v_and_b32 v4, 15, v4
    v_lshlrev_b32 v4, 3, v4
    v_lshl_add_u32 v4, v2, 8, v4
    s_and_b32 s25, s3, 1
    s_lshl_b32 s25, s25, 2
    v_add_u32 v5, s25, v1
    v_add_u32 v5, v5, v0
    v_and_b32 v5, 7, v5
    v_lshlrev_b32 v5, 4, v5
    v_lshrrev_b32 v6, 3, v0
    v_lshl_add_u32 v5, v6, 7, v5
    s_lshl_b32 s25, s3, 10
    v_add_u32 v5, s25, v5
    v_lshlrev_b32 v6, 4, v0
    s_mul_i32 s26, s{stile}, 20480
    s_add_u32 s26, s26, s25
    s_add_u32 s27, s26, {XQ - UQ}
    s_mov_b32 s28, 0xffff0000
    ''')
    for n in range(ntiles):
        X = XS[n]
        if n: p('v_add_u32 v4, 40960, v4')
        for i in range(5):
            p(f'ds_write_b64 v4, {v(X + 4 * i, 2)} offset:{20480 + 4096 * i}')
            p(f'ds_write_b64 v4, {v(X + 4 * i + 2, 2)} offset:{20480 + 4096 * i + 128}')
            for d in range(4):
                k = 4 * i + d
                p(f'v_lshlrev_b32 v{F + 2 * k}, 16, v{X + k}')
                p(f'v_and_b32 v{F + 2 * k + 1}, s28, v{X + k}')
            if i == 0:
                p(f'v_pk_add_f32 v[72:73], {v(F, 2)}, {v(F + 2, 2)}')
                p(f'v_pk_add_f32 v[74:75], {v(F + 4, 2)}, {v(F + 6, 2)}')
            else:
                for d in range(4):
                    a_ = 72 + 2 * (d & 1)
                    p(f'v_pk_add_f32 {v(a_, 2)}, {v(a_, 2)}, {v(F + 8 * i + 2 * d, 2)}')
        p('v_pk_add_f32 v[72:73], v[72:73], v[74:75]')
        p('v_add_f32 v72, v72, v73')
        row16_reduce(p, 72)
        p(f'v_mul_f32 v72, {f2u(1 / 640)}, v72')
        for k in range(20):
            p(f'v_pk_add_f32 {v(F + 2 * k, 2)}, {v(F + 2 * k, 2)}, v[72:73] op_sel_hi:[1,0] neg_lo:[0,1] neg_hi:[0,1]')
        for k in range(20):
            a_ = 74 + 2 * (k & 1)
            if k < 2: p(f'v_pk_mul_f32 {v(a_, 2)}, {v(F + 2 * k, 2)}, {v(F + 2 * k, 2)}')
            else: p(f'v_pk_fma_f32 {v(a_, 2)}, {v(F + 2 * k, 2)}, {v(F + 2 * k, 2)}, {v(a_, 2)}')
        p('v_pk_add_f32 v[74:75], v[74:75], v[76:77]')
        p('v_add_f32 v74, v74, v75')
        row16_reduce(p, 74)
        p(f'''
        v_mov_b32 v75, {f2u(EPS)}
        v_fmac_f32 v75, {f2u(1 / 640)}, v74
        v_rsq_f32 v74, v75
        ''')
        for i in range(5):
            for d in range(4):
                k = 4 * i + d
                p(f'v_pk_mul_f32 {v(F + 2 * k, 2)}, {v(F + 2 * k, 2)}, v[74:75] op_sel_hi:[1,0]')
            for d in range(4):
                k = 4 * i + d
                p(f'v_cvt_pk_bf16_f32 v{X + k}, v{F + 2 * k}, v{F + 2 * k + 1}')
            p(f'ds_write_b64 v4, {v(X + 4 * i, 2)} offset:{4096 * i}')
            p(f'ds_write_b64 v4, {v(X + 4 * i + 2, 2)} offset:{4096 * i + 128}')
        p('s_waitcnt lgkmcnt(0)\ns_barrier')
        R = 128 + 40 * n
        if n: p('v_add_u32 v5, 40960, v5')
        for i in range(10):
            p(f'ds_read_b128 {v(R + 4 * i, 4)}, v5 offset:{4096 * i}')
        for i in range(10):
            so = 26 if i < 5 else 27
            p(f'buffer_store_dwordx4 {v(R + 4 * i, 4)}, v6, s[4:7], s{so} offen{SC}')
            p(f's_add_u32 s{so}, s{so}, 4096')

def emit_relayout(p, su, lab, lds0=0):
    p(f'''
    s_cmp_lt_u32 s{su}, 10
    s_cbranch_scc1 {lab}_w1
    s_cmp_lt_u32 s{su}, 20
    s_cbranch_scc1 {lab}_w2
    s_cmp_lt_u32 s{su}, 44
    s_cbranch_scc1 {lab}_w3
    ''')
    def params(name, rs, nrows, u0, dest, nt, ns, sp, cs):
        srd(p, 8, name, nrows * rs)
        if name == 'w4':
            p(f'''
            s_sub_u32 s24, s{su}, 44
            s_mul_i32 s35, s24, 205
            s_lshr_b32 s35, s35, 11
            s_mul_i32 s25, s35, 10
            s_sub_u32 s24, s24, s25
            s_lshl_b32 s35, s35, 4
            s_add_u32 s35, s35, s3
            s_lshl_b32 s25, s35, 5
            s_mov_b32 s38, 4
            ''')
        else:
            p(f's_sub_u32 s24, s{su}, {u0}\ns_mov_b32 s35, s3\ns_mov_b32 s38, 5')
            if sp:
                p('''
                s_lshr_b32 s25, s3, 1
                s_mul_i32 s25, s25, 80
                s_and_b32 s26, s3, 1
                s_lshl_b32 s26, s26, 5
                s_add_u32 s25, s25, s26
                ''')
            else:
                p('s_lshl_b32 s25, s3, 5')
        p(f's_mul_i32 s25, s25, {rs}')
        p(f's_mov_b32 s26, {(160 if sp else 128) * rs}')
        if sp:
            p(f's_mul_i32 s27, s3, {160 * rs}\ns_add_u32 s27, s27, {64 * rs}')
            o = (80, 8, 88)
        else:
            p(f's_add_u32 s27, s25, {512 * rs}')
            o = (8, 16, 24)
        p(f'''
        s_mov_b32 s28, {o[0] * rs}
        s_mov_b32 s29, {o[1] * rs}
        s_mov_b32 s30, {o[2] * rs}
        s_mov_b32 s31, {rs}
        s_mov_b32 s32, {dest}
        s_mov_b32 s33, {nt}
        s_mov_b32 s34, {ns * nt}
        s_mov_b32 s36, {cs}
        s_mov_b32 s37, {205 if nt == 5 else 171}
        ''')
    for g in range(40): assert (g * 205) >> 10 == g // 5
    for g in range(96): assert (g * 171) >> 10 == g // 6
    for g in range(30): assert (g * 205) >> 11 == g // 10
    params('w4', 1280, 1536, 44, W4F, 5, 48, False, 0); p(f's_branch {lab}_go')
    p(f'{lab}_w1:'); params('w1', 1280, 640, 0, W1F, 5, 20, False, CS1); p(f's_branch {lab}_go')
    p(f'{lab}_w2:'); params('w2', 1280, 640, 10, W2F, 5, 20, True, 0); p(f's_branch {lab}_go')
    p(f'{lab}_w3:'); params('w3', 3072, 640, 20, W3F, 6, 20, True, CS3)
    p(f'{lab}_go:')
    p(f'''
    v_lshrrev_b32 v1, 3, v0
    v_mul_lo_u32 v1, v1, s31
    v_lshrrev_b32 v2, 1, v0
    v_lshrrev_b32 v3, 4, v0
    v_xor_b32 v2, v2, v3
    v_and_b32 v2, 3, v2
    v_lshl_add_u32 v1, v2, 5, v1
    v_and_b32 v2, 1, v0
    v_lshl_add_u32 v1, v2, 4, v1
    s_lshl_b32 s39, s24, 7
    v_add_u32 v1, s39, v1
    s_mul_i32 s40, s3, 20480
    s_add_u32 s40, s40, {lds0}
    s_mov_b32 m0, s40
    s_lshl_b32 s41, s31, 3
    ''')
    for i in range(5):
        if i == 4:
            p(f's_cmp_eq_u32 s38, 4\ns_cbranch_scc1 {lab}_ld_done')
        for k in range(4):
            if i < 4:
                if k == 0: p('s_mov_b32 s42, s25')
                else: p('s_add_u32 s42, s42, s41')
            else:
                if k == 0: p('s_mov_b32 s42, s27')
                else: p(f's_add_u32 s42, s27, s{27 + k}')
            p('buffer_load_dwordx4 v1, s[8:11], s42 offen lds')
            p('s_add_u32 m0, m0, 1024')
        if i < 3: p('s_add_u32 s25, s25, s26')
    p(f'{lab}_ld_done:')
    p(f'''
    v_lshrrev_b32 v2, 2, v0
    v_lshrrev_b32 v3, 3, v0
    v_and_b32 v3, 3, v3
    v_and_b32 v9, 3, v0
    v_lshlrev_b32 v9, 3, v9
    v_lshl_add_u32 v9, v2, 7, v9
    v_add_u32 v9, s40, v9
    v_lshlrev_b32 v8, 4, v0
    v_mov_b32 v10, 0x3f803f80
    v_mov_b32 v11, 0x3f803f80
    v_mov_b32 v12, 0x3f803f80
    v_mov_b32 v13, 0x3f803f80
    s_mul_i32 s43, s35, s33
    ''')
    for t in range(4):
        p(f'''
        v_xor_b32 v{4 + t}, {t}, v3
        v_lshl_add_u32 v{4 + t}, v{4 + t}, 5, v9
        s_lshl_b32 s48, s24, 2
        s_add_u32 s48, s48, {t}
        s_mul_i32 s49, s48, s37
        s_lshr_b32 s49, s49, 10
        s_mul_i32 s50, s49, s33
        s_sub_u32 s48, s48, s50
        s_mul_i32 s49, s49, s34
        s_add_u32 s48, s48, s49
        s_add_u32 s48, s48, s43
        s_lshl_b32 s48, s48, 10
        s_add_u32 s{44 + t}, s48, s32
        ''')
        for r in range(4): p(f'v_mov_b32 v{16 + 4 * t + r}, 0')
    p('s_lshl_b32 s43, s33, 12')
    p('s_waitcnt vmcnt(0)')
    for i in range(5):
        if i == 4:
            p(f's_cmp_eq_u32 s38, 4\ns_cbranch_scc1 {lab}_st_done')
        R = 32 + 16 * (i & 1)
        for t in range(4):
            p(f'ds_read_b64_tr_b16 {v(R + 4 * t, 2)}, v{4 + t} offset:{4096 * i}')
            p(f'ds_read_b64_tr_b16 {v(R + 4 * t + 2, 2)}, v{4 + t} offset:{4096 * i + 2048}')
        for t in range(4):
            p(f'buffer_store_dwordx4 {v(R + 4 * t, 4)}, v8, s[4:7], s{44 + t} offen{SC}')
            p(f's_add_u32 s{44 + t}, s{44 + t}, s43')
            p(f'v_mfma_f32_16x16x32_bf16 {v(16 + 4 * t, 4)}, {v(R + 4 * t, 4)}, v[10:13], {v(16 + 4 * t, 4)}')
    p(f'{lab}_st_done:')
    CSL = lds0 + 81920
    p(f'''
    s_cmp_eq_u32 s36, 0
    s_cbranch_scc1 {lab}_done
    s_lshl_b32 s48, s3, 8
    s_add_u32 s48, s48, {CSL}
    v_and_b32 v2, 48, v0
    v_add_u32 v2, s48, v2
    s_mov_b32 s50, 0x00010001
    s_mov_b32 s51, 0x00010001
    s_mov_b64 exec, s[50:51]
    ''')
    for t in range(4): p(f'ds_write_b128 v2, {v(16 + 4 * t, 4)} offset:{64 * t}')
    p(f'''
    s_mov_b64 exec, -1
    s_waitcnt lgkmcnt(0)
    s_barrier
    s_cmp_lg_u32 s3, 0
    s_cbranch_scc1 {lab}_done
    v_lshlrev_b32 v2, 2, v0
    v_add_u32 v3, {CSL}, v2
    ds_read_b32 v4, v3
    ds_read_b32 v5, v3 offset:256
    ds_read_b32 v6, v3 offset:512
    ds_read_b32 v7, v3 offset:768
    s_lshl_b32 s48, s24, 8
    s_add_u32 s48, s48, s36
    v_add_f32 v4, v4, v5
    v_add_f32 v6, v6, v7
    v_add_f32 v4, v4, v6
    buffer_store_dword v4, v2, s[4:7], s48 offen{SC}
    {lab}_done:
    ''')

def k_pre():
    p = Prog()
    prologue(p, 202, 'pre')
    p('s_cmp_ge_u32 s2, 128\ns_cbranch_scc1 pre_rl')
    emit_ln(p, 2)
    p('s_endpgm\npre_rl:\ns_sub_u32 s20, s2, 128')
    emit_relayout(p, 20, 'rl')
    p('pre_end:\ns_endpgm')
    return ('pre_kernel', p, 202, 256, 82944)

LOG2E = 1.4426950408889634
HROW = {}
for hf, tab in enumerate(([0, 1, 2, 3, 4, 5, 6, 7, 1024, 1032, 1280, 1288, 512, 516, 520],
                          [256, 256, 258, 260, 260, 260, 262, 264, 1536, 1544, 1792, 1800, 768, 772, 776])):
    for q_, h_ in enumerate(tab):
        HROW.setdefault(h_, []).append(8 * (q_ >> 2) + 4 * hf + (q_ & 3))

def cmul(D, X, Y):
    return [f'v_pk_mul_f32 {v(D, 2)}, {v(X, 2)}, {v(Y, 2)} op_sel:[0,0] op_sel_hi:[0,1]',
            f'v_pk_fma_f32 {v(D, 2)}, {v(X, 2)}, {v(Y, 2)}, {v(D, 2)} op_sel:[1,1,0] op_sel_hi:[1,0,1] neg_lo:[1,0,0]']

def emit_kgen_loads(p, sq):
    for k, nm in enumerate(('logA', 'Aim', 'Cr', 'Ci')): srd(p, 8 + 4 * k, nm, 640 * 384)
    p(f'''
    s_lshl_b32 s24, s{sq}, 2
    s_add_u32 s24, s24, s3
    s_mul_i32 s25, s24, 384
    s_lshl_b32 s24, s24, 1
    v_lshlrev_b32 v1, 1, v0
    v_mov_b32 v2, 0
    ''')
    for k in range(14): p(f'v_mov_b32 v{8 + k}, 0')
    for st in range(3):
        for k in range(4):
            p(f'buffer_load_short_d16_hi v{8 + 4 * st + k}, v1, s[{8 + 4 * k}:{11 + 4 * k}], s25 offen offset:{128 * st}')
        if st == 0:
            srd(p, 28, 'logdt', 1280); srd(p, 32, 'D', 1280)
            p('buffer_load_short_d16_hi v20, v2, s[28:31], s24 offen')
            p('buffer_load_short_d16_hi v21, v2, s[32:35], s24 offen')

def emit_kgen(p, FB, RC):
    ACC = 24
    FR = 40
    Lr = 104
    T = 136
    p(f'''
    s_mul_i32 s26, s3, 17408
    s_add_u32 s26, s26, {FB}
    s_mov_b32 m0, s26
    v_and_b32 v3, 31, v0
    v_mul_u32_u24 v3, 272, v3
    v_lshrrev_b32 v4, 5, v0
    v_lshl_add_u32 v3, v4, 4, v3
    v_add_u32 v3, s26, v3
    v_mov_b32 v4, 0x3f80
    ds_write_addtid_b32 v4
    s_mul_i32 s27, s3, 4608
    s_add_u32 s27, s27, {RC}
    v_lshlrev_b32 v5, 3, v0
    v_add_u32 v5, s27, v5
    v_mov_b32 v6, 0
    v_mov_b32 v7, 0
    ds_write_b64 v5, v[6:7]
    s_mov_b32 s36, {f2u(LOG2E)}
    s_mov_b32 s37, {f2u(1 / (2 * math.pi))}
    s_mov_b32 s38, 0x41000000
    s_mov_b32 s39, 0x43800000
    ''')
    for k in range(16): p(f'v_mov_b32 v{ACC + k}, 0')
    p(f'''
    v_mul_f32 v20, s36, v20
    v_exp_f32 v20, v20
    v_cvt_pk_bf16_f32 v20, v20, v20
    v_lshlrev_b32 v20, 16, v20
    v_add_f32 v22, v20, v20
    v_cmp_eq_u32 vcc, 0, v0
    v_cndmask_b32 v21, 0, v21, vcc
    ''')
    code = []
    tp = [T]
    def new(n=2):
        r = tp[0]; tp[0] += n; return r
    cv = [0]
    CV = 240
    def put(val, rows, neg):
        r = CV + (cv[0] % 12); cv[0] += 1
        code.append(f'v_cvt_pk_bf16_f32 v{r}, v{val}, {"-" if neg else ""}v{val + 1}')
        for row in rows: code.append(f'ds_write_addtid_b32 v{r} offset:{272 * row}')
    for st in range(3):
        tp[0] = T
        la, ai, cr, ci = [8 + 4 * st + k for k in range(4)]
        E1, E256, G0 = new(), new(), new()
        E8 = Lr
        t = new(10)
        code += [f'v_mul_f32 v{la}, s36, v{la}', f'v_exp_f32 v{la}, v{la}', f'v_cvt_pk_bf16_f32 v{la}, v{la}, v{la}',
                 f'v_lshlrev_b32 v{la}, 16, v{la}', f'v_mul_f32 v{la}, v{la}, v20', f'v_mul_f32 v{la}, -v{la}, s36',
                 f'v_mul_f32 v{ai}, v{ai}, v20', f'v_mul_f32 v{ai}, s37, v{ai}',
                 f'v_mul_f32 v{G0}, v{cr}, v22', f'v_mul_f32 v{G0 + 1}, v{ci}, v22']
        for k, (E, sc) in enumerate(((E8, 's38'), (E1, None), (E256, 's39'))):
            m_, a_ = t + 3 * k, t + 3 * k + 1
            if sc:
                code += [f'v_mul_f32 v{m_}, {sc}, v{la}', f'v_mul_f32 v{a_}, {sc}, v{ai}', f'v_exp_f32 v{m_}, v{m_}', f'v_fract_f32 v{a_}, v{a_}']
            else:
                code += [f'v_exp_f32 v{m_}, v{la}', f'v_fract_f32 v{a_}, v{ai}']
            code += [f'v_cos_f32 v{E}, v{a_}', f'v_sin_f32 v{E + 1}, v{a_}',
                     f'v_mul_f32 v{E}, v{E}, v{m_}', f'v_mul_f32 v{E + 1}, v{E + 1}, v{m_}']
        Lx = lambda j: Lr + 2 * (j - 1)
        put(E8, [1], False)
        put(G0, [32 + r for r in HROW[0]], True)
        tmp = [new() for _ in range(6)]; ti = [0]
        def nt():
            r = tmp[ti[0] % len(tmp)]; ti[0] += 1; return r
        E2, E4 = new(), new()
        G = {0: G0}
        hi = []
        hi.append((E2, E1, E1, None)); hi.append((E4, E2, E2, None))
        for h_, a_, b_ in ((1, 0, E1), (2, 0, E2), (3, 1, E2), (4, 0, E4), (5, 1, E4), (6, 2, E4), (7, 3, E4), (8, 0, E8),
                           (256, 0, E256), (264, 8, E256), (258, 2, E256), (260, 4, E256), (262, 6, E256),
                           (512, 256, E256), (520, 264, E256), (516, 260, E256), (768, 512, E256), (776, 520, E256), (772, 516, E256),
                           (1024, 768, E256), (1032, 776, E256), (1280, 1024, E256), (1288, 1032, E256),
                           (1536, 1280, E256), (1544, 1288, E256), (1792, 1536, E256), (1800, 1544, E256)):
            G[h_] = new()
            hi.append((G[h_], G[a_], b_, h_))
        lo = []
        for j in range(2, 32):
            pw = 1 << (j.bit_length() - 1)
            a_, b_ = (pw // 2, pw // 2) if j == pw else (j - pw, pw)
            lo.append((Lx(j) if j <= 16 else nt(), Lx(a_), Lx(b_), j))
        for k in range(max(len(lo), len(hi))):
            if k < len(lo):
                D_, X_, Y_, j = lo[k]; code += cmul(D_, X_, Y_); put(D_, [j], False)
            if k < len(hi):
                D_, X_, Y_, h_ = hi[k]; code += cmul(D_, X_, Y_)
                if h_ in HROW: put(D_, [32 + r for r in HROW[h_]], True)
        assert tp[0] <= CV, tp[0]
        for m in range(8):
            code.append(f'ds_read_b128 {v(FR + 4 * m, 4)}, v3 offset:{32 * 272 + 32 * m}')
            code.append(f'ds_read_b128 {v(FR + 32 + 4 * m, 4)}, v3 offset:{32 * m}')
        for m in range(8):
            code.append(f'v_mfma_f32_32x32x16_bf16 {v(ACC, 16)}, {v(FR + 4 * m, 4)}, {v(FR + 32 + 4 * m, 4)}, {v(ACC, 16)}')
    for t_ in sched(code): p(t_)
    q = lambda i: f'v{ACC + i}'
    O = FR
    p(f'''
    v_lshlrev_b32 v5, 4, v0
    v_add_u32 v5, s27, v5
    v_lshrrev_b32 v6, 5, v0
    v_lshl_add_u32 v6, v6, 9, v5
    s_mov_b32 s40, 0xaaaaaaaa
    s_mov_b32 s41, 0xaaaaaaaa
    v_add_f32 {q(0)}, {q(0)}, v21
    v_cvt_pk_bf16_f32 v{O}, {q(7)}, {q(6)}
    v_cvt_pk_bf16_f32 v{O + 1}, {q(5)}, {q(4)}
    v_cvt_pk_bf16_f32 v{O + 2}, {q(3)}, {q(2)}
    v_cvt_pk_bf16_f32 v{O + 3}, {q(1)}, {q(0)}
    ds_write_b128 v5, {v(O, 4)} offset:512
    v_cvt_pk_bf16_f32 v{O + 4}, {q(14)}, {q(14)}
    v_cvt_pk_bf16_f32 v{O + 5}, {q(13)}, {q(13)}
    v_cvt_pk_bf16_f32 v{O + 6}, {q(13)}, {q(12)}
    v_cvt_pk_bf16_f32 v{O + 7}, {q(12)}, {q(12)}
    ds_write_b128 v5, {v(O + 4, 4)} offset:{96 * 16}
    ''')
    for k in range(2):
        a_, b_ = q(8 + 2 * k), q(9 + 2 * k); o = O + 8 + 4 * k
        p(f'''
        v_cndmask_b32 v7, {a_}, {b_}, s[40:41]
        v_cvt_pk_bf16_f32 v{o}, {b_}, {b_}
        v_cvt_pk_bf16_f32 v{o + 1}, {b_}, v7
        v_cvt_pk_bf16_f32 v{o + 2}, {a_}, {a_}
        v_mov_b32 v{o + 3}, v{o + 2}
        ds_write_b128 v6, {v(o, 4)} offset:{160 * 16 + 512 * k}
        ''')

def emit_u_dma(p, sq, RAW):
    p(f'''
    v_lshrrev_b32 v23, 3, v0
    v_mul_u32_u24 v23, 20480, v23
    v_and_b32 v7, 7, v0
    v_lshl_add_u32 v23, v7, 4, v23
    s_mul_i32 s42, s3, {32 * 20480}
    s_lshl_b32 s43, s{sq}, 7
    s_add_u32 s42, s42, s43
    s_lshl_b32 s43, s3, 12
    s_add_u32 s43, s43, {RAW + 128}
    s_mov_b32 m0, s43
    ''')
    for i in range(4):
        if i: p(f's_add_u32 m0, m0, 1024\ns_add_u32 s42, s42, {8 * 20480}')
        elif UQ: p(f's_add_u32 s42, s42, {UQ}')
        p(f'buffer_load_dwordx4 v23, s[4:7], s42 offen{SC} lds')

XP = 200
def emit_x_prefetch(p, sq):
    p(f'''
    v_lshrrev_b32 v2, 4, v0
    v_mul_u32_u24 v2, 20480, v2
    v_and_b32 v7, 15, v0
    v_lshl_add_u32 v2, v7, 3, v2
    s_mul_i32 s44, s3, {32 * 20480}
    s_lshl_b32 s45, s{sq}, 7
    s_add_u32 s44, s44, s45
    s_add_u32 s45, s44, {XQ}
    s_add_u32 s44, s44, {HQ}
    ''')
    for k in range(8):
        p(f'buffer_load_dwordx2 {v(XP + 2 * k, 2)}, v2, s[4:7], s45 offen{SC}')
        if k < 7: p(f's_add_u32 s45, s45, {4 * 20480}')

def emit_raw_zero(p, RAW):
    p(f'''
    v_and_b32 v6, 15, v0
    v_lshlrev_b32 v6, 3, v6
    v_add_u32 v5, {RAW}, v6
    v_mov_b32 v6, 0
    v_mov_b32 v7, 0
    ds_write_b64 v5, v[6:7]
    ''')

CHS = 8352
def emit_build_uc(p, RAW, UC):
    p(f'''
    v_lshrrev_b32 v8, 4, v0
    v_bfe_u32 v9, v0, 2, 2
    v_and_b32 v10, 3, v0
    v_lshlrev_b32 v11, 5, v10
    v_lshl_add_u32 v11, v9, 3, v11
    v_mul_u32_u24 v12, {CHS}, v10
    v_lshl_add_u32 v12, v9, 3, v12
    v_and_b32 v13, 1, v8
    v_lshl_add_u32 v14, v13, 3, v11
    v_add_u32 v14, {RAW}, v14
    v_mul_u32_u24 v13, 4160, v13
    v_add_u32 v15, v13, v12
    v_add_u32 v15, {UC}, v15
    s_lshl_b32 s46, s3, 12
    s_add_u32 s46, s46, {RAW + 128}
    v_lshl_add_u32 v11, v8, 7, v11
    v_add_u32 v11, s46, v11
    s_lshl_b32 s46, s3, 10
    s_add_u32 s46, s46, {UC + 32}
    v_lshl_add_u32 v12, v8, 5, v12
    v_add_u32 v12, s46, v12
    ds_read_b64_tr_b16 v[16:17], v14
    ''')
    R = 24
    for mm in range(8):
        p(f'ds_read_b64_tr_b16 {v(R + 4 * mm, 2)}, v11 offset:{512 * mm}')
        p(f'ds_read_b64_tr_b16 {v(R + 4 * mm + 2, 2)}, v11 offset:{512 * mm + 8}')
    p('ds_write_b64 v15, v[16:17]')
    for mm in range(8):
        p(f'ds_write_b64 v12, {v(R + 4 * mm, 2)} offset:{128 * mm}')
        p(f'ds_write_b64 v12, {v(R + 4 * mm + 2, 2)} offset:{128 * mm + 4160}')

def emit_conv(p, UC, RC):
    ACC = 24; KF = [56, 88]; UF = [120, 152]
    p(f'''
    v_and_b32 v8, 15, v0
    v_lshrrev_b32 v9, 4, v0
    v_and_b32 v10, 1, v0
    v_mul_u32_u24 v10, 4158, v10
    v_lshlrev_b32 v11, 1, v8
    v_sub_u32 v11, v11, v10
    v_lshl_add_u32 v11, v9, 4, v11
    s_mul_i32 s46, s3, {CHS}
    s_add_u32 s47, s46, {UC + 4160}
    v_add_u32 v11, s47, v11
    v_add_u32 v12, 1024, v11
    v_add_u32 v13, 2048, v11
    v_add_u32 v14, 3072, v11
    v_lshlrev_b32 v15, 5, v8
    v_lshlrev_b32 v16, 4, v9
    v_sub_u32 v15, v15, v16
    s_mul_i32 s47, s3, 4608
    s_add_u32 s47, s47, {RC + 16 + 512 - 448}
    v_add_u32 v15, s47, v15
    ''')
    def loads(j0):
        b = j0 & 1; out = []
        kf = lambda d: f'ds_read_b128 {v(KF[b] + 4 * d, 4)}, v15 offset:{512 * d - 64 * j0 + 448}'
        out.append(kf(0))
        for jp in range(8):
            o = 128 * (jp & 1) + 16 * j0
            out.append(f'ds_read2_b32 {v(UF[b] + 4 * jp, 2)}, v{11 + (jp >> 1)} offset0:{o} offset1:{o + 1}')
            out.append(f'ds_read2_b32 {v(UF[b] + 4 * jp + 2, 2)}, v{11 + (jp >> 1)} offset0:{o + 2} offset1:{o + 3}')
        out += [kf(d) for d in range(1, 8)]
        return out
    for t_ in loads(0): p(t_)
    p(f'''
    v_mul_u32_u24 v16, 144, v9
    v_lshl_add_u32 v16, v8, 3, v16
    s_add_u32 s47, s46, {UC}
    v_add_u32 v16, s47, v16
    v_bfe_u32 v17, v0, 2, 2
    v_mul_u32_u24 v17, {CHS}, v17
    v_and_b32 v18, 3, v0
    v_mul_u32_u24 v18, 144, v18
    v_add_u32 v17, v17, v18
    v_lshl_add_u32 v17, v9, 3, v17
    s_mul_i32 s47, s3, {2 * 576}
    s_add_u32 s47, s47, {UC}
    v_add_u32 v17, s47, v17
    s_mov_b32 s48, 0xffff0000
    ''')
    order = []
    for d in range(8):
        Is = list(range(d, 8))
        if d == 5: Is = [7, 5, 6]
        if d == 6: Is = [7, 6]
        order += [(I, d) for I in Is]
    for j0 in range(8):
        b = j0 & 1
        nx = loads(j0 + 1) if j0 < 7 else []
        for k, (I, d) in enumerate(order):
            c = v(ACC + 4 * I, 4)
            src = '0' if (j0 == 0 and d == 0) else c
            p(f'v_mfma_f32_16x16x32_bf16 {c}, {v(UF[b] + 4 * (I - d), 4)}, {v(KF[b] + 4 * d, 4)}, {src}')
            if k >= 1 and k - 1 < len(nx): p(nx[k - 1])
    for I in range(8):
        o = 56 + 2 * I
        p(f'v_cvt_pk_bf16_f32 v{o}, v{ACC + 4 * I}, v{ACC + 4 * I + 1}')
        p(f'v_cvt_pk_bf16_f32 v{o + 1}, v{ACC + 4 * I + 2}, v{ACC + 4 * I + 3}')
        p(f'ds_write_b64 v16, {v(o, 2)} offset:{576 * I}')
    p('s_waitcnt lgkmcnt(0)\ns_barrier')
    Y = 72
    for k in range(8):
        p(f'ds_read_b64_tr_b16 {v(Y + 2 * k, 2)}, v17 offset:{576 * (k >> 2) + 32 * (k & 3)}')
    for k in range(8):
        t = 96 + 8 * (k & 1)
        for h_ in range(2):
            y_, x_ = Y + 2 * k + h_, XP + 2 * k + h_
            p(f'''
            v_lshlrev_b32 v{t + 4 * h_}, 16, v{y_}
            v_and_b32 v{t + 4 * h_ + 1}, s48, v{y_}
            v_lshlrev_b32 v{t + 4 * h_ + 2}, 16, v{x_}
            v_and_b32 v{t + 4 * h_ + 3}, s48, v{x_}
            v_pk_add_f32 {v(t + 4 * h_, 2)}, {v(t + 4 * h_, 2)}, {v(t + 4 * h_ + 2, 2)}
            v_cvt_pk_bf16_f32 v{y_}, v{t + 4 * h_}, v{t + 4 * h_ + 1}
            ''')
        p(f'buffer_store_dwordx2 {v(Y + 2 * k, 2)}, v2, s[4:7], s44 offen{SC}')
        if k < 7: p(f's_add_u32 s44, s44, {4 * 20480}')

def k_conv(dump=False):
    p = Prog()
    FB, RC, RAW, UC = 0, 69632, 88064, 16640
    prologue(p, 160, 'cv')
    emit_kgen_loads(p, 2)
    emit_u_dma(p, 2, RAW)
    m = p.mark()
    emit_raw_zero(p, RAW)
    emit_kgen(p, FB, RC)
    emit_x_prefetch(p, 2)
    if dump:
        p(f'''
        s_lshl_b32 s50, s2, 2
        s_add_u32 s50, s50, s3
        s_mul_i32 s50, s50, 4608
        s_add_u32 s50, s50, {DBGW}
        v_lshlrev_b32 v8, 3, v0
        v_add_u32 v9, s27, v8
        ''')
        for k in range(9):
            p(f'ds_read_b64 v[10:11], v9 offset:{512 * k}')
            p(f'buffer_store_dwordx2 v[10:11], v8, s[4:7], s50 offen')
            p('s_add_u32 s50, s50, 512')
    p.wait_vm(m, 0); p('s_barrier')
    emit_build_uc(p, RAW, UC)
    p('s_waitcnt lgkmcnt(0)\ns_barrier')
    emit_conv(p, UC, RC)
    p('cv_end:\ns_endpgm')
    return ('conv_kernel', p, 160, 256, RAW + 16640)
def k_convd(): return k_conv(True)

C0 = -2 * 0.7978845608028654 * LOG2E
C1 = C0 * 0.044715

class G:
    def __init__(self, NT, MT, NS, WF, slots, WL=0):
        self.NT, self.MT, self.NS, self.WF, self.slots, self.WL = NT, MT, NS, WF, slots, WL
        self.ACC = 16
        self.AB = [16 + 4 * NT * MT, 16 + 4 * NT * MT + 4 * NT]
        self.free = self.AB[1] + 4 * NT
        self.marks = {}
    def acc(self, mt, t): return self.ACC + 4 * (mt * self.NT + t)

def gemm_ids(p, g):
    if g.MT == 1:
        p('''
        s_lshr_b32 s28, s2, 3
        s_and_b32 s25, s28, 7
        s_lshr_b32 s28, s28, 3
        s_lshl_b32 s28, s28, 2
        s_and_b32 s24, s2, 7
        s_lshl_b32 s24, s24, 4
        s_add_u32 s24, s24, s28
        s_add_u32 s24, s24, s3
        ''')
    else:
        p('''
        s_lshr_b32 s28, s2, 3
        s_and_b32 s25, s28, 15
        s_lshr_b32 s28, s28, 4
        s_lshl_b32 s28, s28, 2
        s_add_u32 s28, s28, s3
        s_lshl_b32 s28, s28, 1
        s_and_b32 s24, s2, 7
        s_lshl_b32 s24, s24, 4
        s_add_u32 s24, s24, s28
        ''')

def gemm_w_init(p, g):
    p(f'''
    v_lshlrev_b32 v1, 4, v0
    s_mul_i32 s26, s25, {g.NS}
    s_add_u32 s26, s26, s3
    s_mul_i32 s26, s26, {g.NT * 1024}
    s_add_u32 s26, s26, {g.WF}
    s_mul_i32 s27, s3, {g.NT * 1024}
    ''')

def gemm_w_dma(p, g, st):
    slot = st % g.slots
    p(f's_add_u32 m0, s27, {g.WL + slot * 4 * g.NT * 1024}')
    for t in range(g.NT):
        if t == 4: p('s_add_u32 m0, m0, 4096\ns_add_u32 s26, s26, 4096')
        p(f'buffer_load_dwordx4 v1, s[4:7], s26 offen offset:{1024 * (t & 3)}{SC} lds')
    p(f's_add_u32 s26, s26, {4 * g.NT * 1024 - 4096}')
    g.marks[st] = p.mark()

def gemm_main(p, g, xreg, side=None, refill=None):
    NT, MT = g.NT, g.MT
    p(f'v_add_u32 v2, {g.WL}, v1\nv_add_u32 v3, {g.WL + 65536}, v1')
    if g.slots * 4 * NT * 1024 > 131072: p(f'v_add_u32 v15, {g.WL + 131072}, v1')
    def areads(s_):
        o = (((s_ >> 2) % g.slots) * 4 + (s_ & 3)) * NT * 1024
        out = []
        for t in range(NT):
            oo = o + 1024 * t
            out.append(f'ds_read_b128 {v(g.AB[s_ & 1] + 4 * t, 4)}, v{(2, 3, 15)[oo >> 16]} offset:{oo & 65535}')
        return out
    def sync(st):
        p.wait_vm(g.marks[st], 0 if (refill and st) else None); p('s_barrier')
        if refill and st: refill(st - 1 + g.slots)
    sync(0)
    for t_ in areads(0): p(t_)
    for s_ in range(g.NS):
        nx = []
        if s_ + 1 < g.NS:
            if (s_ + 1) % 4 == 0: sync((s_ + 1) // 4)
            nx = areads(s_ + 1)
        sd = side(s_) if side else []
        mf = [f'v_mfma_f32_16x16x32_bf16 {v(g.acc(mt, t), 4)}, {v(g.AB[s_ & 1] + 4 * t, 4)}, {xreg(s_, mt)}, {v(g.acc(mt, t), 4)}'
              for t in range(NT) for mt in range(MT)]
        for t_ in nx: p(t_)
        k = 0
        for i, m_ in enumerate(mf):
            p(m_)
            n = (len(sd) * (i + 1)) // len(mf)
            for t_ in sd[k:n]: p(t_)
            k = n

def qreduce(r, t):
    return [f'v_mov_b32 v{t}, v{r}', f'v_permlane16_swap_b32 v{r}, v{t}', f'v_add_f32 v{r}, v{r}, v{t}',
            f'v_mov_b32 v{t}, v{r}', f'v_permlane32_swap_b32 v{r}, v{t}', f'v_add_f32 v{r}, v{r}, v{t}']

def gelu_code(A, t, K, ONE, out):
    return [f'v_pk_mul_f32 {v(t, 2)}, {v(A, 2)}, {v(A, 2)}',
            f'v_pk_fma_f32 {v(t, 2)}, {v(t, 2)}, {v(K, 2)}, {v(K, 2)} op_sel:[0,1,0] op_sel_hi:[1,1,0]',
            f'v_pk_mul_f32 {v(t, 2)}, {v(t, 2)}, {v(A, 2)}',
            f'v_exp_f32 v{t}, v{t}', f'v_exp_f32 v{t + 1}, v{t + 1}',
            f'v_pk_add_f32 {v(t, 2)}, {v(t, 2)}, {v(ONE, 2)} op_sel_hi:[1,0]',
            f'v_rcp_f32 v{t}, v{t}', f'v_rcp_f32 v{t + 1}, v{t + 1}',
            f'v_pk_mul_f32 {v(A, 2)}, {v(A, 2)}, {v(t, 2)}',
            f'v_cvt_pk_bf16_f32 v{out}, v{A}, v{A + 1}']

def frag_store80(p, O, base):
    p(f'''
    s_mul_i32 s28, s24, 20480
    s_add_u32 s28, s28, {base}
    s_lshl_b32 s29, s25, 11
    s_add_u32 s29, s29, s28
    buffer_store_dwordx4 {v(O, 4)}, v1, s[4:7], s29 offen{SC}
    buffer_store_dwordx4 {v(O + 4, 4)}, v1, s[4:7], s29 offen offset:1024{SC}
    v_permlane32_swap_b32 v{O + 8}, v{O + 10}
    v_permlane32_swap_b32 v{O + 9}, v{O + 11}
    s_lshl_b32 s29, s25, 9
    s_add_u32 s29, s29, s28
    s_add_u32 s29, s29, 16384
    s_mov_b32 exec_hi, 0
    buffer_store_dwordx4 {v(O + 8, 4)}, v1, s[4:7], s29 offen{SC}
    s_mov_b32 exec_hi, -1
    ''')

def cs_loads(p, g, R, base, sreg):
    p(f'''
    v_and_b32 v5, 48, v0
    s_mul_i32 s{sreg}, s25, {g.NT * 64}
    s_add_u32 s{sreg}, s{sreg}, {base}
    ''')
    for t in range(g.NT):
        p(f'buffer_load_dwordx4 {v(R + 4 * t, 4)}, v5, s[4:7], s{sreg} offen offset:{64 * t}{SC}')

def emit_g1(p, g):
    X = 80; CS = 160
    cs_loads(p, g, CS, CS1, 29)
    p(f'''
    v_lshlrev_b32 v4, 3, v0
    s_mul_i32 s30, s24, 20480
    s_add_u32 s30, s30, {HQ}
    ''')
    for st in range(5):
        if st not in g.marks: gemm_w_dma(p, g, st)
        for k in range(4):
            s_ = 4 * st + k
            p(f'buffer_load_dwordx2 {v(X + 4 * s_, 2)}, v4, s[4:7], s30 offen offset:{1024 * k}{SC}')
            p(f'buffer_load_dwordx2 {v(X + 4 * s_ + 2, 2)}, v4, s[4:7], s30 offen offset:{1024 * k + 512}{SC}')
        if st < 4: p('s_add_u32 s30, s30, 4096')
    for k in range(20): p(f'v_mov_b32 v{g.ACC + k}, 0')
    p('v_mov_b32 v8, 0\nv_mov_b32 v9, 0\nv_mov_b32 v10, 0\nv_mov_b32 v11, 0\nv_mov_b32 v12, 0x3f803f80')
    def side(s_):
        out = []
        for d in range(4):
            out.append(f'v_dot2c_f32_bf16 v{8 + (d & 1)}, v{X + 4 * s_ + d}, v12')
            out.append(f'v_dot2c_f32_bf16 v{10 + (d & 1)}, v{X + 4 * s_ + d}, v{X + 4 * s_ + d}')
        return out
    gemm_main(p, g, lambda s_, mt: v(X + 4 * s_, 4), side)
    K, ONE, O, T = 80, 82, 84, 96
    code = [f'v_mov_b32 v{K}, {f2u(C0)}', f'v_mov_b32 v{K + 1}, {f2u(C1)}', f'v_mov_b32 v{ONE}, 1.0',
            'v_add_f32 v8, v8, v9', 'v_add_f32 v10, v10, v11'] + qreduce(8, 9) + qreduce(10, 11) + [
        f'v_mul_f32 v8, {f2u(1 / 640)}, v8', 'v_mul_f32 v9, v8, v8', f'v_mov_b32 v13, {f2u(1 / 640)}',
        'v_fma_f32 v10, v10, v13, -v9', 'v_max_f32 v10, 0, v10', f'v_add_f32 v11, {f2u(EPS)}, v10', 'v_rsq_f32 v14, v11',
        'v_mul_f32 v11, v14, v14', f'v_mov_b32 v13, {f2u(EPS)}', 'v_fma_f32 v11, v11, v10, v13', 'v_rsq_f32 v11, v11',
        'v_mul_f32 v15, -v8, v14', 'v_mul_f32 v10, v14, v11', 'v_mul_f32 v11, v15, v11']
    for k in range(10):
        A = g.ACC + 2 * k; t = T + 2 * k
        code += [f'v_pk_mul_f32 {v(CS + 2 * k, 2)}, {v(CS + 2 * k, 2)}, v[10:11] op_sel:[0,1] op_sel_hi:[1,1]',
                 f'v_pk_fma_f32 {v(A, 2)}, {v(A, 2)}, v[10:11], {v(CS + 2 * k, 2)} op_sel_hi:[1,0,1]']
        code += gelu_code(A, t, K, ONE, O + k)
    for t_ in sched(code): p(t_)
    frag_store80(p, O, H1F)
    p(f'''
    s_cmp_lg_u32 s25, 0
    s_cbranch_scc1 g1_nost
    s_lshl_b32 s29, s24, 7
    s_add_u32 s29, s29, {ST1}
    s_mov_b64 exec, 0xffff
    buffer_store_dwordx2 v[14:15], v4, s[4:7], s29 offen{SC}
    s_mov_b64 exec, -1
    g1_nost:
    ''')

def unpack(dst, src, sm):
    return [f'v_lshlrev_b32 v{dst}, 16, v{src}', f'v_and_b32 v{dst + 1}, s{sm}, v{src}']

def emit_g2(p, g):
    X = 80; H = 160; HP = 180
    p(f'''
    v_lshlrev_b32 v4, 3, v0
    v_and_b32 v9, 15, v0
    v_lshlrev_b32 v10, 3, v9
    s_lshl_b32 s29, s24, 7
    s_add_u32 s29, s29, {ST1}
    buffer_load_dwordx2 v[12:13], v10, s[4:7], s29 offen{SC}
    s_mul_i32 s30, s24, 20480
    s_mul_i32 s31, s25, 2560
    s_add_u32 s31, s31, s30
    s_add_u32 s30, s31, {HQ}
    s_add_u32 s31, s31, {HXQ}
    ''')
    for t in range(5):
        p(f'buffer_load_dwordx2 {v(HP + 2 * t, 2)}, v4, s[4:7], s30 offen offset:{512 * t}{SC}')
    p('''
    s_lshl_b32 s29, s24, 4
    v_add_u32 v9, s29, v9
    v_and_b32 v10, 48, v0
    v_lshlrev_b32 v10, 4, v10
    s_movk_i32 s32, 0x800
    v_bfrev_b32 v15, 1
    ''')
    for gi, d in enumerate((-1, 1, -2, 2)):
        r = 5 + gi
        p(f'''
        v_add_u32 v11, {d}, v9
        v_cmp_gt_u32 vcc, s32, v11
        v_lshrrev_b32 v14, 4, v11
        v_mul_u32_u24 v14, 20480, v14
        v_and_b32 v11, 15, v11
        v_lshl_add_u32 v14, v11, 4, v14
        v_add_u32 v14, v14, v10
        v_cndmask_b32 v{r}, v15, v14, vcc
        ''')
    p(f's_mov_b32 s30, {H1F}')
    for st in range(5):
        if st not in g.marks: gemm_w_dma(p, g, st)
        for k in range(4):
            s_ = 4 * st + k
            gi = st if st < 4 else k
            p(f'buffer_load_dwordx4 {v(X + 4 * s_, 4)}, v{5 + gi}, s[4:7], s30 offen offset:{1024 * k}{SC}')
        if st < 4: p('s_add_u32 s30, s30, 4096')
    p('s_mov_b32 s33, 0xffff0000')
    for k in range(10):
        for t_ in unpack(H + 2 * k, HP + k, 33): p(t_)
        p(f'v_pk_fma_f32 {v(g.ACC + 2 * k, 2)}, {v(H + 2 * k, 2)}, v[12:13], v[12:13] op_sel:[0,0,1] op_sel_hi:[1,0,1]')
    gemm_main(p, g, lambda s_, mt: v(X + 4 * s_, 4))
    O = 84; HO = 96
    code = ['v_mov_b32 v8, 0', 'v_mov_b32 v9, 0', 'v_mov_b32 v10, 0', 'v_mov_b32 v11, 0', 'v_mov_b32 v12, 0x3f803f80']
    for k in range(10):
        A = g.ACC + 2 * k
        code += [f'v_cvt_pk_bf16_f32 v{O + k}, v{A}, v{A + 1}',
                 f'v_pk_add_f32 {v(H + 2 * k, 2)}, {v(H + 2 * k, 2)}, {v(A, 2)}',
                 f'v_cvt_pk_bf16_f32 v{HO + k}, v{H + 2 * k}, v{H + 2 * k + 1}',
                 f'v_dot2c_f32_bf16 v{8 + 2 * (k & 1)}, v{O + k}, v12', f'v_dot2c_f32_bf16 v{9 + 2 * (k & 1)}, v{O + k}, v{O + k}']
    code += ['v_pk_add_f32 v[8:9], v[8:9], v[10:11]'] + qreduce(8, 10) + qreduce(9, 11)
    for t_ in sched(code): p(t_)
    frag_store80(p, O, X1F)
    p(f'''
    s_lshl_b32 s29, s24, 3
    s_add_u32 s29, s29, s25
    s_lshl_b32 s29, s29, 7
    s_add_u32 s29, s29, {PS2}
    s_mov_b64 exec, 0xffff
    buffer_store_dwordx2 v[8:9], v4, s[4:7], s29 offen{SC}
    s_mov_b64 exec, -1
    ''')
    for t in range(5):
        p(f'buffer_store_dwordx2 {v(HO + 2 * t, 2)}, v4, s[4:7], s31 offen offset:{512 * t}{SC}')

def emit_g3(p, g):
    CS = 112; PS = 136
    p(f'''
    v_and_b32 v6, 15, v0
    v_and_b32 v7, 48, v0
    v_lshlrev_b32 v7, 4, v7
    v_lshl_add_u32 v7, v6, 3, v7
    s_lshl_b32 s29, s24, 10
    s_add_u32 s29, s29, {PS2}
    ''')
    for mt in range(2):
        for i in range(2):
            p(f'buffer_load_dwordx2 {v(PS + 4 * mt + 2 * i, 2)}, v7, s[4:7], s29 offen offset:{1024 * mt + 128 * i}{SC}')
    cs_loads(p, g, CS, CS3, 29)
    p(f'''
    s_mul_i32 s30, s24, 20480
    s_add_u32 s30, s30, {X1F}
    s_add_u32 s31, s30, 20480
    ''')
    for st in range(5):
        if st not in g.marks: gemm_w_dma(p, g, st)
        for k in range(4):
            s_ = 4 * st + k
            for mt in range(2):
                p(f'buffer_load_dwordx4 {a(8 * s_ + 4 * mt, 4)}, v1, s[4:7], s{30 + mt} offen offset:{1024 * k}{SC}')
        if st < 4: p('s_add_u32 s30, s30, 4096\ns_add_u32 s31, s31, 4096')
    code = [f'v_mov_b32 v13, {f2u(1 / 640)}']
    for mt in range(2):
        r = PS + 4 * mt
        code += [f'v_pk_add_f32 {v(r, 2)}, {v(r, 2)}, {v(r + 2, 2)}'] + qreduce(r, r + 2) + qreduce(r + 1, r + 3) + [
            f'v_mul_f32 v{r}, v13, -v{r}', f'v_mul_f32 v{r + 2}, v{r}, v{r}', f'v_fma_f32 v{r + 1}, v{r + 1}, v13, -v{r + 2}',
            f'v_max_f32 v{r + 1}, 0, v{r + 1}', f'v_add_f32 v{r + 1}, {f2u(EPS)}, v{r + 1}', f'v_rsq_f32 v{r + 1}, v{r + 1}']
        for k in range(12):
            code.append(f'v_pk_mul_f32 {v(g.acc(mt, 0) + 2 * k, 2)}, {v(CS + 2 * k, 2)}, {v(r, 2)} op_sel_hi:[1,0]')
    for t_ in sched(code): p(t_)
    gemm_main(p, g, lambda s_, mt: a(8 * s_ + 4 * mt, 4))
    K, ONE, O, T = 8, 10, 64, 144
    code = [f'v_mov_b32 v{K}, {f2u(C0)}', f'v_mov_b32 v{K + 1}, {f2u(C1)}', f'v_mov_b32 v{ONE}, 1.0',
            f's_mul_i32 s30, s24, 49152', 's_mul_i32 s31, s25, 3072', 's_add_u32 s30, s30, s31', f's_add_u32 s30, s30, {H3F}',
            's_add_u32 s31, s30, 49152']
    for t_ in code: p(t_)
    for mt in range(2):
        code = []
        for k in range(12):
            A = g.acc(mt, 0) + 2 * k; t = T + 2 * k
            code.append(f'v_pk_mul_f32 {v(A, 2)}, {v(A, 2)}, {v(PS + 4 * mt, 2)} op_sel:[0,1] op_sel_hi:[1,1]')
            code += gelu_code(A, t, K, ONE, O + 12 * mt + k)
            if k % 4 == 3:
                code.append(f'buffer_store_dwordx4 {v(O + 12 * mt + k - 3, 4)}, v1, s[4:7], s{30 + mt} offen offset:{1024 * (k // 4)}{SC}')
        for t_ in sched(code): p(t_)

def emit_g4(p, g):
    HP = 80
    p(f'''
    v_lshlrev_b32 v4, 3, v0
    s_mul_i32 s30, s24, 20480
    s_mul_i32 s31, s25, 2560
    s_add_u32 s30, s30, s31
    s_add_u32 s30, s30, {HXQ}
    ''')
    for t in range(5):
        p(f'buffer_load_dwordx2 {v(HP + 2 * t, 2)}, v4, s[4:7], s30 offen offset:{512 * t}{SC}')
    p(f's_mul_i32 s30, s24, 49152\ns_add_u32 s30, s30, {H3F}')
    def stage(st):
        if st >= 12: return
        if st not in g.marks: gemm_w_dma(p, g, st)
        for k in range(4):
            p(f'buffer_load_dwordx4 {a(16 * st + 4 * k, 4)}, v1, s[4:7], s30 offen offset:{1024 * k}{SC}')
        p('s_add_u32 s30, s30, 4096')
    for st in range(g.slots): stage(st)
    srd(p, 8, 'out', 2048 * 1280)
    p('s_mov_b32 s33, 0xffff0000')
    for k in range(10):
        for t_ in unpack(g.ACC + 2 * k, HP + k, 33): p(t_)
    p('''
    v_and_b32 v5, 15, v0
    v_mul_u32_u24 v5, 1280, v5
    v_lshrrev_b32 v7, 4, v0
    v_lshl_add_u32 v6, v7, 3, v5
    v_and_b32 v8, 1, v7
    v_lshl_add_u32 v5, v8, 5, v5
    v_lshrrev_b32 v7, 1, v7
    v_lshl_add_u32 v5, v7, 4, v5
    s_mul_i32 s31, s24, 20480
    s_mul_i32 s32, s25, 160
    s_add_u32 s31, s31, s32
    ''')
    gemm_main(p, g, lambda s_, mt: a(4 * s_, 4), None, stage)
    O = 80
    for pr in range(2):
        o = O + 4 * pr
        for h_ in range(2):
            A = g.acc(0, 2 * pr + h_)
            p(f'v_cvt_pk_bf16_f32 v{o + 2 * h_}, v{A}, v{A + 1}\nv_cvt_pk_bf16_f32 v{o + 2 * h_ + 1}, v{A + 2}, v{A + 3}')
        p(f'v_permlane16_swap_b32 v{o}, v{o + 2}\nv_permlane16_swap_b32 v{o + 1}, v{o + 3}')
        p(f'buffer_store_dwordx4 {v(o, 4)}, v5, s[8:11], s31 offen offset:{64 * pr}')
    A = g.acc(0, 4)
    p(f'v_cvt_pk_bf16_f32 v{O + 8}, v{A}, v{A + 1}\nv_cvt_pk_bf16_f32 v{O + 9}, v{A + 2}, v{A + 3}')
    p(f'buffer_store_dwordx2 {v(O + 8, 2)}, v6, s[8:11], s31 offen offset:128')

def _kg(name, g, emit, lds):
    p = Prog()
    prologue(p, 256, name)
    gemm_ids(p, g); gemm_w_init(p, g)
    emit(p, g)
    p(f'{name}_end:\ns_endpgm')
    return (name + '_kernel', p, 256, 256, lds)
def k_g1(): return _kg('g1', G(5, 1, 20, W1F, 5), emit_g1, 102400)
def k_g2(): return _kg('g2', G(5, 1, 20, W2F, 5), emit_g2, 102400)
def k_g3(): return _kg('g3', G(6, 2, 20, W3F, 5), emit_g3, 122880)
def k_g4(): return _kg('g4', G(5, 1, 48, W4F, 7), emit_g4, 143360)
```

```python
import kern
from kern import *
kern.SC = ' sc1'
SC = ' sc1'
LDSZ = 163840
F0, F1, F2, F3, F4, EPW = FLG, FLG + 1024, FLG + 2048, FLG + 3072, FLG + 4096, FLG + 8192
NAME = 'sequential_preLN__ssm_conv_s4d__mixer_s_mlp__prompt_kernel'

class Cfg:
    stamp = False
    w2 = (13, 16); w3 = (12, 24); w4 = (16, 32)
    slots4 = 8
    spin = 0x10000

def stamp(p, i):
    if Cfg.stamp:
        p(f's_memrealtime s[98:99]\ns_waitcnt lgkmcnt(0)\nv_writelane_b32 v255, s98, {i}')

def publish(p, sidx_expr, base, lab, extra=None):
    p(f'''
    s_waitcnt vmcnt(0)
    s_barrier
    s_cmp_lg_u32 s3, 0
    s_cbranch_scc1 {lab}_np
    s_lshl_b32 s56, {sidx_expr}, 2
    s_add_u32 s56, s56, {base}
    v_mov_b32 v252, s60
    v_mov_b32 v253, 0
    s_mov_b64 exec, 1
    buffer_store_dword v252, v253, s[4:7], s56 offen sc1
    ''')
    if extra:
        p(f's_lshl_b32 s56, {extra[0]}, 2\ns_add_u32 s56, s56, {extra[1]}\nbuffer_store_dword v252, v253, s[4:7], s56 offen sc1')
    p(f's_mov_b64 exec, -1\n{lab}_np:')

def poll(p, lab, setup, width, other=None):
    p(f's_cmp_lg_u32 s3, 0\ns_cbranch_scc1 {lab}_skip')
    setup()
    sfx = {1: 'dword', 2: 'dwordx2', 4: 'dwordx4'}[width]
    p(f's_mov_b64 exec, s[58:59]\ns_mov_b32 s61, {Cfg.spin}\n{lab}_loop:')
    R = 248
    p(f'buffer_load_{sfx} {v(R, width)}, v253, s[4:7], s56 offen sc1\ns_waitcnt vmcnt(0)')
    for k in range(width):
        p(f'v_xor_b32 v{R + k}, s60, v{R + k}')
    for k in range(1, width):
        p(f'v_or_b32 v{R}, v{R}, v{R + k}')
    p(f'''
    v_cmp_ne_u32 vcc, 0, v{R}
    s_sub_u32 s61, s61, 1
    s_cbranch_scc1 {lab}_out
    s_cbranch_vccnz {lab}_loop
    {lab}_out:
    s_mov_b64 exec, -1
    ''')
    if other:
        p(f's_branch {lab}_join\n{lab}_skip:')
        other()
        p(f's_waitcnt vmcnt(0)\n{lab}_join:')
    else:
        p(f'{lab}_skip:\ns_waitcnt vmcnt(0)')
    p('s_barrier')

class PG(G):
    def __init__(self, NT, MT, NS, WF, slots, sT, sJ):
        super().__init__(NT, MT, NS, WF, slots)
        self.sT, self.sJ = sT, sJ

def dma_part(p, g, first, n, w0=0):
    if n == 0: return
    p(f'''
    s_mul_i32 s54, s{g.sJ}, {g.NS * g.NT}
    s_mul_i32 s55, s3, {n}
    s_add_u32 s55, s55, {first - w0 * n}
    s_add_u32 s54, s54, s55
    s_lshl_b32 s54, s54, 10
    s_add_u32 s54, s54, {g.WF}
    s_lshl_b32 m0, s55, 10
    ''')
    for k in range(n):
        if k and k % 4 == 0: p('s_add_u32 m0, m0, 4096\ns_add_u32 s54, s54, 4096')
        p(f'buffer_load_dwordx4 v1, s[4:7], s54 offen offset:{1024 * (k & 3)}{SC} lds')

def pmain(p, g, xreg, side=None, refill=None):
    NT, MT = g.NT, g.MT
    def areads(s_):
        o = (((s_ >> 2) % g.slots) * 4 + (s_ & 3)) * NT * 1024
        return [f'ds_read_b128 {v(g.AB[s_ & 1] + 4 * t, 4)}, v{(1, 3, 15)[(o + 1024 * t) >> 16]} offset:{(o + 1024 * t) & 65535}' for t in range(NT)]
    for t_ in areads(0): p(t_)
    nst = g.NS // 4
    for s_ in range(g.NS):
        nx = []
        if s_ + 1 < g.NS:
            st = (s_ + 1) // 4
            if refill and (s_ + 1) % 4 == 0:
                need = st >= g.slots; issue = st - 1 + g.slots < nst
                if need: p.wait_vm(g.marks[st], 0 if issue else None)
                elif issue: p('s_waitcnt lgkmcnt(0)')
                if need or issue: p('s_barrier')
                if issue: refill(st - 1 + g.slots)
            nx = areads(s_ + 1)
        sd = side(s_) if side else []
        mf = [f'v_mfma_f32_16x16x32_bf16 {v(g.acc(mt, t), 4)}, {v(g.AB[s_ & 1] + 4 * t, 4)}, {xreg(s_, mt)}, {v(g.acc(mt, t), 4)}'
              for t in range(NT) for mt in range(MT)]
        for t_ in nx: p(t_)
        k = 0
        for i, m_ in enumerate(mf):
            p(m_)
            n = (len(sd) * (i + 1)) // len(mf)
            for t_ in sd[k:n]: p(t_)
            k = n

def build(dbg=False):
    Cfg.stamp = dbg
    p = Prog()
    g1 = PG(5, 1, 20, W1F, 5, 24, 25); g2 = PG(5, 1, 20, W2F, 5, 24, 25)
    g3 = PG(6, 2, 20, W3F, 5, 52, 53); g4 = PG(5, 1, 48, W4F, Cfg.slots4, 24, 25)
    prologue(p, 256, 'k')
    if dbg: p('v_mov_b32 v255, 0')
    stamp(p, 0)
    if dbg: p('s_memtime s[98:99]\ns_waitcnt lgkmcnt(0)\nv_writelane_b32 v255, s98, 30')
    p(f'''
    s_add_u32 s56, s92, {EPW}
    s_addc_u32 s57, s93, 0
    s_load_dword s60, s[56:57], 0
    s_cmp_ge_u32 s2, 160
    s_cbranch_scc1 role_b
    ''')
    TAG = 's_mul_i32 s60, s60, 0x9e3779b1\ns_add_u32 s60, s60, 0x7f4a7c15'
    def ids():
        p('''
        s_lshr_b32 s28, s2, 3
        s_and_b32 s29, s2, 7
        s_and_b32 s25, s28, 7
        s_lshr_b32 s24, s28, 3
        s_lshl_b32 s30, s29, 2
        s_add_u32 s24, s24, s30
        s_lshl_b32 s62, s24, 3
        s_add_u32 s62, s62, s25
        s_lshl_b32 s24, s24, 2
        s_add_u32 s24, s24, s3
        s_and_b32 s53, s28, 15
        s_lshr_b32 s52, s28, 4
        s_lshl_b32 s30, s29, 1
        s_add_u32 s52, s52, s30
        s_lshl_b32 s63, s52, 4
        s_add_u32 s63, s63, s53
        s_lshl_b32 s52, s52, 2
        s_add_u32 s52, s52, s3
        s_lshl_b32 s52, s52, 1
        v_lshlrev_b32 v1, 4, v0
        ''')
    FB, RAW, UC, RC = 0, 69632, 102400, 135808
    emit_kgen_loads(p, 2)
    emit_raw_zero(p, RAW)
    p(TAG)
    stamp(p, 1)
    emit_kgen(p, FB, RC)
    stamp(p, 2)
    def su0():
        p(f'v_lshlrev_b32 v253, 3, v0\ns_mov_b32 s56, {F0}\ns_mov_b32 s58, -1\ns_mov_b32 s59, 31')
    poll(p, 'pa', su0, 2)
    stamp(p, 3)
    emit_u_dma(p, 2, RAW)
    m = p.mark()
    emit_x_prefetch(p, 2)
    ids()
    p.wait_vm(m, 0); p('s_barrier')
    stamp(p, 4)
    emit_build_uc(p, RAW, UC)
    p('s_waitcnt lgkmcnt(0)\ns_barrier')
    dma_part(p, g1, 0, 25)
    stamp(p, 5)
    emit_conv(p, UC, RC)
    stamp(p, 6)
    publish(p, 's2', F1, 'pba')
    p('s_branch join1')
    p('role_b:\ns_sub_u32 s20, s2, 160\ns_cmp_ge_u32 s20, 64\ns_cbranch_scc1 role_b2\ns_lshl_b32 s21, s20, 1')
    emit_ln(p, 21, 2)
    p(TAG)
    stamp(p, 1)
    publish(p, 's20', F0, 'pbl')
    stamp(p, 2)
    p('s_add_u32 s20, s20, 32\ns_cmp_ge_u32 s20, 74\ns_cbranch_scc1 role_b4\ns_branch role_b3\nrole_b2:')
    p(TAG)
    p('s_sub_u32 s20, s20, 64\nrole_b3:')
    emit_relayout(p, 20, 'rl')
    p('role_b4:')
    stamp(p, 3)
    publish(p, 's20', F0 + 256, 'pbr', ('s2', F1))
    stamp(p, 4)
    ids()
    def su1():
        p(f'v_lshlrev_b32 v253, 2, v0\ns_mov_b32 s56, {F0 + 256}\ns_mov_b32 s58, 0x3ff\ns_mov_b32 s59, 0')
    poll(p, 'pb', su1, 1)
    dma_part(p, g1, 0, 25)
    p('join1:')
    stamp(p, 7)
    g = g1
    X = 80; CS = 160; HP = 180
    p(f'v_add_u32 v3, 65536, v1\nv_add_u32 v15, 131072, v1\nv_lshlrev_b32 v4, 3, v0')
    for k in range(20): p(f'v_mov_b32 v{g.ACC + k}, 0')
    p('v_mov_b32 v8, 0\nv_mov_b32 v9, 0\nv_mov_b32 v10, 0\nv_mov_b32 v11, 0\nv_mov_b32 v12, 0x3f803f80')
    p(f's_mul_i32 s30, s24, 20480\ns_add_u32 s30, s30, {HQ}\ns_mul_i32 s31, s25, 2560\ns_add_u32 s31, s31, s30')
    def su2():
        p(f'v_lshlrev_b32 v253, 4, v0\ns_mov_b32 s56, {F1}\ns_mov_b64 s[58:59], -1')
    poll(p, 'p1', su2, 4)
    stamp(p, 8)
    for st in range(5):
        for k in range(4):
            s_ = 4 * st + k
            p(f'buffer_load_dwordx2 {v(X + 4 * s_, 2)}, v4, s[4:7], s30 offen offset:{1024 * k}{SC}')
            p(f'buffer_load_dwordx2 {v(X + 4 * s_ + 2, 2)}, v4, s[4:7], s30 offen offset:{1024 * k + 512}{SC}')
        if st < 4: p('s_add_u32 s30, s30, 4096')
    cs_loads(p, g, CS, CS1, 29)
    for t in range(5):
        p(f'buffer_load_dwordx2 {v(HP + 2 * t, 2)}, v4, s[4:7], s31 offen offset:{512 * t}{SC}')
    p(f'''
    s_or_b32 s29, s2, s3
    s_cmp_lg_u32 s29, 0
    s_cbranch_scc1 noep
    v_mov_b32 v252, s60
    v_mov_b32 v253, 0
    s_mov_b32 s56, {EPW}
    s_mov_b64 exec, 1
    buffer_store_dword v252, v253, s[4:7], s56 offen sc1
    s_mov_b64 exec, -1
    noep:
    ''')
    def side(s_):
        out = []
        for d in range(4):
            out.append(f'v_dot2c_f32_bf16 v{8 + (d & 1)}, v{X + 4 * s_ + d}, v12')
            out.append(f'v_dot2c_f32_bf16 v{10 + (d & 1)}, v{X + 4 * s_ + d}, v{X + 4 * s_ + d}')
        return out
    pmain(p, g, lambda s_, mt: v(X + 4 * s_, 4), side)
    stamp(p, 9)
    p('s_barrier')
    dma_part(p, g2, 0, Cfg.w2[0])
    K, ONE, O, T = 80, 82, 84, 96
    code = [f'v_mov_b32 v{K}, {f2u(C0)}', f'v_mov_b32 v{K + 1}, {f2u(C1)}', f'v_mov_b32 v{ONE}, 1.0',
            'v_add_f32 v8, v8, v9', 'v_add_f32 v10, v10, v11'] + qreduce(8, 9) + qreduce(10, 11) + [
        f'v_mul_f32 v8, {f2u(1 / 640)}, v8', 'v_mul_f32 v9, v8, v8', f'v_mov_b32 v13, {f2u(1 / 640)}',
        'v_fma_f32 v10, v10, v13, -v9', 'v_max_f32 v10, 0, v10', f'v_add_f32 v11, {f2u(EPS)}, v10', 'v_rsq_f32 v12, v11',
        'v_mul_f32 v11, v12, v12', f'v_mov_b32 v13, {f2u(EPS)}', 'v_fma_f32 v11, v11, v10, v13', 'v_rsq_f32 v11, v11',
        'v_mul_f32 v13, -v8, v12', 'v_mul_f32 v10, v12, v11', 'v_mul_f32 v11, v13, v11']
    for k in range(10):
        A = g.ACC + 2 * k; t = T + 2 * k
        code += [f'v_pk_mul_f32 {v(CS + 2 * k, 2)}, {v(CS + 2 * k, 2)}, v[10:11] op_sel:[0,1] op_sel_hi:[1,1]',
                 f'v_pk_fma_f32 {v(A, 2)}, {v(A, 2)}, v[10:11], {v(CS + 2 * k, 2)} op_sel_hi:[1,0,1]']
        code += gelu_code(A, t, K, ONE, O + k)
    for t_ in sched(code): p(t_)
    frag_store80(p, O, H1F)
    stamp(p, 10)
    publish(p, 's62', F2, 'pb1')
    stamp(p, 11)
    g = g2
    H = 160
    p('''
    v_and_b32 v9, 15, v0
    s_lshl_b32 s29, s24, 4
    v_add_u32 v9, s29, v9
    v_and_b32 v10, 48, v0
    v_lshlrev_b32 v10, 4, v10
    s_movk_i32 s32, 0x800
    v_bfrev_b32 v2, 1
    s_mov_b32 s33, 0xffff0000
    ''')
    def g2pre():
        for gi, d in enumerate((-1, 1, -2, 2)):
            p(f'''
            v_add_u32 v11, {d}, v9
            v_cmp_gt_u32 vcc, s32, v11
            v_lshrrev_b32 v14, 4, v11
            v_mul_u32_u24 v14, 20480, v14
            v_and_b32 v11, 15, v11
            v_lshl_add_u32 v14, v11, 4, v14
            v_add_u32 v14, v14, v10
            v_cndmask_b32 v{5 + gi}, v2, v14, vcc
            ''')
        for k in range(10):
            for t_ in unpack(H + 2 * k, HP + k, 33): p(t_)
            p(f'v_pk_fma_f32 {v(g.ACC + 2 * k, 2)}, {v(H + 2 * k, 2)}, v[12:13], v[12:13] op_sel:[0,0,1] op_sel_hi:[1,0,1]')
    def su3():
        g2pre()
        p(f'''
        s_and_b32 s56, s62, 0xf8
        s_sub_u32 s56, s56, 8
        v_add_u32 v253, s56, v0
        s_movk_i32 s57, 0x100
        v_cmp_gt_u32 vcc, s57, v253
        v_lshlrev_b32 v253, 2, v253
        s_and_b32 s58, vcc_lo, 0xffffff
        s_mov_b32 s59, 0
        s_mov_b32 s56, {F2}
        ''')
    def ot3():
        dma_part(p, g2, 4 * Cfg.w2[0], Cfg.w2[1], 1); g2pre()
    poll(p, 'p2', su3, 1, ot3)
    stamp(p, 12)
    p(f's_mov_b32 s30, {H1F}')
    for st in range(5):
        for k in range(4):
            s_ = 4 * st + k
            gi = st if st < 4 else k
            p(f'buffer_load_dwordx4 {v(X + 4 * s_, 4)}, v{5 + gi}, s[4:7], s30 offen offset:{1024 * k}{SC}')
        if st < 4: p('s_add_u32 s30, s30, 4096')
    CS3R = 112 + 80
    p(f'v_and_b32 v14, 48, v0\ns_mul_i32 s29, s53, 384\ns_add_u32 s29, s29, {CS3}')
    for t in range(6):
        p(f'buffer_load_dwordx4 {v(CS3R + 4 * t, 4)}, v14, s[4:7], s29 offen offset:{64 * t}{SC}')
    pmain(p, g, lambda s_, mt: v(X + 4 * s_, 4))
    stamp(p, 13)
    p('s_barrier')
    dma_part(p, g3, 0, Cfg.w3[0])
    O = 84; HX = 220
    code = ['v_mov_b32 v8, 0', 'v_mov_b32 v9, 0', 'v_mov_b32 v10, 0', 'v_mov_b32 v11, 0', 'v_mov_b32 v12, 0x3f803f80']
    for k in range(10):
        A = g.ACC + 2 * k
        code += [f'v_cvt_pk_bf16_f32 v{O + k}, v{A}, v{A + 1}',
                 f'v_dot2c_f32_bf16 v{8 + 2 * (k & 1)}, v{O + k}, v12', f'v_dot2c_f32_bf16 v{9 + 2 * (k & 1)}, v{O + k}, v{O + k}']
    code += ['v_pk_add_f32 v[8:9], v[8:9], v[10:11]'] + qreduce(8, 10) + qreduce(9, 11)
    for t_ in sched(code): p(t_)
    frag_store80(p, O, X1F)
    p(f'''
    s_lshl_b32 s29, s24, 3
    s_add_u32 s29, s29, s25
    s_lshl_b32 s29, s29, 7
    s_add_u32 s29, s29, {PS2}
    s_mov_b64 exec, 0xffff
    buffer_store_dwordx2 v[8:9], v4, s[4:7], s29 offen{SC}
    s_mov_b64 exec, -1
    ''')
    for k in range(10):
        p(f'v_pk_add_f32 {v(HX + 2 * k, 2)}, {v(H + 2 * k, 2)}, {v(g.ACC + 2 * k, 2)}')
    stamp(p, 14)
    publish(p, 's62', F3, 'pb2')
    stamp(p, 15)
    g = g3
    CS = CS3R; PS = 136
    p(f'''
    v_and_b32 v6, 15, v0
    v_and_b32 v7, 48, v0
    v_lshlrev_b32 v7, 4, v7
    v_lshl_add_u32 v7, v6, 3, v7
    s_lshl_b32 s29, s52, 10
    s_add_u32 s29, s29, {PS2}
    s_mul_i32 s30, s52, 20480
    s_add_u32 s30, s30, {X1F}
    s_add_u32 s31, s30, 20480
    ''')
    def su4():
        p(f'''
        s_and_b32 s56, s63, 0xf0
        s_lshl_b32 s56, s56, 2
        s_add_u32 s56, s56, {F3}
        v_lshlrev_b32 v253, 2, v0
        s_mov_b64 s[58:59], 0xffff
        ''')
    poll(p, 'p3', su4, 1, lambda: dma_part(p, g3, 4 * Cfg.w3[0], Cfg.w3[1], 1))
    stamp(p, 16)
    for mt in range(2):
        for i in range(2):
            p(f'buffer_load_dwordx2 {v(PS + 4 * mt + 2 * i, 2)}, v7, s[4:7], s29 offen offset:{1024 * mt + 128 * i}{SC}')
    for st in range(5):
        for k in range(4):
            s_ = 4 * st + k
            for mt in range(2):
                p(f'buffer_load_dwordx4 {a(8 * s_ + 4 * mt, 4)}, v1, s[4:7], s{30 + mt} offen offset:{1024 * k}{SC}')
        if st < 4: p('s_add_u32 s30, s30, 4096\ns_add_u32 s31, s31, 4096')
    code = [f'v_mov_b32 v13, {f2u(1 / 640)}']
    for mt in range(2):
        r = PS + 4 * mt
        code += [f'v_pk_add_f32 {v(r, 2)}, {v(r, 2)}, {v(r + 2, 2)}'] + qreduce(r, r + 2) + qreduce(r + 1, r + 3) + [
            f'v_mul_f32 v{r}, v13, -v{r}', f'v_mul_f32 v{r + 2}, v{r}, v{r}', f'v_fma_f32 v{r + 1}, v{r + 1}, v13, -v{r + 2}',
            f'v_max_f32 v{r + 1}, 0, v{r + 1}', f'v_add_f32 v{r + 1}, {f2u(EPS)}, v{r + 1}', f'v_rsq_f32 v{r + 1}, v{r + 1}']
        for k in range(12):
            code.append(f'v_pk_mul_f32 {v(g.acc(mt, 0) + 2 * k, 2)}, {v(CS + 2 * k, 2)}, {v(r, 2)} op_sel_hi:[1,0]')
    for t_ in sched(code): p(t_)
    pmain(p, g, lambda s_, mt: a(8 * s_ + 4 * mt, 4))
    stamp(p, 17)
    p('s_barrier')
    dma_part(p, g4, 0, Cfg.w4[0])
    K, ONE, O, T = 8, 10, 64, 144
    p(f'''
    v_mov_b32 v{K}, {f2u(C0)}
    v_mov_b32 v{K + 1}, {f2u(C1)}
    v_mov_b32 v{ONE}, 1.0
    s_mul_i32 s30, s52, 49152
    s_mul_i32 s31, s53, 3072
    s_add_u32 s30, s30, s31
    s_add_u32 s30, s30, {H3F}
    s_add_u32 s31, s30, 49152
    ''')
    for mt in range(2):
        code = []
        for k in range(12):
            A = g.acc(mt, 0) + 2 * k; t = T + 2 * k
            code.append(f'v_pk_mul_f32 {v(A, 2)}, {v(A, 2)}, {v(PS + 4 * mt, 2)} op_sel:[0,1] op_sel_hi:[1,1]')
            code += gelu_code(A, t, K, ONE, O + 12 * mt + k)
            if k % 4 == 3:
                code.append(f'buffer_store_dwordx4 {v(O + 12 * mt + k - 3, 4)}, v1, s[4:7], s{30 + mt} offen offset:{1024 * (k // 4)}{SC}')
        for t_ in sched(code): p(t_)
    stamp(p, 18)
    publish(p, 's63', F4, 'pb3')
    stamp(p, 19)
    g = g4; g.ACC = HX
    srd(p, 8, 'out', 2048 * 1280)
    p(f'''
    v_and_b32 v5, 15, v0
    v_mul_u32_u24 v5, 1280, v5
    v_lshrrev_b32 v7, 4, v0
    v_lshl_add_u32 v6, v7, 3, v5
    v_and_b32 v8, 1, v7
    v_lshl_add_u32 v5, v8, 5, v5
    v_lshrrev_b32 v7, 1, v7
    v_lshl_add_u32 v5, v7, 4, v5
    s_mul_i32 s31, s24, 20480
    s_mul_i32 s32, s25, 160
    s_add_u32 s31, s31, s32
    s_mul_i32 s30, s24, 49152
    s_add_u32 s30, s30, {H3F}
    s_mul_i32 s26, s25, 48
    s_add_u32 s26, s26, s3
    s_add_u32 s26, s26, {4 * g.slots}
    s_mul_i32 s26, s26, 5120
    s_add_u32 s26, s26, {W4F}
    s_mul_i32 s27, s3, 5120
    ''')
    def su5():
        p(f'''
        s_and_b32 s56, s62, 0xf0
        s_lshl_b32 s56, s56, 2
        s_add_u32 s56, s56, {F4}
        v_lshlrev_b32 v253, 2, v0
        s_mov_b64 s[58:59], 0xffff
        ''')
    assert 4 * Cfg.w4[0] + 3 * Cfg.w4[1] == 20 * g.slots
    poll(p, 'p4', su5, 1, lambda: dma_part(p, g4, 4 * Cfg.w4[0], Cfg.w4[1], 1))
    stamp(p, 20)
    def stage(st):
        if st >= g.slots: gemm_w_dma(p, g, st)
        for k in range(4):
            p(f'buffer_load_dwordx4 {a(16 * st + 4 * k, 4)}, v1, s[4:7], s30 offen offset:{1024 * k}{SC}')
        p('s_add_u32 s30, s30, 4096')
    for st in range(g.slots): stage(st)
    pmain(p, g, lambda s_, mt: a(4 * s_, 4), None, stage)
    stamp(p, 21)
    O = 80
    for pr in range(2):
        o = O + 4 * pr
        for h_ in range(2):
            A = g.acc(0, 2 * pr + h_)
            p(f'v_cvt_pk_bf16_f32 v{o + 2 * h_}, v{A}, v{A + 1}\nv_cvt_pk_bf16_f32 v{o + 2 * h_ + 1}, v{A + 2}, v{A + 3}')
        p(f'v_permlane16_swap_b32 v{o}, v{o + 2}\nv_permlane16_swap_b32 v{o + 1}, v{o + 3}')
        p(f'buffer_store_dwordx4 {v(o, 4)}, v5, s[8:11], s31 offen offset:{64 * pr}')
    A = g.acc(0, 4)
    p(f'v_cvt_pk_bf16_f32 v{O + 8}, v{A}, v{A + 1}\nv_cvt_pk_bf16_f32 v{O + 9}, v{A + 2}, v{A + 3}')
    p(f'buffer_store_dwordx2 {v(O + 8, 2)}, v6, s[8:11], s31 offen offset:128')
    if dbg:
        p('s_waitcnt vmcnt(0)')
        stamp(p, 22)
        p('s_memtime s[98:99]\ns_waitcnt lgkmcnt(0)\nv_writelane_b32 v255, s98, 31')
        p(f'''
        s_lshl_b32 s29, s2, 2
        s_add_u32 s29, s29, s3
        s_lshl_b32 s29, s29, 7
        s_add_u32 s29, s29, {DBGW}
        v_lshlrev_b32 v2, 2, v0
        s_mov_b32 exec_hi, 0
        buffer_store_dword v255, v2, s[4:7], s29 offen
        ''')
    p('k_end:\ns_endpgm')
    return p

if __name__ == '__main__':
    import sys
    from build import HDR
    out = sys.argv[1]; dbg = 'dbg' in sys.argv[2:]
    for a_ in sys.argv[2:]:
        if '=' in a_:
            k_, v_ = a_.split('='); setattr(Cfg, k_, eval(v_))
    name = 'pers_kernel' if 'list' in sys.argv[2:] else NAME
    open(out, 'w').write(file_text([(name, build(dbg), 256, 256, LDSZ)], HDR))
```

```python
UQ   = 0x0000000
XQ   = 0x0280000
HQ   = 0x0500000
H1F  = 0x0780000
X1F  = 0x0A00000
HXQ  = 0x0C80000
H3F  = 0x0CA0000
W1F  = 0x1500000
W2F  = 0x1600000
W3F  = W2F + 819200
W4F  = W3F + 1966080
CS1  = 0x1B00000
CS3  = 0x1B01000
ST1  = 0x1B04000
STAT = 0x1B04000
PS2  = 0x0C80000
FLG  = 0x1B40000
DBGW = 0x1C00000
ACT  = 128 * 20480

def kmap_std(s, q, e):
    return 32 * s + (4 * q + e if e < 4 else 16 + 4 * q + e - 4)

def kmap_sp(s, q, e):
    if s < 16:
        return 80 * (s >> 1) + 32 * (s & 1) + (4 * q + e if e < 4 else 16 + 4 * q + e - 4)
    p = s - 16
    return 80 * (2 * p + (q >> 1)) + 64 + 4 * (q & 1) + (e if e < 4 else 8 + e - 4)

def w2_order(s):
    return 2 * (s & 7) + (s >> 3) if s < 16 else 16 + 2 * (s & 1) + ((s - 16) >> 1)
```

```python
import kern
from kern import *
kern.SC = ' sc1'
SC = ' sc1'
LDSZ = 163840
F0, F1, F2, F3, F4, EPW = [FLG + 65536 * k for k in range(6)]
NAME = 'sequential_preLN__ssm_conv_s4d__mixer_s_mlp__prompt_kernel'
FB, UC, RC = 0, 69632, 103040
CHY = 8512
XP, SR = 208, 224
MF = 'v_mfma_f32_16x16x32_bf16'

TAG = 's_mul_i32 s60, s60, 0x9e3779b1\ns_add_u32 s60, s60, 0x7f4a7c15'
class Cfg:
    stamp = False
    spin = 0x10000
    inj = 0.72
    U1 = 6; U2 = 7; U3 = 8; U4 = 10
    pf = True
    warm = False
    FS = 7
    pw = 1
    own = True
    jc = 2
    m3 = 15
    slp = 0
    early = True
    w3 = 0.3
    e3 = 15

def stamp(p, i):
    if Cfg.stamp:
        p(f's_memrealtime s[98:99]\ns_waitcnt lgkmcnt(0)\nv_writelane_b32 v255, s98, {i}')

def flag_store(p, lab, pairs):
    p(f's_cmp_lg_u32 s3, 0\ns_cbranch_scc1 {lab}_np\nv_mov_b32 v252, s60\nv_mov_b32 v253, 0\ns_mov_b64 exec, 1')
    for sidx, base in pairs:
        p(f's_lshl_b32 s56, {sidx}, {Cfg.FS}\ns_add_u32 s56, s56, {base}\nbuffer_store_dword v252, v253, s[4:7], s56 offen sc1')
    p(f's_mov_b64 exec, -1\n{lab}_np:')

def publish(p, sidx, base, lab, m=None, pf=None):
    if m is None: p('s_waitcnt vmcnt(0)')
    else: p.wait_vm(m)
    if pf and Cfg.pf: p(pf)
    p('s_barrier')
    flag_store(p, lab, [(sidx, base)])

def spin(p, lab, width, R):
    sfx = {1: 'dword', 2: 'dwordx2', 4: 'dwordx4'}[width]
    p(f's_mov_b64 exec, s[58:59]\ns_mov_b32 s61, {Cfg.spin}\n{lab}_loop:')
    p(f'buffer_load_{sfx} {v(R, width)}, v253, s[4:7], s56 offen sc1\ns_waitcnt vmcnt(0)')
    for k in range(width): p(f'v_xor_b32 v{R + k}, s60, v{R + k}')
    if width == 2: p(f'v_or_b32 v{R}, v{R}, v{R + 1}')
    if width == 4: p(f'v_or3_b32 v{R}, v{R}, v{R + 1}, v{R + 2}\nv_or_b32 v{R}, v{R}, v{R + 3}')
    p(f'''
    v_cmp_ne_u32 vcc, 0, v{R}
    s_sub_u32 s61, s61, 1
    s_cbranch_scc1 {lab}_out
    s_cbranch_vccz {lab}_out
    {f's_sleep {Cfg.slp}' if Cfg.slp else ''}
    s_branch {lab}_loop
    {lab}_out:
    s_mov_b64 exec, -1
    ''')

def poll(p, lab, setup, every=False, own=None):
    if not every: p(f's_cmp_lg_u32 s3, {Cfg.pw}\ns_cbranch_scc1 {lab}_skip')
    setup()
    if own and Cfg.own:
        p(f's_cmp_lt_u32 {own}, 64\ns_cselect_b32 s57, 1, 0\ns_mov_b32 s61, 0\ns_and_b32 {own}, {own}, 63\ns_mov_b32 s96, s57\ns_mov_b32 s97, 0\ns_lshl_b64 s[96:97], s[96:97], {own}\ns_andn2_b64 s[58:59], s[58:59], s[96:97]')
    spin(p, lab, 1, 254)
    p(f'{lab}_skip:\ns_waitcnt vmcnt(0)\ns_barrier')

class PG:
    def __init__(self, NT, NS, WF, sJ, base):
        self.NT, self.NS, self.WF, self.sJ, self.base = NT, NS, WF, sJ, base

def dma(g, first, n, sr='s[4:7]'):
    slot = (g.base + first) % 160
    assert slot + 4 * n <= 160
    L = [f's_mul_i32 s54, s{g.sJ}, {g.NS * g.NT}', f's_mul_i32 s55, s3, {n}', 's_add_u32 s54, s54, s55', f's_add_u32 s55, s55, {slot}',
         's_lshl_b32 s54, s54, 10', 's_lshl_b32 m0, s55, 10', f's_add_u32 s54, s54, {g.WF + first * 1024}']
    for k in range(n):
        if k and k % 4 == 0: L += ['s_add_u32 m0, m0, 4096', 's_add_u32 s54, s54, 4096']
        L.append(f'buffer_load_dwordx4 v1, {sr}, s54 offen offset:{1024 * (k & 3)}{SC} lds')
    return L

def emit(p, L):
    for t in L: p(t)

def spread(L, steps):
    d = {}
    for k, s_ in enumerate(steps):
        d[s_] = L[len(L) * k // len(steps): len(L) * (k + 1) // len(steps)]
    return d

def weave(code, fill, lo=0.0, hi=1.0):
    n = len(code); a_, b_ = int(n * lo), int(n * hi); out = list(code[:a_]); k = 0
    for i in range(a_, b_):
        out.append(code[i])
        e = len(fill) * (i - a_ + 1) // (b_ - a_)
        out += fill[k:e]; k = e
    return out + list(code[b_:])

def mainloop(p, n, NT, mf, wr, xl, U, extra={}, pre=None, sync={}):
    marks = {}
    emit(p, wr(0) + wr(1))
    for i in range(min(U, n)):
        emit(p, xl(i)); marks[i] = p.mark()
    if pre:
        p.wait_vm(marks[0]); emit(p, pre(0))
    for i in range(n):
        lg = NT if i + 1 < n else 0
        if pre: p(f's_waitcnt lgkmcnt({lg})')
        else: p.wait_vm(marks[i], lg)
        if i in sync: sync[i]()
        fill = [(t, None) for t in (wr(i + 2) if i + 2 < n else [])]
        if i + U < n:
            x = xl(i + U); fill += [(t, None) for t in x[:-1]] + [(x[-1], i + U)]
        fill += [(t, None) for t in extra.get(i, [])]
        M = mf(i); G_ = len(M) - (2 if pre else 0); k = 0
        for gi, m_ in enumerate(M):
            p(m_)
            if gi < G_:
                e = -(-len(fill) * (gi + 1) // G_)
                for t, mk in fill[k:e]:
                    if callable(t): t()
                    else: p(t)
                    if mk is not None: marks[mk] = p.mark()
                k = e
            elif gi == G_ and i + 1 < n:
                p.wait_vm(marks[i + 1]); emit(p, pre(i + 1))

def kgen2(p, inject):
    ACC = 24; FR = 40; Lr = 104; T = 136
    p(f'''
    s_mul_i32 s26, s3, 17408
    s_mov_b32 m0, s26
    v_and_b32 v3, 31, v0
    v_mul_u32_u24 v3, 272, v3
    v_lshrrev_b32 v4, 5, v0
    v_lshl_add_u32 v3, v4, 4, v3
    v_add_u32 v3, s26, v3
    v_mov_b32 v4, 0x3f80
    ds_write_addtid_b32 v4
    s_mul_i32 s27, s3, 4608
    s_add_u32 s27, s27, {RC}
    v_lshlrev_b32 v5, 3, v0
    v_add_u32 v5, s27, v5
    v_mov_b32 v6, 0
    v_mov_b32 v7, 0
    ds_write_b64 v5, v[6:7]
    s_mov_b32 s36, {f2u(LOG2E)}
    s_mov_b32 s37, {f2u(1 / (2 * math.pi))}
    s_mov_b32 s38, 0x41000000
    s_mov_b32 s39, 0x43800000
    v_mul_f32 v20, s36, v20
    v_exp_f32 v20, v20
    v_cvt_pk_bf16_f32 v20, v20, v20
    v_lshlrev_b32 v20, 16, v20
    v_add_f32 v22, v20, v20
    v_cmp_eq_u32 vcc, 0, v0
    v_cndmask_b32 v21, 0, v21, vcc
    ''')
    code = []; tp = [T]
    def new(n=2):
        r = tp[0]; tp[0] += n; return r
    cv = [0]; CV = 240
    def put(val, rows, neg):
        r = CV + (cv[0] % 12); cv[0] += 1
        code.append(f'v_cvt_pk_bf16_f32 v{r}, v{val}, {"-" if neg else ""}v{val + 1}')
        for row in rows: code.append(f'ds_write_addtid_b32 v{r} offset:{272 * row}')
    for st in range(3):
        tp[0] = T
        la, ai, cr, ci = [8 + 4 * st + k for k in range(4)]
        E1, E256, G0 = new(), new(), new()
        E8 = Lr
        t = new(10)
        code += [f'v_mul_f32 v{la}, s36, v{la}', f'v_exp_f32 v{la}, v{la}', f'v_cvt_pk_bf16_f32 v{la}, v{la}, v{la}',
                 f'v_lshlrev_b32 v{la}, 16, v{la}', f'v_mul_f32 v{la}, v{la}, v20', f'v_mul_f32 v{la}, -v{la}, s36',
                 f'v_mul_f32 v{ai}, v{ai}, v20', f'v_mul_f32 v{ai}, s37, v{ai}',
                 f'v_mul_f32 v{G0}, v{cr}, v22', f'v_mul_f32 v{G0 + 1}, v{ci}, v22']
        for k, (E, sc) in enumerate(((E8, 's38'), (E1, None), (E256, 's39'))):
            m_, a_ = t + 3 * k, t + 3 * k + 1
            if sc:
                code += [f'v_mul_f32 v{m_}, {sc}, v{la}', f'v_mul_f32 v{a_}, {sc}, v{ai}', f'v_exp_f32 v{m_}, v{m_}', f'v_fract_f32 v{a_}, v{a_}']
            else:
                code += [f'v_exp_f32 v{m_}, v{la}', f'v_fract_f32 v{a_}, v{ai}']
            code += [f'v_cos_f32 v{E}, v{a_}', f'v_sin_f32 v{E + 1}, v{a_}',
                     f'v_mul_f32 v{E}, v{E}, v{m_}', f'v_mul_f32 v{E + 1}, v{E + 1}, v{m_}']
        Lx = lambda j: Lr + 2 * (j - 1)
        put(E8, [1], False)
        put(G0, [32 + r for r in HROW[0]], True)
        tmp = [new() for _ in range(6)]; ti = [0]
        def nt():
            r = tmp[ti[0] % len(tmp)]; ti[0] += 1; return r
        E2, E4 = new(), new()
        G = {0: G0}
        hi = [(E2, E1, E1, None), (E4, E2, E2, None)]
        HL = ((1, 0, E1), (2, 0, E2), (3, 1, E2), (4, 0, E4), (5, 1, E4), (6, 2, E4), (7, 3, E4), (8, 0, E8),
              (256, 0, E256), (264, 8, E256), (258, 2, E256), (260, 4, E256), (262, 6, E256),
              (512, 256, E256), (520, 264, E256), (516, 260, E256), (768, 512, E256), (776, 520, E256), (772, 516, E256),
              (1024, 768, E256), (1032, 776, E256), (1280, 1024, E256), (1288, 1032, E256),
              (1536, 1280, E256), (1544, 1288, E256), (1792, 1536, E256), (1800, 1544, E256))
        used = {a_ for _, a_, _ in HL}
        for h_, a_, b_ in HL:
            G[h_] = new() if h_ in used else None
            hi.append((G[h_], G[a_], b_, h_))
        lo = []
        for j in range(2, 32):
            pw = 1 << (j.bit_length() - 1)
            a_, b_ = (pw // 2, pw // 2) if j == pw else (j - pw, pw)
            lo.append((Lx(j) if j <= 16 else None, Lx(a_), Lx(b_), j))
        for k in range(max(len(lo), len(hi))):
            if k < len(lo):
                D_, X_, Y_, j = lo[k]; D_ = nt() if D_ is None else D_
                code += cmul(D_, X_, Y_); put(D_, [j], False)
            if k < len(hi):
                D_, X_, Y_, h_ = hi[k]; D_ = nt() if D_ is None else D_
                code += cmul(D_, X_, Y_)
                if h_ in HROW: put(D_, [32 + r for r in HROW[h_]], True)
        assert tp[0] <= XP, tp[0]
        for m in range(8):
            code.append(f'ds_read_b128 {v(FR + 4 * m, 4)}, v3 offset:{32 * 272 + 32 * m}')
            code.append(f'ds_read_b128 {v(FR + 32 + 4 * m, 4)}, v3 offset:{32 * m}')
        for m in range(8):
            c = '0' if (st == 0 and m == 0) else v(ACC, 16)
            code.append(f'v_mfma_f32_32x32x16_bf16 {v(ACC, 16)}, {v(FR + 4 * m, 4)}, {v(FR + 32 + 4 * m, 4)}, {c}')
    S = sched(code)
    k = int(len(S) * Cfg.inj)
    emit(p, S[:k] + inject + S[k:])
    q = lambda i: f'v{ACC + i}'
    O = FR
    p(f'''
    v_lshlrev_b32 v5, 4, v0
    v_add_u32 v5, s27, v5
    v_lshrrev_b32 v6, 5, v0
    v_lshl_add_u32 v6, v6, 9, v5
    s_mov_b32 s40, 0xaaaaaaaa
    s_mov_b32 s41, 0xaaaaaaaa
    v_add_f32 {q(0)}, {q(0)}, v21
    v_cvt_pk_bf16_f32 v{O}, {q(7)}, {q(6)}
    v_cvt_pk_bf16_f32 v{O + 1}, {q(5)}, {q(4)}
    v_cvt_pk_bf16_f32 v{O + 2}, {q(3)}, {q(2)}
    v_cvt_pk_bf16_f32 v{O + 3}, {q(1)}, {q(0)}
    ds_write_b128 v5, {v(O, 4)} offset:512
    v_cvt_pk_bf16_f32 v{O + 4}, {q(14)}, {q(14)}
    v_cvt_pk_bf16_f32 v{O + 5}, {q(13)}, {q(13)}
    v_cvt_pk_bf16_f32 v{O + 6}, {q(13)}, {q(12)}
    v_cvt_pk_bf16_f32 v{O + 7}, {q(12)}, {q(12)}
    ds_write_b128 v5, {v(O + 4, 4)} offset:{96 * 16}
    ''')
    for k in range(2):
        a_, b_ = q(8 + 2 * k), q(9 + 2 * k); o = O + 8 + 4 * k
        p(f'''
        v_cndmask_b32 v7, {a_}, {b_}, s[40:41]
        v_cvt_pk_bf16_f32 v{o}, {b_}, {b_}
        v_cvt_pk_bf16_f32 v{o + 1}, {b_}, v7
        v_cvt_pk_bf16_f32 v{o + 2}, {a_}, {a_}
        v_mov_b32 v{o + 3}, v{o + 2}
        ds_write_b128 v6, {v(o, 4)} offset:{160 * 16 + 512 * k}
        ''')

def normalize(p):
    M0 = 40960
    p(f'''
    s_lshl_b32 s46, s3, 10
    s_add_u32 m0, s46, {M0}
    s_add_u32 s46, s46, {UC + 4160 + 30}
    v_lshl_add_u32 v8, v0, 2, s46
    s_mov_b32 s48, 0xffff0000
    ''')
    code = []
    for k in range(4):
        B = 64 + 32 * (k & 1)
        for pp in range(2):
            ms = SR + 4 * k + 2 * pp; rn = B + 16 + 2 * pp; F = B + 4 * pp; x = XP + 4 * k + 2 * pp
            code += [f'v_and_b32 v{rn}, s48, v{ms}', f'v_rcp_f32 v{rn}, v{rn}', f'v_lshlrev_b32 v{ms}, 16, v{ms}',
                     f'v_mul_f32 v{rn + 1}, -v{ms}, v{rn}'] + unpack(F, x, 48) + unpack(F + 2, x + 1, 48)
            for h_ in range(2):
                code.append(f'v_pk_fma_f32 {v(F + 2 * h_, 2)}, {v(F + 2 * h_, 2)}, {v(rn, 2)}, {v(rn, 2)} op_sel:[0,0,1] op_sel_hi:[1,0,1]')
        for c in range(4):
            E = B + 8 + c
            code += [f'v_cvt_pk_bf16_f32 v{E}, v{B + c}, v{B + 4 + c}',
                     f'ds_write_addtid_b32 v{E} offset:{UC + 32 - M0 + c * CHS + 256 * k}',
                     f'ds_write_b16 v8, v{E} offset:{c * CHS + 256 * k}',
                     f'ds_write_b16_d16_hi v8, v{E} offset:{c * CHS + 256 * k + 2}']
    emit(p, sched(code))

def conv2(p, fill):
    ACC = 24; KF = [56, 88]; UF = [120, 152]
    p(f'''
    v_and_b32 v8, 15, v0
    v_lshrrev_b32 v9, 4, v0
    v_and_b32 v10, 1, v0
    v_mul_u32_u24 v10, 4158, v10
    v_lshlrev_b32 v11, 1, v8
    v_sub_u32 v11, v11, v10
    v_lshl_add_u32 v11, v9, 4, v11
    s_mul_i32 s46, s3, {CHS}
    s_add_u32 s47, s46, {UC + 4160}
    v_add_u32 v11, s47, v11
    v_add_u32 v12, 1024, v11
    v_add_u32 v13, 2048, v11
    v_add_u32 v14, 3072, v11
    v_lshlrev_b32 v15, 5, v8
    v_lshlrev_b32 v16, 4, v9
    v_sub_u32 v15, v15, v16
    s_mul_i32 s47, s3, 4608
    s_add_u32 s47, s47, {RC + 16 + 512 - 448}
    v_add_u32 v15, s47, v15
    s_waitcnt lgkmcnt(0)
    s_barrier
    ''')
    stamp(p, 4)
    def loads(j0):
        b = j0 & 1; out = []
        kf = lambda d: f'ds_read_b128 {v(KF[b] + 4 * d, 4)}, v15 offset:{512 * d - 64 * j0 + 448}'
        out.append(kf(0))
        for jp in range(8):
            o = 128 * (jp & 1) + 16 * j0
            out.append(f'ds_read2_b32 {v(UF[b] + 4 * jp, 2)}, v{11 + (jp >> 1)} offset0:{o} offset1:{o + 1}')
            out.append(f'ds_read2_b32 {v(UF[b] + 4 * jp + 2, 2)}, v{11 + (jp >> 1)} offset0:{o + 2} offset1:{o + 3}')
        out += [kf(d) for d in range(1, 8)]
        return out
    emit(p, loads(0))
    p(f'''
    v_lshlrev_b32 v16, 2, v9
    v_lshl_add_u32 v16, v8, 4, v16
    s_mul_i32 s47, s3, {CHY}
    s_add_u32 s47, s47, {UC}
    v_add_u32 v16, s47, v16
    v_bfe_u32 v17, v0, 2, 2
    v_mul_u32_u24 v17, {CHY}, v17
    v_and_b32 v18, 3, v0
    v_lshl_add_u32 v17, v18, 3, v17
    v_lshl_add_u32 v17, v9, 5, v17
    s_lshl_b32 s47, s3, 10
    s_add_u32 s47, s47, {UC}
    v_add_u32 v17, s47, v17
    v_mul_u32_u24 v18, 40960, v9
    v_lshl_add_u32 v18, v8, 4, v18
    s_mul_i32 s44, s3, {16 * 40960}
    s_lshl_b32 s45, s50, 8
    s_add_u32 s44, s44, s45
    s_add_u32 s44, s44, {HQ}
    ''')
    order = []
    for d in range(8):
        Is = list(range(d, 8))
        if d == 5: Is = [7, 5, 6]
        if d == 6: Is = [7, 6]
        order += [(I, d) for I in Is]
    F = spread(fill, range(Cfg.jc, 8))
    for j0 in range(8):
        b = j0 & 1
        nx = loads(j0 + 1) if j0 < 7 else []
        if j0: p('s_waitcnt lgkmcnt(0)')
        if j0 == Cfg.jc:
            p('''
            v_cmp_ne_u32 vcc, s60, v253
            s_mov_b32 s8, s4
            s_mov_b32 s9, s5
            s_mov_b32 s11, s7
            s_cmp_eq_u64 vcc, 0
            s_cselect_b32 s10, s6, 0
            ''')
        fl = F.get(j0, []); k0 = 0
        for k, (I, d) in enumerate(order):
            c = v(ACC + 4 * I, 4)
            src = '0' if (j0 == 0 and d == 0) else c
            p(f'{MF} {c}, {v(UF[b] + 4 * (I - d), 4)}, {v(KF[b] + 4 * d, 4)}, {src}')
            if k < len(nx): p(nx[k])
            if k >= 24:
                e = len(fl) * (k - 23) // 12
                emit(p, fl[k0:e]); k0 = e
    stamp(p, 5)
    for I in (0, 1, 2, 3, 4, 5, 6, 7):
        o = 56 + 2 * I
        p(f'v_cvt_pk_bf16_f32 v{o}, v{ACC + 4 * I}, v{ACC + 4 * I + 2}')
        p(f'v_cvt_pk_bf16_f32 v{o + 1}, v{ACC + 4 * I + 1}, v{ACC + 4 * I + 3}')
        p(f'ds_write2st64_b32 v16, v{o}, v{o + 1} offset0:{2 * I} offset1:{2 * I + 1}')
    U_ = 128
    for r in range(16): emit(p, unpack(U_ + 2 * r, XP + r, 48))
    p('s_waitcnt lgkmcnt(0)\ns_barrier')
    Y = 72
    for k in range(4):
        for pp in range(2):
            p(f'ds_read_b64_tr_b16 {v(Y + 4 * k + 2 * pp, 2)}, v17 offset:{512 * (k >> 1) + 256 * pp + 128 * (k & 1)}')
    code = []
    for k in range(4):
        for r in range(4 * k, 4 * k + 4):
            t = 96 + 2 * r
            code += unpack(t, Y + r, 48) + [f'v_pk_add_f32 {v(t, 2)}, {v(t, 2)}, {v(U_ + 2 * r, 2)}', f'v_cvt_pk_bf16_f32 v{Y + r}, v{t}, v{t + 1}']
        code.append(f'buffer_store_dwordx4 {v(Y + 4 * k, 4)}, v18, s[4:7], s44 offen{SC}')
        if k < 3: code.append(f's_add_u32 s44, s44, {4 * 40960}')
    emit(p, code)

def ln_stats(p, sl):
    srd(p, 8, 'x', 2048 * 1280)
    XS = [8, 100]; F = 32
    p(f'''
    v_lshrrev_b32 v1, 4, v0
    v_and_b32 v2, 15, v0
    v_mul_u32_u24 v3, 1280, v1
    v_lshl_add_u32 v3, v2, 4, v3
    s_lshl_b32 s24, s{sl}, 2
    s_add_u32 s24, s24, s3
    s_lshl_b32 s25, s24, 6
    s_add_u32 s25, s25, {STAT}
    s_mul_i32 s24, s24, {8 * 1280}
    ''')
    for n in range(2):
        if n: p('s_add_u32 s24, s24, 5120')
        for i in range(5):
            p(f'buffer_load_dwordx4 {v(XS[n] + 4 * i, 4)}, v3, s[8:11], s24 offen offset:{256 * i}')
    p(f'''
    v_lshl_add_u32 v4, v2, 2, v1
    v_lshlrev_b32 v4, 3, v4
    s_mov_b32 s28, 0xffff0000
    ''')
    for n in range(2):
        X = XS[n]
        for i in range(5):
            for d in range(4):
                k = 4 * i + d
                emit(p, unpack(F + 2 * k, X + k, 28))
            if i == 0:
                p(f'v_pk_add_f32 v[72:73], {v(F, 2)}, {v(F + 2, 2)}')
                p(f'v_pk_add_f32 v[74:75], {v(F + 4, 2)}, {v(F + 6, 2)}')
            else:
                for d in range(4):
                    a_ = 72 + 2 * (d & 1)
                    p(f'v_pk_add_f32 {v(a_, 2)}, {v(a_, 2)}, {v(F + 8 * i + 2 * d, 2)}')
        p('v_pk_add_f32 v[72:73], v[72:73], v[74:75]')
        p('v_add_f32 v72, v72, v73')
        row16_reduce(p, 72)
        p(f'v_mul_f32 v72, {f2u(1 / 640)}, v72')
        for k in range(20):
            p(f'v_pk_add_f32 {v(F + 2 * k, 2)}, {v(F + 2 * k, 2)}, v[72:73] op_sel_hi:[1,0] neg_lo:[0,1] neg_hi:[0,1]')
        for k in range(20):
            a_ = 74 + 2 * (k & 1)
            if k < 2: p(f'v_pk_mul_f32 {v(a_, 2)}, {v(F + 2 * k, 2)}, {v(F + 2 * k, 2)}')
            else: p(f'v_pk_fma_f32 {v(a_, 2)}, {v(F + 2 * k, 2)}, {v(F + 2 * k, 2)}, {v(a_, 2)}')
        p('v_pk_add_f32 v[74:75], v[74:75], v[76:77]')
        p('v_add_f32 v74, v74, v75')
        row16_reduce(p, 74)
        p(f'''
        v_mul_f32 v74, {f2u(1 / 640)}, v74
        v_cvt_pk_bf16_f32 v74, v74, v74
        v_lshlrev_b32 v74, 16, v74
        v_add_f32 v74, {f2u(EPS)}, v74
        v_cvt_pk_bf16_f32 v74, v74, v74
        v_lshlrev_b32 v74, 16, v74
        v_sqrt_f32 v74, v74
        v_cvt_pk_bf16_f32 v{78 + n}, v72, v74
        ''')
    p(TAG)
    p(f'''
    v_cmp_eq_u32 vcc, 0, v2
    v_cndmask_b32 v78, v79, v78, vcc
    v_mov_b32 v79, s60
    s_mov_b32 s30, 0x00030003
    s_mov_b32 s31, 0x00030003
    s_mov_b64 exec, s[30:31]
    buffer_store_dwordx2 v[78:79], v4, s[4:7], s25 offen{SC}
    s_mov_b64 exec, -1
    ''')

def relayout2(p, lab):
    p(f'''
    s_cmp_lt_u32 s20, 20
    s_cbranch_scc1 {lab}_w1
    s_cmp_lt_u32 s20, 40
    s_cbranch_scc1 {lab}_w2
    s_cmp_lt_u32 s20, 88
    s_cbranch_scc1 {lab}_w3
    ''')
    def params(name, rs, nrows, u0, dest, nt, ns, sp, cs):
        srd(p, 8, name, nrows * rs)
        if name == 'w4':
            p(f'''
            s_sub_u32 s24, s20, 88
            s_mul_i32 s35, s24, 205
            s_lshr_b32 s35, s35, 12
            s_mul_i32 s25, s35, 20
            s_sub_u32 s24, s24, s25
            s_lshl_b32 s35, s35, 4
            s_add_u32 s35, s35, s3
            s_lshl_b32 s25, s35, 5
            s_mov_b32 s38, 4
            ''')
        else:
            p(f's_sub_u32 s24, s20, {u0}\ns_mov_b32 s35, s3\ns_mov_b32 s38, 5')
            if sp: p('s_lshr_b32 s25, s3, 1\ns_mul_i32 s25, s25, 80\ns_and_b32 s26, s3, 1\ns_lshl_b32 s26, s26, 5\ns_add_u32 s25, s25, s26')
            else: p('s_lshl_b32 s25, s3, 5')
        p(f's_mul_i32 s25, s25, {rs}\ns_mov_b32 s26, {(160 if sp else 128) * rs}')
        if sp: p(f's_mul_i32 s27, s3, {160 * rs}\ns_add_u32 s27, s27, {64 * rs}')
        else: p(f's_add_u32 s27, s25, {512 * rs}')
        P = nt * 1024
        if name == 'w2':
            p(f'''
            s_lshl_b32 s35, s3, 1
            s_mov_b32 s39, {8 * P}
            s_mov_b32 s40, {(-7 * P) & 0xffffffff}
            s_and_b32 s41, s3, 1
            s_lshl_b32 s41, s41, 1
            s_lshr_b32 s43, s3, 1
            s_add_u32 s41, s41, s43
            s_add_u32 s41, s41, 7
            s_sub_u32 s41, s41, s35
            s_mul_i32 s41, s41, {P}
            ''')
        else:
            p(f's_mov_b32 s39, {4 * P}\ns_mov_b32 s40, {4 * P}\ns_mov_b32 s41, {4 * P}')
        p(f'''
        s_mov_b32 s28, {(8 if sp else 16) * rs}
        s_mov_b32 s29, {(80 if sp else 8) * rs}
        s_mov_b32 s31, {rs}
        s_mov_b32 s32, {dest}
        s_mov_b32 s33, {nt}
        s_mov_b32 s34, {ns * nt}
        s_mov_b32 s36, {cs}
        s_mov_b32 s37, {205 if nt == 5 else 171}
        ''')
    for g in range(40): assert (g * 205) >> 10 == g // 5
    for g in range(96): assert (g * 171) >> 10 == g // 6
    for g in range(60): assert (g * 205) >> 12 == g // 20
    params('w4', 1280, 1536, 88, W4F, 5, 48, False, 0); p(f's_branch {lab}_go')
    p(f'{lab}_w1:'); params('w1', 1280, 640, 0, W1F, 5, 20, False, CS1); p(f's_branch {lab}_go')
    p(f'{lab}_w2:'); params('w2', 1280, 640, 20, W2F, 5, 20, True, 0); p(f's_branch {lab}_go')
    p(f'{lab}_w3:'); params('w3', 3072, 640, 40, W3F, 6, 20, True, CS3)
    p(f'{lab}_go:')
    p(f'''
    v_lshrrev_b32 v3, 1, v0
    v_lshrrev_b32 v4, 4, v0
    v_xor_b32 v3, v3, v4
    v_and_b32 v3, 1, v3
    v_and_b32 v4, 1, v0
    v_lshl_add_u32 v3, v3, 1, v4
    s_lshl_b32 s42, s24, 6
    v_lshl_add_u32 v3, v3, 4, s42
    v_lshrrev_b32 v1, 2, v0
    v_mul_lo_u32 v1, v1, s31
    v_add_u32 v1, v1, v3
    v_bfe_u32 v2, v0, 2, 3
    v_mul_lo_u32 v2, v2, s31
    v_lshrrev_b32 v4, 5, v0
    v_mul_lo_u32 v4, v4, s29
    v_add3_u32 v2, v2, v4, v3
    s_mul_i32 s42, s3, 10240
    s_mov_b32 m0, s42
    s_lshl_b32 s43, s31, 4
    ''')
    for i in range(5):
        if i == 4:
            p(f'''
            s_cmp_eq_u32 s38, 4
            s_cbranch_scc1 {lab}_ld_done
            buffer_load_dwordx4 v2, s[8:11], s27 offen lds
            s_add_u32 m0, m0, 1024
            s_add_u32 s27, s27, s28
            buffer_load_dwordx4 v2, s[8:11], s27 offen lds
            ''')
        else:
            p(f'''
            buffer_load_dwordx4 v1, s[8:11], s25 offen lds
            s_add_u32 m0, m0, 1024
            s_add_u32 s30, s25, s43
            buffer_load_dwordx4 v1, s[8:11], s30 offen lds
            s_add_u32 m0, m0, 1024
            s_add_u32 s25, s25, s26
            ''')
    p(f'{lab}_ld_done:')
    p(f'''
    v_lshrrev_b32 v2, 2, v0
    v_bfe_u32 v3, v0, 4, 1
    v_and_b32 v9, 3, v0
    v_lshlrev_b32 v9, 3, v9
    v_lshl_add_u32 v9, v2, 6, v9
    v_add_u32 v9, s42, v9
    v_lshlrev_b32 v8, 4, v0
    v_mov_b32 v10, 0x3f803f80
    v_mov_b32 v11, 0x3f803f80
    v_mov_b32 v12, 0x3f803f80
    v_mov_b32 v13, 0x3f803f80
    s_mul_i32 s43, s35, s33
    ''')
    for t in range(2):
        p(f'''
        v_xor_b32 v{4 + t}, {t}, v3
        v_lshl_add_u32 v{4 + t}, v{4 + t}, 5, v9
        s_lshl_b32 s48, s24, 1
        s_add_u32 s48, s48, {t}
        s_mul_i32 s49, s48, s37
        s_lshr_b32 s49, s49, 10
        s_mul_i32 s46, s49, s33
        s_sub_u32 s48, s48, s46
        s_mul_i32 s49, s49, s34
        s_add_u32 s48, s48, s49
        s_add_u32 s48, s48, s43
        s_lshl_b32 s48, s48, 10
        s_add_u32 s{44 + t}, s48, s32
        ''')
    for i in range(5):
        if i == 4: p(f's_cmp_eq_u32 s38, 4\ns_cbranch_scc1 {lab}_st_done')
        if i == 0:
            p('s_waitcnt vmcnt(0)'); stamp(p, 23)
        R = 32 + 8 * i
        for t in range(2):
            p(f'ds_read_b64_tr_b16 {v(R + 4 * t, 2)}, v{4 + t} offset:{2048 * i}')
            p(f'ds_read_b64_tr_b16 {v(R + 4 * t + 2, 2)}, v{4 + t} offset:{2048 * i + 1024}')
        for t in range(2):
            p(f'buffer_store_dwordx4 {v(R + 4 * t, 4)}, v8, s[4:7], s{44 + t} offen{SC}')
            if i < 4: p(f's_add_u32 s{44 + t}, s{44 + t}, s{(39, 40, 39, 41)[i]}')
            p(f'{MF} {v(16 + 4 * t, 4)}, {v(R + 4 * t, 4)}, v[10:13], {v(16 + 4 * t, 4) if i else 0}')
    p(f'{lab}_st_done:')
    stamp(p, 24)
    CSL = 40960
    p(f'''
    s_cmp_eq_u32 s36, 0
    s_cbranch_scc1 {lab}_done
    s_lshl_b32 s48, s3, 7
    s_add_u32 s48, s48, {CSL}
    v_and_b32 v2, 48, v0
    v_add_u32 v2, s48, v2
    s_mov_b32 s46, 0x00010001
    s_mov_b32 s47, 0x00010001
    s_mov_b64 exec, s[46:47]
    ds_write_b128 v2, v[16:19]
    ds_write_b128 v2, v[20:23] offset:64
    s_mov_b64 exec, -1
    s_waitcnt lgkmcnt(0)
    s_barrier
    s_cmp_lg_u32 s3, 0
    s_cbranch_scc1 {lab}_done
    v_lshlrev_b32 v2, 2, v0
    v_add_u32 v3, {CSL}, v2
    ds_read_b32 v4, v3
    ds_read_b32 v5, v3 offset:128
    ds_read_b32 v6, v3 offset:256
    ds_read_b32 v7, v3 offset:384
    s_lshl_b32 s48, s24, 7
    s_add_u32 s48, s48, s36
    v_add_f32 v4, v4, v5
    v_add_f32 v6, v6, v7
    v_add_f32 v4, v4, v6
    s_mov_b32 exec_hi, 0
    buffer_store_dword v4, v2, s[4:7], s48 offen{SC}
    s_mov_b32 exec_hi, -1
    {lab}_done:
    ''')

def build(dbg=False):
    Cfg.stamp = dbg
    p = Prog()
    g1 = PG(5, 20, W1F, 25, 120); g2 = PG(5, 20, W2F, 25, 60); g3 = PG(6, 20, W3F, 53, 0); g4 = PG(5, 48, W4F, 25, 120)
    prologue(p, 256, 'k')
    if dbg: p('v_mov_b32 v255, 0')
    stamp(p, 0)
    if dbg: p('s_memtime s[98:99]\ns_waitcnt lgkmcnt(0)\nv_writelane_b32 v255, s98, 30')
    p(f'''
    s_add_u32 s56, s92, {EPW}
    s_addc_u32 s57, s93, 0
    s_load_dword s60, s[56:57], 0
    s_cmp_ge_u32 s2, 160
    s_cbranch_scc1 role_b
    ''')
    def ids():
        p('''
        s_lshr_b32 s28, s2, 3
        s_and_b32 s29, s2, 7
        s_and_b32 s25, s28, 7
        s_lshr_b32 s24, s28, 3
        s_lshl_b32 s30, s29, 2
        s_add_u32 s24, s24, s30
        s_lshl_b32 s62, s24, 3
        s_add_u32 s62, s62, s25
        s_lshl_b32 s24, s24, 2
        s_add_u32 s24, s24, s3
        s_and_b32 s53, s28, 15
        s_lshr_b32 s52, s28, 4
        s_lshl_b32 s30, s29, 1
        s_add_u32 s52, s52, s30
        s_lshl_b32 s63, s52, 4
        s_add_u32 s63, s63, s53
        s_lshl_b32 s52, s52, 2
        s_add_u32 s52, s52, s3
        s_lshl_b32 s52, s52, 1
        s_and_b32 s51, s3, 1
        v_lshlrev_b32 v1, 4, v0
        ''')
    W1DMA = dma(g1, 0, 10) + dma(g1, 40, 15)
    p('s_and_b32 s50, s2, 7\ns_mul_i32 s50, s50, 20\ns_lshr_b32 s51, s2, 3\ns_add_u32 s50, s50, s51')
    emit_kgen_loads(p, 50)
    srd(p, 44, 'x', 2048 * 1280)
    p(f'''
    v_mul_u32_u24 v254, 2560, v0
    s_mul_i32 s42, s3, {512 * 1280}
    s_lshl_b32 s43, s50, 3
    s_add_u32 s42, s42, s43
    ''')
    for k in range(4):
        p(f'buffer_load_dwordx2 {v(XP + 4 * k, 2)}, v254, s[44:47], s42 offen')
        p(f'buffer_load_dwordx2 {v(XP + 4 * k + 2, 2)}, v254, s[44:47], s42 offen offset:1280')
        if k < 3: p(f's_add_u32 s42, s42, {128 * 1280}')
    p(f'''
    s_cmp_lg_u32 s3, 0
    s_cbranch_scc1 nozero
    v_lshrrev_b32 v5, 4, v0
    v_mul_u32_u24 v5, {CHS}, v5
    v_bfe_u32 v6, v0, 3, 1
    v_mul_u32_u24 v6, 4160, v6
    v_and_b32 v7, 7, v0
    v_lshl_add_u32 v5, v7, 2, v5
    v_add3_u32 v5, v5, v6, v2
    v_add_u32 v5, {UC}, v5
    ds_write_b32 v5, v2
    nozero:
    v_lshlrev_b32 v23, 4, v0
    s_lshl_b32 s42, s3, 12
    s_add_u32 s42, s42, {STAT}
    ''')
    stamp(p, 1)
    SL = [f'buffer_load_dwordx4 {v(SR + 4 * k, 4)}, v23, s[4:7], s42 offen offset:{1024 * k}{SC}' for k in range(4)]
    kgen2(p, SL)
    p(TAG)
    stamp(p, 2)
    if dbg:
        p(f's_waitcnt vmcnt({len(SL)})'); stamp(p, 23); p('s_waitcnt vmcnt(0)'); stamp(p, 24)
    p(f's_mov_b32 s61, {Cfg.spin}\nsa_loop:\ns_waitcnt vmcnt(0)')
    for k in range(8): p(f'v_xor_b32 v{SR + 2 * k + 1}, s60, v{SR + 2 * k + 1}')
    p(f'''
    v_or3_b32 v9, v{SR + 1}, v{SR + 3}, v{SR + 5}
    v_or3_b32 v10, v{SR + 7}, v{SR + 9}, v{SR + 11}
    v_or3_b32 v9, v9, v{SR + 13}, v{SR + 15}
    v_or_b32 v9, v9, v10
    v_cmp_ne_u32 vcc, 0, v9
    s_cbranch_vccz sa_out
    s_sub_u32 s61, s61, 1
    s_cbranch_scc1 sa_out
    s_sleep 4
    ''')
    emit(p, SL)
    p('s_branch sa_loop\nsa_out:')
    if dbg: p(f's_sub_u32 s61, {Cfg.spin}, s61\nv_writelane_b32 v255, s61, 29')
    stamp(p, 3)
    ids()
    def w1flags():
        p(f'''
        s_mul_i32 s56, s25, 5
        s_lshr_b32 s56, s56, 1
        s_lshl_b32 s56, s56, {Cfg.FS}
        s_add_u32 s56, s56, {F0}
        v_min_u32 v253, 2, v0
        v_lshlrev_b32 v253, {Cfg.FS}, v253
        s_mov_b64 s[58:59], 7
        ''')
    normalize(p)
    w1flags()
    p(f'buffer_load_dword v253, v253, s[4:7], s56 offen{SC}')
    conv2(p, dma(g1, 0, 10, 's[8:11]') + dma(g1, 40, 15, 's[8:11]'))
    stamp(p, 6)
    publish(p, 's2', F1, 'pba')
    p('s_cmp_lg_u32 s10, 0\ns_cbranch_scc1 join1')
    w1flags()
    spin(p, 'pb0', 1, 254)
    emit(p, W1DMA)
    p('s_branch join1')
    p('role_b:')
    p('s_sub_u32 s20, s2, 160\ns_mov_b32 s22, 1\ns_cmp_lt_u32 s20, 32\ns_cbranch_scc1 rl_top\ns_sub_u32 s21, s20, 32')
    ln_stats(p, 21)
    p('s_mov_b32 s22, 0')
    stamp(p, 1)
    p('rl_top:')
    relayout2(p, 'rl')
    p('s_cmp_eq_u32 s22, 0\ns_cbranch_scc1 rl_tag')
    p(TAG)
    p('s_mov_b32 s22, 0\nrl_tag:')
    publish(p, 's20', F0, 'pbr')
    p('s_add_u32 s20, s20, 96\ns_cmp_ge_u32 s20, 148\ns_cbranch_scc1 rl_end')
    stamp(p, 2)
    p('s_branch rl_top\nrl_end:')
    flag_store(p, 'pbf', [('s2', F1)])
    stamp(p, 3)
    ids()
    w1flags()
    spin(p, 'pb', 1, 254)
    emit(p, W1DMA)
    stamp(p, 4)
    if Cfg.warm:
        poll(p, 'pc', lambda: p(f'v_lshlrev_b32 v253, {Cfg.FS}, v0\ns_mul_i32 s56, s3, {24 << Cfg.FS}\ns_add_u32 s56, s56, {F1 + (160 << Cfg.FS)}\ns_mov_b32 s58, 0xffffff\ns_mov_b32 s59, 0'), True)
        p(f'''
        s_sub_u32 s28, s2, 160
        s_lshr_b32 s28, s28, 3
        s_lshl_b32 s28, s28, 2
        s_add_u32 s28, s28, s3
        s_lshl_b32 s28, s28, 16
        s_add_u32 s28, s28, {W2F}
        v_lshlrev_b32 v5, 7, v0
        ''')
        for k in range(8):
            p(f'buffer_load_dword v{16 + k}, v5, s[4:7], s28 offen{SC}')
            if k < 7: p('s_add_u32 s28, s28, 8192')
    stamp(p, 5)
    p('join1:')
    stamp(p, 7)
    A0, A1, SUM, GR, ONES, WB, X, CS, HP, HX = 16, 36, 56, 64, 72, 76, 136, 228, 216, 228
    def ldsbases(kh):
        if kh: p('s_mul_i32 s28, s51, 5120\nv_add_u32 v2, s28, v1\nv_add_u32 v3, 65536, v2\nv_add_u32 v15, 131072, v2')
        else: p('v_add_u32 v3, 65536, v1\nv_add_u32 v15, 131072, v1')
    def wreads(g, WB_, per, b0):
        def f(i):
            out = []
            for t in range(g.NT):
                o = ((g.base + per * i) % 160 + t) * 1024
                out.append(f'ds_read_b128 {v(WB_ + 4 * g.NT * (i % 3) + 4 * t, 4)}, v{(b0, 3, 15)[o >> 16]} offset:{o & 65535}')
            return out
        return f
    def exaddr(vw, vr, EXB):
        p(f'''
        s_mul_i32 s28, s3, 5120
        s_xor_b32 s29, s3, 1
        s_mul_i32 s29, s29, 5120
        s_add_u32 s28, s28, {EXB}
        s_add_u32 s29, s29, {EXB}
        v_add_u32 v{vw}, s28, v1
        v_add_u32 v{vr}, s29, v1
        ''')
    ldsbases(True)
    class g5: NT = 5
    kern.cs_loads(p, g5, CS, CS1, 29)
    EXS = 20480
    exaddr(5, 6, 0)
    p(f'''
    s_lshl_b32 s28, s51, 3
    v_add_u32 v4, s28, v1
    s_lshl_b32 s28, s3, 11
    s_add_u32 s28, s28, {EXS}
    v_add_u32 v7, s28, v1
    s_lshl_b32 s28, s3, 9
    s_add_u32 s28, s28, {EXS + 8192}
    v_lshl_add_u32 v8, v0, 2, s28
    s_and_b32 s29, s3, 2
    s_lshl_b32 s28, s29, 9
    s_lshl_b32 s30, s51, 8
    s_add_u32 s28, s28, s30
    s_add_u32 s28, s28, {EXS + 8192}
    v_lshl_add_u32 v9, v0, 2, s28
    s_lshl_b32 s28, s29, 11
    s_lshl_b32 s30, s51, 10
    s_add_u32 s28, s28, s30
    s_add_u32 s28, s28, {EXS}
    v_bfe_u32 v10, v0, 2, 2
    v_lshlrev_b32 v10, 8, v10
    v_and_b32 v11, 15, v0
    v_lshl_add_u32 v10, v11, 4, v10
    v_and_b32 v11, 3, v0
    v_lshl_add_u32 v10, v11, 2, v10
    v_add_u32 v10, s28, v10
    s_lshl_b32 s28, s25, 11
    s_lshl_b32 s29, s25, 9
    s_add_u32 s29, s29, {16384 - 2048}
    v_lshlrev_b32 v11, 7, v0
    v_add_u32 v14, s28, v11
    v_add_u32 v11, s29, v11
    v_cmp_gt_u32 vcc, 16, v0
    v_cndmask_b32 v14, v11, v14, vcc
    v_bfrev_b32 v11, 1
    v_cmp_gt_u32 vcc, 20, v0
    v_cndmask_b32 v14, v11, v14, vcc
    s_lshr_b32 s30, s24, 1
    s_mul_i32 s30, s30, 40960
    s_add_u32 s30, s30, {HQ}
    s_mul_i32 s31, s25, 5120
    s_add_u32 s31, s31, s30
    s_add_u32 s32, s31, 4096
    s_lshl_b32 s28, s51, 11
    s_add_u32 s30, s30, s28
    ''')
    for k in range(4): p(f'v_mov_b32 v{ONES + k}, 0x3f803f80')
    poll(p, 'p1', lambda: p(f'v_lshlrev_b32 v253, {Cfg.FS}, v0\ns_lshl_b32 s56, s3, {6 + Cfg.FS}\ns_add_u32 s56, s56, {F1}\ns_mov_b64 s[58:59], -1\ns_lshl_b32 s95, s3, 6\ns_sub_u32 s95, s2, s95'), True, 's95')
    stamp(p, 8)
    def xl1(i):
        L = ['s_add_u32 s30, s30, 4096'] if i else []
        return L + [f'buffer_load_dwordx4 {v(X + 8 * i + 4 * h_, 4)}, v1, s[4:7], s30 offen offset:{1024 * h_}{SC}' for h_ in range(2)]
    def mf1(i):
        c = lambda r: v(r, 4) if i else '0'
        M = []
        for t in range(5):
            for sl in range(2):
                r = (A0, A1)[sl] + 4 * t
                M.append(f'{MF} {v(r, 4)}, {v(WB + 20 * (i % 3) + 4 * t, 4)}, {v(X + 8 * i + 4 * sl, 4)}, {c(r)}')
            if t < 2:
                x = v(X + 8 * i + 4 * t, 4)
                M.append(f'{MF} {v(SUM + 4 * t, 4)}, {v(ONES, 4)}, {x}, {c(SUM + 4 * t)}')
                M.append(f'{MF} {v(GR + 4 * t, 4)}, {x}, {x}, {c(GR + 4 * t)}')
        return M
    def epoch():
        p(f'''
        s_or_b32 s29, s2, s3
        s_cmp_lg_u32 s29, 0
        s_cbranch_scc1 noep
        v_mov_b32 v252, s60
        v_mov_b32 v253, 0
        s_mov_b32 s56, {EPW}
        s_mov_b64 exec, 1
        buffer_store_dword v252, v253, s[4:7], s56 offen sc1
        s_mov_b64 exec, -1
        noep:
        ''')
    HPL = [f'buffer_load_dwordx2 {v(HP + 2 * t, 2)}, v4, s[4:7], s{31 if t < 4 else 32} offen offset:{1024 * (t & 3)}{SC}' for t in range(5)]
    ex = spread(dma(g2, 0, 15) + HPL, range(10 - Cfg.U1, 10))
    mainloop(p, 10, 5, mf1, wreads(g1, WB, 10, 2), xl1, Cfg.U1, ex,
             lambda i: [f'v_swap_b32 v{X + 8 * i + 2 + k}, v{X + 8 * i + 4 + k}' for k in range(2)])
    stamp(p, 9)
    TX = WB
    p('s_barrier')
    if Cfg.early: emit(p, dma(g2, 60, 10))
    p(f'''
    ds_write_b128 v7, {v(GR, 4)}
    ds_write_b128 v7, {v(GR + 4, 4)} offset:1024
    ds_write2st64_b32 v8, v{SUM}, v{SUM + 4} offset0:0 offset1:1
    s_cmp_lg_u32 s51, 0
    s_cbranch_scc1 x1_odd
    ''')
    xr = [f'ds_read2st64_b32 v[8:9], v9 offset0:0 offset1:2', f'ds_read2st64_b32 v[10:11], v10 offset0:0 offset1:8'] + \
         [f'ds_read_b128 {v(TX + 4 * t, 4)}, v6 offset:{1024 * t}' for t in range(5)]
    for t in range(5): p(f'ds_write_b128 v5, {v(A1 + 4 * t, 4)} offset:{1024 * t}')
    p('s_waitcnt lgkmcnt(0)\ns_barrier'); emit(p, xr)
    for k in range(10): p(f'v_pk_add_f32 {v(A0 + 2 * k, 2)}, {v(A0 + 2 * k, 2)}, {v(TX + 2 * k, 2)}')
    p('s_branch x1_join\nx1_odd:')
    for t in range(5): p(f'ds_write_b128 v5, {v(A0 + 4 * t, 4)} offset:{1024 * t}')
    p('s_waitcnt lgkmcnt(0)\ns_barrier'); emit(p, xr)
    for k in range(10): p(f'v_pk_add_f32 {v(A0 + 2 * k, 2)}, {v(A1 + 2 * k, 2)}, {v(TX + 2 * k, 2)}')
    p('x1_join:')
    K, ONE, O, T = 56, 58, 60, 136
    code = [f'v_mov_b32 v{K}, {f2u(C0)}', f'v_mov_b32 v{K + 1}, {f2u(C1)}', f'v_mov_b32 v{ONE}, 1.0',
            'v_add_f32 v8, v8, v9', 'v_add_f32 v10, v10, v11',
            f'v_mul_f32 v8, {f2u(1 / 640)}, v8', 'v_mul_f32 v9, v8, v8', f'v_mov_b32 v13, {f2u(1 / 640)}',
            'v_fma_f32 v10, v10, v13, -v9', 'v_max_f32 v10, 0, v10', f'v_add_f32 v11, {f2u(EPS)}, v10', 'v_rsq_f32 v12, v11',
            'v_mul_f32 v11, v12, v12', f'v_mov_b32 v13, {f2u(EPS)}', 'v_fma_f32 v11, v11, v10, v13', 'v_rsq_f32 v11, v11',
            'v_mul_f32 v13, -v8, v12', 'v_mul_f32 v10, v12, v11', 'v_mul_f32 v11, v13, v11']
    for k in range(10):
        A = A0 + 2 * k; t = T + 2 * k
        code += [f'v_pk_mul_f32 {v(CS + 2 * k, 2)}, {v(CS + 2 * k, 2)}, v[10:11] op_sel:[0,1] op_sel_hi:[1,1]',
                 f'v_pk_fma_f32 {v(A, 2)}, {v(A, 2)}, v[10:11], {v(CS + 2 * k, 2)} op_sel_hi:[1,0,1]']
        code += gelu_code(A, t, K, ONE, O + k)
    emit(p, sched(code))
    frag_store80(p, O, H1F)
    m = p.mark()
    if not Cfg.early: emit(p, dma(g2, 60, 10))
    stamp(p, 10)
    publish(p, 's62', F2, 'pb1', m, f'buffer_load_dword v251, v14, s[4:7], s28 offen{SC}')
    epoch()
    stamp(p, 11)
    if Cfg.warm:
        p(f'''
        s_lshr_b32 s28, s2, 3
        s_lshl_b32 s28, s28, 2
        s_add_u32 s28, s28, s3
        s_mul_i32 s28, s28, 15360
        s_add_u32 s28, s28, {W4F}
        s_add_u32 s29, s28, 8192
        v_lshlrev_b32 v5, 7, v0
        buffer_load_dword v249, v5, s[4:7], s28 offen{SC}
        buffer_load_dword v250, v5, s[4:7], s29 offen{SC}
        ''')
    p('''
    v_and_b32 v9, 15, v0
    v_lshlrev_b32 v9, 1, v9
    v_and_b32 v10, 48, v0
    v_lshlrev_b32 v10, 4, v10
    s_movk_i32 s32, 0x800
    v_bfrev_b32 v56, 1
    s_mov_b32 s33, 0xffff0000
    s_lshr_b32 s29, s24, 1
    s_lshl_b32 s29, s29, 5
    s_lshl_b32 s30, s51, 1
    ''')
    for ds_, sl, expr in ((0, 0, 's_sub_u32 s28, s29, 1'), (0, 1, 's_sub_u32 s28, s29, s30'),
                          (1, 0, 's_add_u32 s28, s29, s30\ns_add_u32 s28, s28, 1'), (1, 1, 's_add_u32 s28, s29, 2')):
        p(expr)
        p(f'''
        v_add_u32 v11, s28, v9
        v_cmp_gt_u32 vcc, s32, v11
        v_lshrrev_b32 v57, 5, v11
        v_and_b32 v58, 1, v11
        v_lshl_add_u32 v57, v57, 1, v58
        v_mul_u32_u24 v57, 20480, v57
        v_bfe_u32 v11, v11, 1, 4
        v_lshl_add_u32 v57, v11, 4, v57
        v_add_u32 v57, v57, v10
        v_cndmask_b32 v{5 + 2 * ds_ + sl}, v56, v57, vcc
        ''')
    for k in range(10):
        emit(p, unpack(HX + 2 * k, HP + k, 33))
        p(f'v_pk_fma_f32 {v(A0 + 2 * k, 2)}, {v(HX + 2 * k, 2)}, v[12:13], v[12:13] op_sel:[0,0,1] op_sel_hi:[1,0,1]')
    exaddr(9, 10, 120 * 1024)
    CS3R = 204
    p(f'''
    s_lshl_b32 s30, s51, 13
    s_add_u32 s30, s30, {H1F}
    s_lshl_b32 s31, s51, 11
    s_add_u32 s31, s31, {H1F + 16384}
    v_and_b32 v4, 48, v0
    s_mul_i32 s32, s53, 384
    s_add_u32 s32, s32, {CS3}
    ''')
    def su3():
        p(f'''
        s_and_b32 s56, s62, 0xf8
        s_sub_u32 s56, s56, 8
        v_add_u32 v253, s56, v0
        s_movk_i32 s57, 0x100
        v_cmp_gt_u32 vcc, s57, v253
        v_lshlrev_b32 v253, {Cfg.FS}, v253
        s_and_b32 s58, vcc_lo, 0xffffff
        s_mov_b32 s59, 0
        s_sub_u32 s95, s62, s56
        s_mov_b32 s56, {F2}
        ''')
    poll(p, 'p2', su3, False, 's95')
    stamp(p, 12)
    def xl2(i):
        L = ['s_add_u32 s30, s30, 4096'] if i == 4 else []
        ds_ = (i >> 2) if i < 8 else i - 8
        so, off = (30, 1024 * (i & 3)) if i < 8 else (31, 1024 * (i - 8))
        return L + [f'buffer_load_dwordx4 {a(8 * i + 4 * sl, 4)}, v{5 + 2 * ds_ + sl}, s[4:7], s{so} offen offset:{off}{SC}' for sl in range(2)]
    def mfk(AS, WB_):
        def f(i):
            M = []
            for t in range(5):
                for sl in range(2):
                    r = AS[sl] + 4 * t
                    M.append(f'{MF} {v(r, 4)}, {v(WB_ + 20 * (i % 3) + 4 * t, 4)}, {a(8 * i + 4 * sl, 4)}, {v(r, 4) if (i or not sl) else 0}')
            return M
        return f
    C3L = [f'buffer_load_dwordx4 {v(CS3R + 4 * t, 4)}, v4, s[4:7], s32 offen offset:{64 * t}{SC}' for t in range(6)]
    ex = spread(dma(g3, 0, 15) + C3L, range(10 - Cfg.U2, 10))
    mainloop(p, 10, 5, mfk((A0, A1), WB), wreads(g2, WB, 10, 2), xl2, Cfg.U2, ex)
    stamp(p, 13)
    def exch(vw, vr, Akeep, Agive, fill=[]):
        p('s_barrier')
        for t in range(5): p(f'ds_write_b128 v{vw}, {v(Agive + 4 * t, 4)} offset:{1024 * t}')
        emit(p, fill)
        p('s_waitcnt lgkmcnt(0)\ns_barrier')
        for t in range(5): p(f'ds_read_b128 {v(TX + 4 * t, 4)}, v{vr} offset:{1024 * t}')
        return [f'v_pk_add_f32 {v(Akeep + 2 * k, 2)}, {v(Akeep + 2 * k, 2)}, {v(TX + 2 * k, 2)}' for k in range(10)]
    code = exch(9, 10, A0, A1, dma(g3, 60, 15) if Cfg.early else [])
    O = 60
    code += ['v_mov_b32 v8, 0', 'v_mov_b32 v9, 0', 'v_mov_b32 v10, 0', 'v_mov_b32 v11, 0', 'v_lshlrev_b32 v4, 3, v0']
    for k in range(10):
        A = A0 + 2 * k
        code += [f'v_cvt_pk_bf16_f32 v{O + k}, v{A}, v{A + 1}',
                 f'v_dot2c_f32_bf16 v{8 + 2 * (k & 1)}, v{O + k}, v{ONES}', f'v_dot2c_f32_bf16 v{9 + 2 * (k & 1)}, v{O + k}, v{O + k}']
    code += ['v_pk_add_f32 v[8:9], v[8:9], v[10:11]'] + qreduce(8, 10) + qreduce(9, 11)
    emit(p, sched(code))
    frag_store80(p, O, X1F)
    p(f'''
    s_lshl_b32 s29, s24, 3
    s_add_u32 s29, s29, s25
    s_lshl_b32 s29, s29, 7
    s_add_u32 s29, s29, {PS2}
    s_mov_b64 exec, 0xffff
    buffer_store_dwordx2 v[8:9], v4, s[4:7], s29 offen{SC}
    s_mov_b64 exec, -1
    ''')
    m = p.mark()
    HA = [f'v_pk_add_f32 {v(HX + 2 * k, 2)}, {v(HX + 2 * k, 2)}, {v(A0 + 2 * k, 2)}' for k in range(10)]
    emit(p, HA if Cfg.early else weave(dma(g3, 60, 15), HA))
    stamp(p, 14)
    publish(p, 's62', F3, 'pb2', m, f'buffer_load_dword v251, v14, s[4:7], s28 offen{SC}')
    stamp(p, 15)
    CS = CS3R; PS = 136; WB3 = 64
    ldsbases(False)
    p(f'''
    v_and_b32 v6, 15, v0
    v_and_b32 v7, 48, v0
    v_lshlrev_b32 v7, 4, v7
    v_lshl_add_u32 v7, v6, 3, v7
    s_lshl_b32 s29, s52, 10
    s_add_u32 s29, s29, {PS2}
    s_mul_i32 s30, s52, 20480
    s_add_u32 s30, s30, {X1F}
    s_add_u32 s31, s30, 20480
    v_lshlrev_b32 v14, 7, v0
    v_add_u32 v5, {49152 - 3072}, v14
    v_cmp_gt_u32 vcc, 24, v0
    v_cndmask_b32 v14, v5, v14, vcc
    v_bfrev_b32 v5, 1
    v_cmp_gt_u32 vcc, 48, v0
    v_cndmask_b32 v14, v5, v14, vcc
    ''')
    def su4():
        p(f'''
        s_and_b32 s56, s63, 0xf0
        s_sub_u32 s95, s62, s56
        s_lshl_b32 s56, s56, {Cfg.FS}
        s_add_u32 s56, s56, {F3}
        v_lshlrev_b32 v253, {Cfg.FS}, v0
        s_mov_b64 s[58:59], 0xffff
        ''')
    poll(p, 'p3', su4, False, 's95')
    stamp(p, 16)
    acc3 = lambda mt, t: 16 + 24 * mt + 4 * t
    for mt in range(2):
        for i in range(2):
            p(f'buffer_load_dwordx2 {v(PS + 4 * mt + 2 * i, 2)}, v7, s[4:7], s29 offen offset:{1024 * mt + 128 * i}{SC}')
    def xl3(i):
        L = ['s_add_u32 s30, s30, 4096', 's_add_u32 s31, s31, 4096'] if i and i % 4 == 0 else []
        return L + [f'buffer_load_dwordx4 {a(8 * i + 4 * mt, 4)}, v1, s[4:7], s{30 + mt} offen offset:{1024 * (i & 3)}{SC}' for mt in range(2)]
    def mf3(i):
        return [f'{MF} {v(acc3(mt, t), 4)}, {v(WB3 + 24 * (i % 3) + 4 * t, 4)}, {a(8 * i + 4 * mt, 4)}, {v(acc3(mt, t), 4) if i else 0}'
                for t in range(6) for mt in range(2)]
    code = [f'v_mov_b32 v13, {f2u(1 / 640)}']
    for mt in range(2):
        r = PS + 4 * mt
        code += [f'v_pk_add_f32 {v(r, 2)}, {v(r, 2)}, {v(r + 2, 2)}'] + qreduce(r, r + 2) + qreduce(r + 1, r + 3) + [
            f'v_mul_f32 v{r}, v13, -v{r}', f'v_mul_f32 v{r + 2}, v{r}, v{r}', f'v_fma_f32 v{r + 1}, v{r + 1}, v13, -v{r + 2}',
            f'v_max_f32 v{r + 1}, 0, v{r + 1}', f'v_add_f32 v{r + 1}, {f2u(EPS)}, v{r + 1}', f'v_rsq_f32 v{r + 1}, v{r + 1}',
            f'v_mul_f32 v{r}, v{r}, v{r + 1}']
    n3 = 20 - Cfg.U3
    D4 = dma(g4, 0, 10) + (dma(g4, 40, Cfg.m3) if Cfg.m3 else [])
    ex = spread(D4, range(max(n3, 10) if Cfg.m3 else n3, 20))
    for k_, L in spread(sched(code), range(0, 8)).items(): ex[k_] = ex.get(k_, []) + L
    mainloop(p, 20, 6, mf3, wreads(g3, WB3, 6, 1), xl3, Cfg.U3, ex, None, {10: lambda: p('s_barrier')} if Cfg.m3 else {})
    stamp(p, 17)
    p('s_barrier')
    K, ONE, O, T = 8, 10, 64, 144
    p(f'''
    v_mov_b32 v{K}, {f2u(C0)}
    v_mov_b32 v{K + 1}, {f2u(C1)}
    v_mov_b32 v{ONE}, 1.0
    s_mul_i32 s30, s52, 49152
    s_mul_i32 s31, s53, 3072
    s_add_u32 s30, s30, s31
    s_add_u32 s30, s30, {H3F}
    s_add_u32 s31, s30, 49152
    ''')
    code = []
    for mt in range(2):
        c2 = []
        for k in range(12):
            A = acc3(mt, 0) + 2 * k; t = T + 2 * k + 24 * mt; r = PS + 4 * mt
            c2 += [f'v_pk_mul_f32 {v(t, 2)}, {v(CS + 2 * k, 2)}, {v(r, 2)} op_sel_hi:[1,0]',
                   f'v_pk_fma_f32 {v(A, 2)}, {v(A, 2)}, {v(r, 2)}, {v(t, 2)} op_sel:[0,1,0] op_sel_hi:[1,1,1]']
            c2 += gelu_code(A, t, K, ONE, O + 12 * mt + k)
            if k % 4 == 3:
                c2.append(f'buffer_store_dwordx4 {v(O + 12 * mt + k - 3, 4)}, v1, s[4:7], s{30 + mt} offen offset:{1024 * (k // 4)}{SC}')
        code += sched(c2)
    e3 = min(Cfg.e3, 30 - Cfg.m3)
    if e3: code = weave(code, dma(g4, 40 + 4 * Cfg.m3, e3), 0.0, Cfg.w3)
    emit(p, code)
    m = p.mark()
    if e3 + Cfg.m3 < 30: emit(p, dma(g4, 40 + 4 * (Cfg.m3 + e3), 30 - Cfg.m3 - e3))
    stamp(p, 18)
    publish(p, 's63', F4, 'pb3', m, f'buffer_load_dword v251, v14, s[4:7], s30 offen{SC}')
    stamp(p, 19)
    srd(p, 8, 'out', 2048 * 1280)
    ldsbases(True)
    exaddr(9, 10, 0)
    p(f'''
    v_and_b32 v5, 15, v0
    v_mul_u32_u24 v5, 2560, v5
    v_lshrrev_b32 v7, 4, v0
    v_lshl_add_u32 v6, v7, 3, v5
    v_and_b32 v8, 1, v7
    v_lshl_add_u32 v5, v8, 5, v5
    v_lshrrev_b32 v7, 1, v7
    v_lshl_add_u32 v5, v7, 4, v5
    s_lshr_b32 s32, s24, 1
    s_lshl_b32 s32, s32, 5
    s_add_u32 s32, s32, s51
    s_mul_i32 s32, s32, 1280
    s_mul_i32 s33, s25, 160
    s_add_u32 s32, s32, s33
    s_lshl_b32 s28, s51, 10
    s_add_u32 s28, s28, {H3F}
    s_mul_i32 s30, s24, 49152
    s_add_u32 s30, s30, s28
    s_xor_b32 s31, s24, 1
    s_mul_i32 s31, s31, 49152
    s_add_u32 s31, s31, s28
    ''')
    def su5():
        p(f'''
        s_and_b32 s56, s62, 0xf0
        s_sub_u32 s95, s63, s56
        s_lshl_b32 s56, s56, {Cfg.FS}
        s_add_u32 s56, s56, {F4}
        v_lshlrev_b32 v253, {Cfg.FS}, v0
        s_mov_b64 s[58:59], 0xffff
        ''')
    poll(p, 'p4', su5, False, 's95')
    stamp(p, 20)
    def xl4(i):
        L = ['s_add_u32 s30, s30, 4096', 's_add_u32 s31, s31, 4096'] if i and i % 2 == 0 else []
        return L + [f'buffer_load_dwordx4 {a(8 * i + 4 * sl, 4)}, v1, s[4:7], s{30 + sl} offen offset:{2048 * (i & 1)}{SC}' for sl in range(2)]
    mk = {}
    def setmk(k): return lambda: mk.__setitem__(k, p.mark())
    ex = spread(dma(g4, 160, 10) + [setmk(0)], range(3, 7))
    ex.update(spread(dma(g4, 200, 10) + [setmk(1)], range(7, 11)))
    def wb(k):
        def f(): p.wait_vm(mk[k]); p('s_barrier')
        return f
    bar = lambda: p('s_barrier')
    WB4 = 36; TX = 96
    mainloop(p, 24, 5, mfk((HX, 16), WB4), wreads(g4, WB4, 10, 2), xl4, Cfg.U4, ex, None, {3: bar, 7: bar, 14: wb(0), 18: wb(1)})
    stamp(p, 21)
    emit(p, exch(9, 10, HX, 16))
    O = 120
    for pr in range(2):
        o = O + 4 * pr
        for h_ in range(2):
            A = HX + 4 * (2 * pr + h_)
            p(f'v_cvt_pk_bf16_f32 v{o + 2 * h_}, v{A}, v{A + 1}\nv_cvt_pk_bf16_f32 v{o + 2 * h_ + 1}, v{A + 2}, v{A + 3}')
        p(f'v_permlane16_swap_b32 v{o}, v{o + 2}\nv_permlane16_swap_b32 v{o + 1}, v{o + 3}')
        p(f'buffer_store_dwordx4 {v(o, 4)}, v5, s[8:11], s32 offen offset:{64 * pr}')
    A = HX + 16
    p(f'v_cvt_pk_bf16_f32 v{O + 8}, v{A}, v{A + 1}\nv_cvt_pk_bf16_f32 v{O + 9}, v{A + 2}, v{A + 3}')
    p(f'buffer_store_dwordx2 {v(O + 8, 2)}, v6, s[8:11], s32 offen offset:128')
    if dbg:
        p('s_waitcnt vmcnt(0)')
        stamp(p, 22)
        p('s_memtime s[98:99]\ns_waitcnt lgkmcnt(0)\nv_writelane_b32 v255, s98, 31')
        p(f'''
        s_lshl_b32 s29, s2, 2
        s_add_u32 s29, s29, s3
        s_lshl_b32 s29, s29, 7
        s_add_u32 s29, s29, {DBGW}
        v_lshlrev_b32 v2, 2, v0
        s_mov_b32 exec_hi, 0
        buffer_store_dword v255, v2, s[4:7], s29 offen
        ''')
    p('k_end:\ns_endpgm')
    return p

if __name__ == '__main__':
    import sys
    from build import HDR
    out = sys.argv[1]; dbg = 'dbg' in sys.argv[2:]
    for a_ in sys.argv[2:]:
        if '=' in a_:
            k_, v_ = a_.split('='); setattr(Cfg, k_, eval(v_))
    name = 'pers_kernel' if 'list' in sys.argv[2:] else NAME
    open(out, 'w').write(file_text([(name, build(dbg), 256, 256, LDSZ)], HDR))
```

```python
import kern
from kern import *
kern.SC = ' sc1'
SC = ' sc1'
LDSZ = 163840
F0, F1, F2, F3, F4, EPW = [FLG + 65536 * k for k in range(6)]
NAME = 'sequential_preLN__ssm_conv_s4d__mixer_s_mlp__prompt_kernel'
FB, UC, RC = 0, 69632, 103040
CHY = 8512
XP, SR = 208, 224
MF = 'v_mfma_f32_16x16x32_bf16'

TAG = 's_mul_i32 s60, s60, 0x9e3779b1\ns_add_u32 s60, s60, 0x7f4a7c15'
class Cfg:
    stamp = False
    spin = 0x10000
    inj = 0.72
    U1 = 6; U2 = 7; U3 = 8; U4 = 10
    pf = False
    warm = False
    FS = 7
    pw = 1
    own = True
    jc = 2
    m3 = 15
    slp = 0
    early = True
    w3 = 0.3
    fast = None
    fast1 = None
    osc = ''
    e3 = 15

def stamp(p, i):
    if Cfg.stamp:
        p(f's_memrealtime s[98:99]\ns_waitcnt lgkmcnt(0)\nv_writelane_b32 v255, s98, {i}')

def flag_store(p, lab, pairs, sc=' sc1'):
    p(f's_cmp_lg_u32 s3, 0\ns_cbranch_scc1 {lab}_np\nv_mov_b32 v252, s60\nv_mov_b32 v253, 0\ns_mov_b64 exec, 1')
    for sidx, base in pairs:
        p(f's_lshl_b32 s56, {sidx}, {Cfg.FS}\ns_add_u32 s56, s56, {base}\nbuffer_store_dword v252, v253, s[4:7], s56 offen{sc}')
    p(f's_mov_b64 exec, -1\n{lab}_np:')

def publish(p, sidx, base, lab, m=None, pf=None, sc=' sc1'):
    if m is None: p('s_waitcnt vmcnt(0)')
    else: p.wait_vm(m)
    if pf and Cfg.pf: p(pf)
    p('s_barrier')
    flag_store(p, lab, [(sidx, base)], sc)

def spin(p, lab, width, R):
    sfx = {1: 'dword', 2: 'dwordx2', 4: 'dwordx4'}[width]
    p(f's_mov_b64 exec, s[58:59]\ns_mov_b32 s61, {Cfg.spin}\n{lab}_loop:')
    p(f'buffer_load_{sfx} {v(R, width)}, v253, s[4:7], s56 offen sc1\ns_waitcnt vmcnt(0)')
    for k in range(width): p(f'v_xor_b32 v{R + k}, s60, v{R + k}')
    if width == 2: p(f'v_or_b32 v{R}, v{R}, v{R + 1}')
    if width == 4: p(f'v_or3_b32 v{R}, v{R}, v{R + 1}, v{R + 2}\nv_or_b32 v{R}, v{R}, v{R + 3}')
    p(f'''
    v_cmp_ne_u32 vcc, 0, v{R}
    s_sub_u32 s61, s61, 1
    s_cbranch_scc1 {lab}_out
    s_cbranch_vccz {lab}_out
    {f's_sleep {Cfg.slp}' if Cfg.slp else ''}
    s_branch {lab}_loop
    {lab}_out:
    s_mov_b64 exec, -1
    ''')

def poll(p, lab, setup, every=False, own=None):
    if not every: p(f's_cmp_lg_u32 s3, {Cfg.pw}\ns_cbranch_scc1 {lab}_skip')
    setup()
    if own and Cfg.own:
        p(f's_cmp_lt_u32 {own}, 64\ns_cselect_b32 s57, 1, 0\ns_mov_b32 s61, 0\ns_and_b32 {own}, {own}, 63\ns_mov_b32 s96, s57\ns_mov_b32 s97, 0\ns_lshl_b64 s[96:97], s[96:97], {own}\ns_andn2_b64 s[58:59], s[58:59], s[96:97]')
    spin(p, lab, 1, 254)
    p(f'{lab}_skip:\ns_waitcnt vmcnt(0)\ns_barrier')

class PG:
    def __init__(self, NT, NS, WF, sJ, base):
        self.NT, self.NS, self.WF, self.sJ, self.base = NT, NS, WF, sJ, base

def dma(g, first, n, sr='s[4:7]'):
    slot = (g.base + first) % 160
    assert slot + 4 * n <= 160
    L = [f's_mul_i32 s54, s{g.sJ}, {g.NS * g.NT}', f's_mul_i32 s55, s3, {n}', 's_add_u32 s54, s54, s55', f's_add_u32 s55, s55, {slot}',
         's_lshl_b32 s54, s54, 10', 's_lshl_b32 m0, s55, 10', f's_add_u32 s54, s54, {g.WF + first * 1024}']
    for k in range(n):
        if k and k % 4 == 0: L += ['s_add_u32 m0, m0, 4096', 's_add_u32 s54, s54, 4096']
        L.append(f'buffer_load_dwordx4 v1, {sr}, s54 offen offset:{1024 * (k & 3)}{SC} lds')
    return L

def emit(p, L):
    for t in L: p(t)

def spread(L, steps):
    d = {}
    for k, s_ in enumerate(steps):
        d[s_] = L[len(L) * k // len(steps): len(L) * (k + 1) // len(steps)]
    return d

def weave(code, fill, lo=0.0, hi=1.0):
    n = len(code); a_, b_ = int(n * lo), int(n * hi); out = list(code[:a_]); k = 0
    for i in range(a_, b_):
        out.append(code[i])
        e = len(fill) * (i - a_ + 1) // (b_ - a_)
        out += fill[k:e]; k = e
    return out + list(code[b_:])

def mainloop(p, n, NT, mf, wr, xl, U, extra={}, pre=None, sync={}):
    marks = {}
    emit(p, wr(0) + wr(1))
    for i in range(min(U, n)):
        emit(p, xl(i)); marks[i] = p.mark()
    if pre:
        p.wait_vm(marks[0]); emit(p, pre(0))
    for i in range(n):
        lg = NT if i + 1 < n else 0
        if pre: p(f's_waitcnt lgkmcnt({lg})')
        else: p.wait_vm(marks[i], lg)
        if i in sync: sync[i]()
        fill = [(t, None) for t in (wr(i + 2) if i + 2 < n else [])]
        if i + U < n:
            x = xl(i + U); fill += [(t, None) for t in x[:-1]] + [(x[-1], i + U)]
        fill += [(t, None) for t in extra.get(i, [])]
        M = mf(i); G_ = len(M) - (2 if pre else 0); k = 0
        for gi, m_ in enumerate(M):
            p(m_)
            if gi < G_:
                e = -(-len(fill) * (gi + 1) // G_)
                for t, mk in fill[k:e]:
                    if callable(t): t()
                    else: p(t)
                    if mk is not None: marks[mk] = p.mark()
                k = e
            elif gi == G_ and i + 1 < n:
                p.wait_vm(marks[i + 1]); emit(p, pre(i + 1))

def kgen2(p, inject):
    ACC = 24; FR = 40; Lr = 104; T = 136
    p(f'''
    s_mul_i32 s26, s3, 17408
    s_mov_b32 m0, s26
    v_and_b32 v3, 31, v0
    v_mul_u32_u24 v3, 272, v3
    v_lshrrev_b32 v4, 5, v0
    v_lshl_add_u32 v3, v4, 4, v3
    v_add_u32 v3, s26, v3
    v_mov_b32 v4, 0x3f80
    ds_write_addtid_b32 v4
    s_mul_i32 s27, s3, 4608
    s_add_u32 s27, s27, {RC}
    v_lshlrev_b32 v5, 3, v0
    v_add_u32 v5, s27, v5
    v_mov_b32 v6, 0
    v_mov_b32 v7, 0
    ds_write_b64 v5, v[6:7]
    s_mov_b32 s36, {f2u(LOG2E)}
    s_mov_b32 s37, {f2u(1 / (2 * math.pi))}
    s_mov_b32 s38, 0x41000000
    s_mov_b32 s39, 0x43800000
    v_mul_f32 v20, s36, v20
    v_exp_f32 v20, v20
    v_cvt_pk_bf16_f32 v20, v20, v20
    v_lshlrev_b32 v20, 16, v20
    v_add_f32 v22, v20, v20
    v_cmp_eq_u32 vcc, 0, v0
    v_cndmask_b32 v21, 0, v21, vcc
    ''')
    code = []; tp = [T]
    def new(n=2):
        r = tp[0]; tp[0] += n; return r
    cv = [0]; CV = 240
    def put(val, rows, neg):
        r = CV + (cv[0] % 12); cv[0] += 1
        code.append(f'v_cvt_pk_bf16_f32 v{r}, v{val}, {"-" if neg else ""}v{val + 1}')
        for row in rows: code.append(f'ds_write_addtid_b32 v{r} offset:{272 * row}')
    for st in range(3):
        tp[0] = T
        la, ai, cr, ci = [8 + 4 * st + k for k in range(4)]
        E1, E256, G0 = new(), new(), new()
        E8 = Lr
        t = new(10)
        code += [f'v_mul_f32 v{la}, s36, v{la}', f'v_exp_f32 v{la}, v{la}', f'v_cvt_pk_bf16_f32 v{la}, v{la}, v{la}',
                 f'v_lshlrev_b32 v{la}, 16, v{la}', f'v_mul_f32 v{la}, v{la}, v20', f'v_mul_f32 v{la}, -v{la}, s36',
                 f'v_mul_f32 v{ai}, v{ai}, v20', f'v_mul_f32 v{ai}, s37, v{ai}',
                 f'v_mul_f32 v{G0}, v{cr}, v22', f'v_mul_f32 v{G0 + 1}, v{ci}, v22']
        for k, (E, sc) in enumerate(((E8, 's38'), (E1, None), (E256, 's39'))):
            m_, a_ = t + 3 * k, t + 3 * k + 1
            if sc:
                code += [f'v_mul_f32 v{m_}, {sc}, v{la}', f'v_mul_f32 v{a_}, {sc}, v{ai}', f'v_exp_f32 v{m_}, v{m_}', f'v_fract_f32 v{a_}, v{a_}']
            else:
                code += [f'v_exp_f32 v{m_}, v{la}', f'v_fract_f32 v{a_}, v{ai}']
            code += [f'v_cos_f32 v{E}, v{a_}', f'v_sin_f32 v{E + 1}, v{a_}',
                     f'v_mul_f32 v{E}, v{E}, v{m_}', f'v_mul_f32 v{E + 1}, v{E + 1}, v{m_}']
        Lx = lambda j: Lr + 2 * (j - 1)
        put(E8, [1], False)
        put(G0, [32 + r for r in HROW[0]], True)
        tmp = [new() for _ in range(6)]; ti = [0]
        def nt():
            r = tmp[ti[0] % len(tmp)]; ti[0] += 1; return r
        E2, E4 = new(), new()
        G = {0: G0}
        hi = [(E2, E1, E1, None), (E4, E2, E2, None)]
        HL = ((1, 0, E1), (2, 0, E2), (3, 1, E2), (4, 0, E4), (5, 1, E4), (6, 2, E4), (7, 3, E4), (8, 0, E8),
              (256, 0, E256), (264, 8, E256), (258, 2, E256), (260, 4, E256), (262, 6, E256),
              (512, 256, E256), (520, 264, E256), (516, 260, E256), (768, 512, E256), (776, 520, E256), (772, 516, E256),
              (1024, 768, E256), (1032, 776, E256), (1280, 1024, E256), (1288, 1032, E256),
              (1536, 1280, E256), (1544, 1288, E256), (1792, 1536, E256), (1800, 1544, E256))
        used = {a_ for _, a_, _ in HL}
        for h_, a_, b_ in HL:
            G[h_] = new() if h_ in used else None
            hi.append((G[h_], G[a_], b_, h_))
        lo = []
        for j in range(2, 32):
            pw = 1 << (j.bit_length() - 1)
            a_, b_ = (pw // 2, pw // 2) if j == pw else (j - pw, pw)
            lo.append((Lx(j) if j <= 16 else None, Lx(a_), Lx(b_), j))
        for k in range(max(len(lo), len(hi))):
            if k < len(lo):
                D_, X_, Y_, j = lo[k]; D_ = nt() if D_ is None else D_
                code += cmul(D_, X_, Y_); put(D_, [j], False)
            if k < len(hi):
                D_, X_, Y_, h_ = hi[k]; D_ = nt() if D_ is None else D_
                code += cmul(D_, X_, Y_)
                if h_ in HROW: put(D_, [32 + r for r in HROW[h_]], True)
        assert tp[0] <= XP, tp[0]
        for m in range(8):
            code.append(f'ds_read_b128 {v(FR + 4 * m, 4)}, v3 offset:{32 * 272 + 32 * m}')
            code.append(f'ds_read_b128 {v(FR + 32 + 4 * m, 4)}, v3 offset:{32 * m}')
        for m in range(8):
            c = '0' if (st == 0 and m == 0) else v(ACC, 16)
            code.append(f'v_mfma_f32_32x32x16_bf16 {v(ACC, 16)}, {v(FR + 4 * m, 4)}, {v(FR + 32 + 4 * m, 4)}, {c}')
    S = sched(code)
    k = int(len(S) * Cfg.inj)
    emit(p, S[:k] + inject + S[k:])
    q = lambda i: f'v{ACC + i}'
    O = FR
    p(f'''
    v_lshlrev_b32 v5, 4, v0
    v_add_u32 v5, s27, v5
    v_lshrrev_b32 v6, 5, v0
    v_lshl_add_u32 v6, v6, 9, v5
    s_mov_b32 s40, 0xaaaaaaaa
    s_mov_b32 s41, 0xaaaaaaaa
    v_add_f32 {q(0)}, {q(0)}, v21
    v_cvt_pk_bf16_f32 v{O}, {q(7)}, {q(6)}
    v_cvt_pk_bf16_f32 v{O + 1}, {q(5)}, {q(4)}
    v_cvt_pk_bf16_f32 v{O + 2}, {q(3)}, {q(2)}
    v_cvt_pk_bf16_f32 v{O + 3}, {q(1)}, {q(0)}
    ds_write_b128 v5, {v(O, 4)} offset:512
    v_cvt_pk_bf16_f32 v{O + 4}, {q(14)}, {q(14)}
    v_cvt_pk_bf16_f32 v{O + 5}, {q(13)}, {q(13)}
    v_cvt_pk_bf16_f32 v{O + 6}, {q(13)}, {q(12)}
    v_cvt_pk_bf16_f32 v{O + 7}, {q(12)}, {q(12)}
    ds_write_b128 v5, {v(O + 4, 4)} offset:{96 * 16}
    ''')
    for k in range(2):
        a_, b_ = q(8 + 2 * k), q(9 + 2 * k); o = O + 8 + 4 * k
        p(f'''
        v_cndmask_b32 v7, {a_}, {b_}, s[40:41]
        v_cvt_pk_bf16_f32 v{o}, {b_}, {b_}
        v_cvt_pk_bf16_f32 v{o + 1}, {b_}, v7
        v_cvt_pk_bf16_f32 v{o + 2}, {a_}, {a_}
        v_mov_b32 v{o + 3}, v{o + 2}
        ds_write_b128 v6, {v(o, 4)} offset:{160 * 16 + 512 * k}
        ''')

def normalize(p):
    M0 = 40960
    p(f'''
    s_lshl_b32 s46, s3, 10
    s_add_u32 m0, s46, {M0}
    s_add_u32 s46, s46, {UC + 4160 + 30}
    v_lshl_add_u32 v8, v0, 2, s46
    s_mov_b32 s48, 0xffff0000
    ''')
    code = []
    for k in range(4):
        B = 64 + 32 * (k & 1)
        for pp in range(2):
            ms = SR + 4 * k + 2 * pp; rn = B + 16 + 2 * pp; F = B + 4 * pp; x = XP + 4 * k + 2 * pp
            code += [f'v_and_b32 v{rn}, s48, v{ms}', f'v_rcp_f32 v{rn}, v{rn}', f'v_lshlrev_b32 v{ms}, 16, v{ms}',
                     f'v_mul_f32 v{rn + 1}, -v{ms}, v{rn}'] + unpack(F, x, 48) + unpack(F + 2, x + 1, 48)
            for h_ in range(2):
                code.append(f'v_pk_fma_f32 {v(F + 2 * h_, 2)}, {v(F + 2 * h_, 2)}, {v(rn, 2)}, {v(rn, 2)} op_sel:[0,0,1] op_sel_hi:[1,0,1]')
        for c in range(4):
            E = B + 8 + c
            code += [f'v_cvt_pk_bf16_f32 v{E}, v{B + c}, v{B + 4 + c}',
                     f'ds_write_addtid_b32 v{E} offset:{UC + 32 - M0 + c * CHS + 256 * k}',
                     f'ds_write_b16 v8, v{E} offset:{c * CHS + 256 * k}',
                     f'ds_write_b16_d16_hi v8, v{E} offset:{c * CHS + 256 * k + 2}']
    emit(p, sched(code))

def conv2(p, fill):
    ACC = 24; KF = [56, 88]; UF = [120, 152]
    p(f'''
    v_and_b32 v8, 15, v0
    v_lshrrev_b32 v9, 4, v0
    v_and_b32 v10, 1, v0
    v_mul_u32_u24 v10, 4158, v10
    v_lshlrev_b32 v11, 1, v8
    v_sub_u32 v11, v11, v10
    v_lshl_add_u32 v11, v9, 4, v11
    s_mul_i32 s46, s3, {CHS}
    s_add_u32 s47, s46, {UC + 4160}
    v_add_u32 v11, s47, v11
    v_add_u32 v12, 1024, v11
    v_add_u32 v13, 2048, v11
    v_add_u32 v14, 3072, v11
    v_lshlrev_b32 v15, 5, v8
    v_lshlrev_b32 v16, 4, v9
    v_sub_u32 v15, v15, v16
    s_mul_i32 s47, s3, 4608
    s_add_u32 s47, s47, {RC + 16 + 512 - 448}
    v_add_u32 v15, s47, v15
    s_waitcnt lgkmcnt(0)
    s_barrier
    ''')
    stamp(p, 4)
    def loads(j0):
        b = j0 & 1; out = []
        kf = lambda d: f'ds_read_b128 {v(KF[b] + 4 * d, 4)}, v15 offset:{512 * d - 64 * j0 + 448}'
        out.append(kf(0))
        for jp in range(8):
            o = 128 * (jp & 1) + 16 * j0
            out.append(f'ds_read2_b32 {v(UF[b] + 4 * jp, 2)}, v{11 + (jp >> 1)} offset0:{o} offset1:{o + 1}')
            out.append(f'ds_read2_b32 {v(UF[b] + 4 * jp + 2, 2)}, v{11 + (jp >> 1)} offset0:{o + 2} offset1:{o + 3}')
        out += [kf(d) for d in range(1, 8)]
        return out
    emit(p, loads(0))
    p(f'''
    v_lshlrev_b32 v16, 2, v9
    v_lshl_add_u32 v16, v8, 4, v16
    s_mul_i32 s47, s3, {CHY}
    s_add_u32 s47, s47, {UC}
    v_add_u32 v16, s47, v16
    v_bfe_u32 v17, v0, 2, 2
    v_mul_u32_u24 v17, {CHY}, v17
    v_and_b32 v18, 3, v0
    v_lshl_add_u32 v17, v18, 3, v17
    v_lshl_add_u32 v17, v9, 5, v17
    s_lshl_b32 s47, s3, 10
    s_add_u32 s47, s47, {UC}
    v_add_u32 v17, s47, v17
    v_mul_u32_u24 v18, 40960, v9
    v_lshl_add_u32 v18, v8, 4, v18
    s_mul_i32 s44, s3, {16 * 40960}
    s_lshl_b32 s45, s50, 8
    s_add_u32 s44, s44, s45
    s_add_u32 s44, s44, {HQ}
    ''')
    order = []
    for d in range(8):
        Is = list(range(d, 8))
        if d == 5: Is = [7, 5, 6]
        if d == 6: Is = [7, 6]
        order += [(I, d) for I in Is]
    F = spread(fill, range(Cfg.jc, 8))
    for j0 in range(8):
        b = j0 & 1
        nx = loads(j0 + 1) if j0 < 7 else []
        if j0: p('s_waitcnt lgkmcnt(0)')
        if j0 == Cfg.jc:
            p('''
            v_cmp_ne_u32 vcc, s60, v253
            s_mov_b32 s8, s4
            s_mov_b32 s9, s5
            s_mov_b32 s11, s7
            s_cmp_eq_u64 vcc, 0
            s_cselect_b32 s10, s6, 0
            ''')
        fl = F.get(j0, []); k0 = 0
        for k, (I, d) in enumerate(order):
            c = v(ACC + 4 * I, 4)
            src = '0' if (j0 == 0 and d == 0) else c
            p(f'{MF} {c}, {v(UF[b] + 4 * (I - d), 4)}, {v(KF[b] + 4 * d, 4)}, {src}')
            if k < len(nx): p(nx[k])
            if k >= 24:
                e = len(fl) * (k - 23) // 12
                emit(p, fl[k0:e]); k0 = e
    stamp(p, 5)
    for I in (0, 1, 2, 3, 4, 5, 6, 7):
        o = 56 + 2 * I
        p(f'v_cvt_pk_bf16_f32 v{o}, v{ACC + 4 * I}, v{ACC + 4 * I + 2}')
        p(f'v_cvt_pk_bf16_f32 v{o + 1}, v{ACC + 4 * I + 1}, v{ACC + 4 * I + 3}')
        p(f'ds_write2st64_b32 v16, v{o}, v{o + 1} offset0:{2 * I} offset1:{2 * I + 1}')
    U_ = 128
    for r in range(16): emit(p, unpack(U_ + 2 * r, XP + r, 48))
    p('s_waitcnt lgkmcnt(0)\ns_barrier')
    Y = 72
    for k in range(4):
        for pp in range(2):
            p(f'ds_read_b64_tr_b16 {v(Y + 4 * k + 2 * pp, 2)}, v17 offset:{512 * (k >> 1) + 256 * pp + 128 * (k & 1)}')
    code = []
    for k in range(4):
        for r in range(4 * k, 4 * k + 4):
            t = 96 + 2 * r
            code += unpack(t, Y + r, 48) + [f'v_pk_add_f32 {v(t, 2)}, {v(t, 2)}, {v(U_ + 2 * r, 2)}', f'v_cvt_pk_bf16_f32 v{Y + r}, v{t}, v{t + 1}']
        code.append(f'buffer_store_dwordx4 {v(Y + 4 * k, 4)}, v18, s[4:7], s44 offen{SC}')
        if k < 3: code.append(f's_add_u32 s44, s44, {4 * 40960}')
    emit(p, code)

def ln_stats(p, sl):
    srd(p, 8, 'x', 2048 * 1280)
    XS = [8, 100]; F = 32
    p(f'''
    v_lshrrev_b32 v1, 4, v0
    v_and_b32 v2, 15, v0
    v_mul_u32_u24 v3, 1280, v1
    v_lshl_add_u32 v3, v2, 4, v3
    s_lshl_b32 s24, s{sl}, 2
    s_add_u32 s24, s24, s3
    s_lshl_b32 s25, s24, 6
    s_add_u32 s25, s25, {STAT}
    s_mul_i32 s24, s24, {8 * 1280}
    ''')
    for n in range(2):
        if n: p('s_add_u32 s24, s24, 5120')
        for i in range(5):
            p(f'buffer_load_dwordx4 {v(XS[n] + 4 * i, 4)}, v3, s[8:11], s24 offen offset:{256 * i}')
    p(f'''
    v_lshl_add_u32 v4, v2, 2, v1
    v_lshlrev_b32 v4, 3, v4
    s_mov_b32 s28, 0xffff0000
    ''')
    for n in range(2):
        X = XS[n]
        for i in range(5):
            for d in range(4):
                k = 4 * i + d
                emit(p, unpack(F + 2 * k, X + k, 28))
            if i == 0:
                p(f'v_pk_add_f32 v[72:73], {v(F, 2)}, {v(F + 2, 2)}')
                p(f'v_pk_add_f32 v[74:75], {v(F + 4, 2)}, {v(F + 6, 2)}')
            else:
                for d in range(4):
                    a_ = 72 + 2 * (d & 1)
                    p(f'v_pk_add_f32 {v(a_, 2)}, {v(a_, 2)}, {v(F + 8 * i + 2 * d, 2)}')
        p('v_pk_add_f32 v[72:73], v[72:73], v[74:75]')
        p('v_add_f32 v72, v72, v73')
        row16_reduce(p, 72)
        p(f'v_mul_f32 v72, {f2u(1 / 640)}, v72')
        for k in range(20):
            p(f'v_pk_add_f32 {v(F + 2 * k, 2)}, {v(F + 2 * k, 2)}, v[72:73] op_sel_hi:[1,0] neg_lo:[0,1] neg_hi:[0,1]')
        for k in range(20):
            a_ = 74 + 2 * (k & 1)
            if k < 2: p(f'v_pk_mul_f32 {v(a_, 2)}, {v(F + 2 * k, 2)}, {v(F + 2 * k, 2)}')
            else: p(f'v_pk_fma_f32 {v(a_, 2)}, {v(F + 2 * k, 2)}, {v(F + 2 * k, 2)}, {v(a_, 2)}')
        p('v_pk_add_f32 v[74:75], v[74:75], v[76:77]')
        p('v_add_f32 v74, v74, v75')
        row16_reduce(p, 74)
        p(f'''
        v_mul_f32 v74, {f2u(1 / 640)}, v74
        v_cvt_pk_bf16_f32 v74, v74, v74
        v_lshlrev_b32 v74, 16, v74
        v_add_f32 v74, {f2u(EPS)}, v74
        v_cvt_pk_bf16_f32 v74, v74, v74
        v_lshlrev_b32 v74, 16, v74
        v_sqrt_f32 v74, v74
        v_cvt_pk_bf16_f32 v{78 + n}, v72, v74
        ''')
    p(TAG)
    p(f'''
    v_cmp_eq_u32 vcc, 0, v2
    v_cndmask_b32 v78, v79, v78, vcc
    v_mov_b32 v79, s60
    s_mov_b32 s30, 0x00030003
    s_mov_b32 s31, 0x00030003
    s_mov_b64 exec, s[30:31]
    buffer_store_dwordx2 v[78:79], v4, s[4:7], s25 offen{SC}
    s_mov_b64 exec, -1
    ''')

def relayout2(p, lab):
    p(f'''
    s_cmp_lt_u32 s20, 20
    s_cbranch_scc1 {lab}_w1
    s_cmp_lt_u32 s20, 40
    s_cbranch_scc1 {lab}_w2
    s_cmp_lt_u32 s20, 88
    s_cbranch_scc1 {lab}_w3
    ''')
    def params(name, rs, nrows, u0, dest, nt, ns, sp, cs):
        srd(p, 8, name, nrows * rs)
        if name == 'w4':
            p(f'''
            s_sub_u32 s24, s20, 88
            s_mul_i32 s35, s24, 205
            s_lshr_b32 s35, s35, 12
            s_mul_i32 s25, s35, 20
            s_sub_u32 s24, s24, s25
            s_lshl_b32 s35, s35, 4
            s_add_u32 s35, s35, s3
            s_lshl_b32 s25, s35, 5
            s_mov_b32 s38, 4
            ''')
        else:
            p(f's_sub_u32 s24, s20, {u0}\ns_mov_b32 s35, s3\ns_mov_b32 s38, 5')
            if sp: p('s_lshr_b32 s25, s3, 1\ns_mul_i32 s25, s25, 80\ns_and_b32 s26, s3, 1\ns_lshl_b32 s26, s26, 5\ns_add_u32 s25, s25, s26')
            else: p('s_lshl_b32 s25, s3, 5')
        p(f's_mul_i32 s25, s25, {rs}\ns_mov_b32 s26, {(160 if sp else 128) * rs}')
        if sp: p(f's_mul_i32 s27, s3, {160 * rs}\ns_add_u32 s27, s27, {64 * rs}')
        else: p(f's_add_u32 s27, s25, {512 * rs}')
        P = nt * 1024
        if name == 'w2':
            p(f'''
            s_lshl_b32 s35, s3, 1
            s_mov_b32 s39, {8 * P}
            s_mov_b32 s40, {(-7 * P) & 0xffffffff}
            s_and_b32 s41, s3, 1
            s_lshl_b32 s41, s41, 1
            s_lshr_b32 s43, s3, 1
            s_add_u32 s41, s41, s43
            s_add_u32 s41, s41, 7
            s_sub_u32 s41, s41, s35
            s_mul_i32 s41, s41, {P}
            ''')
        else:
            p(f's_mov_b32 s39, {4 * P}\ns_mov_b32 s40, {4 * P}\ns_mov_b32 s41, {4 * P}')
        p(f'''
        s_mov_b32 s28, {(8 if sp else 16) * rs}
        s_mov_b32 s29, {(80 if sp else 8) * rs}
        s_mov_b32 s31, {rs}
        s_mov_b32 s32, {dest}
        s_mov_b32 s33, {nt}
        s_mov_b32 s34, {ns * nt}
        s_mov_b32 s36, {cs}
        s_mov_b32 s37, {205 if nt == 5 else 171}
        ''')
    for g in range(40): assert (g * 205) >> 10 == g // 5
    for g in range(96): assert (g * 171) >> 10 == g // 6
    for g in range(60): assert (g * 205) >> 12 == g // 20
    params('w4', 1280, 1536, 88, W4F, 5, 48, False, 0); p(f's_branch {lab}_go')
    p(f'{lab}_w1:'); params('w1', 1280, 640, 0, W1F, 5, 20, False, CS1); p(f's_branch {lab}_go')
    p(f'{lab}_w2:'); params('w2', 1280, 640, 20, W2F, 5, 20, True, 0); p(f's_branch {lab}_go')
    p(f'{lab}_w3:'); params('w3', 3072, 640, 40, W3F, 6, 20, True, CS3)
    p(f'{lab}_go:')
    p(f'''
    v_lshrrev_b32 v3, 1, v0
    v_lshrrev_b32 v4, 4, v0
    v_xor_b32 v3, v3, v4
    v_and_b32 v3, 1, v3
    v_and_b32 v4, 1, v0
    v_lshl_add_u32 v3, v3, 1, v4
    s_lshl_b32 s42, s24, 6
    v_lshl_add_u32 v3, v3, 4, s42
    v_lshrrev_b32 v1, 2, v0
    v_mul_lo_u32 v1, v1, s31
    v_add_u32 v1, v1, v3
    v_bfe_u32 v2, v0, 2, 3
    v_mul_lo_u32 v2, v2, s31
    v_lshrrev_b32 v4, 5, v0
    v_mul_lo_u32 v4, v4, s29
    v_add3_u32 v2, v2, v4, v3
    s_mul_i32 s42, s3, 10240
    s_mov_b32 m0, s42
    s_lshl_b32 s43, s31, 4
    ''')
    for i in range(5):
        if i == 4:
            p(f'''
            s_cmp_eq_u32 s38, 4
            s_cbranch_scc1 {lab}_ld_done
            buffer_load_dwordx4 v2, s[8:11], s27 offen lds
            s_add_u32 m0, m0, 1024
            s_add_u32 s27, s27, s28
            buffer_load_dwordx4 v2, s[8:11], s27 offen lds
            ''')
        else:
            p(f'''
            buffer_load_dwordx4 v1, s[8:11], s25 offen lds
            s_add_u32 m0, m0, 1024
            s_add_u32 s30, s25, s43
            buffer_load_dwordx4 v1, s[8:11], s30 offen lds
            s_add_u32 m0, m0, 1024
            s_add_u32 s25, s25, s26
            ''')
    p(f'{lab}_ld_done:')
    p(f'''
    v_lshrrev_b32 v2, 2, v0
    v_bfe_u32 v3, v0, 4, 1
    v_and_b32 v9, 3, v0
    v_lshlrev_b32 v9, 3, v9
    v_lshl_add_u32 v9, v2, 6, v9
    v_add_u32 v9, s42, v9
    v_lshlrev_b32 v8, 4, v0
    v_mov_b32 v10, 0x3f803f80
    v_mov_b32 v11, 0x3f803f80
    v_mov_b32 v12, 0x3f803f80
    v_mov_b32 v13, 0x3f803f80
    s_mul_i32 s43, s35, s33
    ''')
    for t in range(2):
        p(f'''
        v_xor_b32 v{4 + t}, {t}, v3
        v_lshl_add_u32 v{4 + t}, v{4 + t}, 5, v9
        s_lshl_b32 s48, s24, 1
        s_add_u32 s48, s48, {t}
        s_mul_i32 s49, s48, s37
        s_lshr_b32 s49, s49, 10
        s_mul_i32 s46, s49, s33
        s_sub_u32 s48, s48, s46
        s_mul_i32 s49, s49, s34
        s_add_u32 s48, s48, s49
        s_add_u32 s48, s48, s43
        s_lshl_b32 s48, s48, 10
        s_add_u32 s{44 + t}, s48, s32
        ''')
    for i in range(5):
        if i == 4: p(f's_cmp_eq_u32 s38, 4\ns_cbranch_scc1 {lab}_st_done')
        if i == 0:
            p('s_waitcnt vmcnt(0)'); stamp(p, 23)
        R = 32 + 8 * i
        for t in range(2):
            p(f'ds_read_b64_tr_b16 {v(R + 4 * t, 2)}, v{4 + t} offset:{2048 * i}')
            p(f'ds_read_b64_tr_b16 {v(R + 4 * t + 2, 2)}, v{4 + t} offset:{2048 * i + 1024}')
        for t in range(2):
            p(f'buffer_store_dwordx4 {v(R + 4 * t, 4)}, v8, s[4:7], s{44 + t} offen{SC}')
            if i < 4: p(f's_add_u32 s{44 + t}, s{44 + t}, s{(39, 40, 39, 41)[i]}')
            p(f'{MF} {v(16 + 4 * t, 4)}, {v(R + 4 * t, 4)}, v[10:13], {v(16 + 4 * t, 4) if i else 0}')
    p(f'{lab}_st_done:')
    stamp(p, 24)
    CSL = 40960
    p(f'''
    s_cmp_eq_u32 s36, 0
    s_cbranch_scc1 {lab}_done
    s_lshl_b32 s48, s3, 7
    s_add_u32 s48, s48, {CSL}
    v_and_b32 v2, 48, v0
    v_add_u32 v2, s48, v2
    s_mov_b32 s46, 0x00010001
    s_mov_b32 s47, 0x00010001
    s_mov_b64 exec, s[46:47]
    ds_write_b128 v2, v[16:19]
    ds_write_b128 v2, v[20:23] offset:64
    s_mov_b64 exec, -1
    s_waitcnt lgkmcnt(0)
    s_barrier
    s_cmp_lg_u32 s3, 0
    s_cbranch_scc1 {lab}_done
    v_lshlrev_b32 v2, 2, v0
    v_add_u32 v3, {CSL}, v2
    ds_read_b32 v4, v3
    ds_read_b32 v5, v3 offset:128
    ds_read_b32 v6, v3 offset:256
    ds_read_b32 v7, v3 offset:384
    s_lshl_b32 s48, s24, 7
    s_add_u32 s48, s48, s36
    v_add_f32 v4, v4, v5
    v_add_f32 v6, v6, v7
    v_add_f32 v4, v4, v6
    s_mov_b32 exec_hi, 0
    buffer_store_dword v4, v2, s[4:7], s48 offen{SC}
    s_mov_b32 exec_hi, -1
    {lab}_done:
    ''')

def build(dbg=False):
    Cfg.stamp = dbg
    p = Prog()
    g1 = PG(5, 20, W1F, 25, 120); g2 = PG(5, 20, W2F, 25, 60); g3 = PG(6, 20, W3F, 53, 0); g4 = PG(5, 48, W4F, 25, 120)
    prologue(p, 256, 'k')
    if dbg: p('v_mov_b32 v255, 0')
    stamp(p, 0)
    if dbg: p('s_memtime s[98:99]\ns_waitcnt lgkmcnt(0)\nv_writelane_b32 v255, s98, 30')
    p(f'''
    s_add_u32 s56, s92, {EPW}
    s_addc_u32 s57, s93, 0
    s_load_dword s60, s[56:57], 0
    s_cmp_ge_u32 s2, 160
    s_cbranch_scc1 role_b
    ''')
    def ids():
        p('''
        s_lshr_b32 s28, s2, 3
        s_and_b32 s29, s2, 7
        s_and_b32 s25, s28, 7
        s_lshr_b32 s24, s28, 3
        s_lshl_b32 s30, s29, 2
        s_add_u32 s24, s24, s30
        s_lshl_b32 s62, s24, 3
        s_add_u32 s62, s62, s25
        s_lshl_b32 s24, s24, 2
        s_add_u32 s24, s24, s3
        s_and_b32 s53, s28, 15
        s_lshr_b32 s52, s28, 4
        s_lshl_b32 s30, s29, 1
        s_add_u32 s52, s52, s30
        s_lshl_b32 s63, s52, 4
        s_add_u32 s63, s63, s53
        s_lshl_b32 s52, s52, 2
        s_add_u32 s52, s52, s3
        s_lshl_b32 s52, s52, 1
        s_and_b32 s51, s3, 1
        v_lshlrev_b32 v1, 4, v0
        ''')
    W1DMA = dma(g1, 0, 10) + dma(g1, 40, 15)
    p('s_and_b32 s50, s2, 7\ns_mul_i32 s50, s50, 20\ns_lshr_b32 s51, s2, 3\ns_add_u32 s50, s50, s51')
    emit_kgen_loads(p, 50)
    srd(p, 44, 'x', 2048 * 1280)
    p(f'''
    v_mul_u32_u24 v254, 2560, v0
    s_mul_i32 s42, s3, {512 * 1280}
    s_lshl_b32 s43, s50, 3
    s_add_u32 s42, s42, s43
    ''')
    for k in range(4):
        p(f'buffer_load_dwordx2 {v(XP + 4 * k, 2)}, v254, s[44:47], s42 offen')
        p(f'buffer_load_dwordx2 {v(XP + 4 * k + 2, 2)}, v254, s[44:47], s42 offen offset:1280')
        if k < 3: p(f's_add_u32 s42, s42, {128 * 1280}')
    p(f'''
    s_cmp_lg_u32 s3, 0
    s_cbranch_scc1 nozero
    v_lshrrev_b32 v5, 4, v0
    v_mul_u32_u24 v5, {CHS}, v5
    v_bfe_u32 v6, v0, 3, 1
    v_mul_u32_u24 v6, 4160, v6
    v_and_b32 v7, 7, v0
    v_lshl_add_u32 v5, v7, 2, v5
    v_add3_u32 v5, v5, v6, v2
    v_add_u32 v5, {UC}, v5
    ds_write_b32 v5, v2
    nozero:
    v_lshlrev_b32 v23, 4, v0
    s_lshl_b32 s42, s3, 12
    s_add_u32 s42, s42, {STAT}
    ''')
    stamp(p, 1)
    SL = [f'buffer_load_dwordx4 {v(SR + 4 * k, 4)}, v23, s[4:7], s42 offen offset:{1024 * k}{SC}' for k in range(4)]
    kgen2(p, SL)
    p(TAG)
    stamp(p, 2)
    if dbg:
        p(f's_waitcnt vmcnt({len(SL)})'); stamp(p, 23); p('s_waitcnt vmcnt(0)'); stamp(p, 24)
    p(f's_mov_b32 s61, {Cfg.spin}\nsa_loop:\ns_waitcnt vmcnt(0)')
    for k in range(8): p(f'v_xor_b32 v{SR + 2 * k + 1}, s60, v{SR + 2 * k + 1}')
    p(f'''
    v_or3_b32 v9, v{SR + 1}, v{SR + 3}, v{SR + 5}
    v_or3_b32 v10, v{SR + 7}, v{SR + 9}, v{SR + 11}
    v_or3_b32 v9, v9, v{SR + 13}, v{SR + 15}
    v_or_b32 v9, v9, v10
    v_cmp_ne_u32 vcc, 0, v9
    s_cbranch_vccz sa_out
    s_sub_u32 s61, s61, 1
    s_cbranch_scc1 sa_out
    s_sleep 4
    ''')
    emit(p, SL)
    p('s_branch sa_loop\nsa_out:')
    if dbg: p(f's_sub_u32 s61, {Cfg.spin}, s61\nv_writelane_b32 v255, s61, 29')
    stamp(p, 3)
    ids()
    def w1flags():
        p(f'''
        s_mul_i32 s56, s25, 5
        s_lshr_b32 s56, s56, 1
        s_lshl_b32 s56, s56, {Cfg.FS}
        s_add_u32 s56, s56, {F0}
        v_min_u32 v253, 2, v0
        v_lshlrev_b32 v253, {Cfg.FS}, v253
        s_mov_b64 s[58:59], 7
        ''')
    normalize(p)
    w1flags()
    p(f'buffer_load_dword v253, v253, s[4:7], s56 offen{SC}')
    conv2(p, dma(g1, 0, 10, 's[8:11]') + dma(g1, 40, 15, 's[8:11]'))
    stamp(p, 6)
    publish(p, 's2', F1, 'pba')
    p('s_cmp_lg_u32 s10, 0\ns_cbranch_scc1 join1')
    w1flags()
    spin(p, 'pb0', 1, 254)
    emit(p, W1DMA)
    p('s_branch join1')
    p('role_b:')
    p('s_sub_u32 s20, s2, 160\ns_mov_b32 s22, 1\ns_cmp_lt_u32 s20, 32\ns_cbranch_scc1 rl_top\ns_sub_u32 s21, s20, 32')
    ln_stats(p, 21)
    p('s_mov_b32 s22, 0')
    stamp(p, 1)
    p('rl_top:')
    relayout2(p, 'rl')
    p('s_cmp_eq_u32 s22, 0\ns_cbranch_scc1 rl_tag')
    p(TAG)
    p('s_mov_b32 s22, 0\nrl_tag:')
    publish(p, 's20', F0, 'pbr')
    p('s_add_u32 s20, s20, 96\ns_cmp_ge_u32 s20, 148\ns_cbranch_scc1 rl_end')
    stamp(p, 2)
    p('s_branch rl_top\nrl_end:')
    flag_store(p, 'pbf', [('s2', F1)])
    stamp(p, 3)
    ids()
    w1flags()
    spin(p, 'pb', 1, 254)
    emit(p, W1DMA)
    stamp(p, 4)
    if Cfg.warm:
        poll(p, 'pc', lambda: p(f'v_lshlrev_b32 v253, {Cfg.FS}, v0\ns_mul_i32 s56, s3, {24 << Cfg.FS}\ns_add_u32 s56, s56, {F1 + (160 << Cfg.FS)}\ns_mov_b32 s58, 0xffffff\ns_mov_b32 s59, 0'), True)
        p(f'''
        s_sub_u32 s28, s2, 160
        s_lshr_b32 s28, s28, 3
        s_lshl_b32 s28, s28, 2
        s_add_u32 s28, s28, s3
        s_lshl_b32 s28, s28, 16
        s_add_u32 s28, s28, {W2F}
        v_lshlrev_b32 v5, 7, v0
        ''')
        for k in range(8):
            p(f'buffer_load_dword v{16 + k}, v5, s[4:7], s28 offen{SC}')
            if k < 7: p('s_add_u32 s28, s28, 8192')
    stamp(p, 5)
    p('join1:')
    stamp(p, 7)
    A0, A1, SUM, GR, ONES, WB, X, CS, HP, HX = 16, 36, 56, 64, 72, 76, 136, 228, 216, 228
    def ldsbases(kh):
        if kh: p('s_mul_i32 s28, s51, 5120\nv_add_u32 v2, s28, v1\nv_add_u32 v3, 65536, v2\nv_add_u32 v15, 131072, v2')
        else: p('v_add_u32 v3, 65536, v1\nv_add_u32 v15, 131072, v1')
    def wreads(g, WB_, per, b0):
        def f(i):
            out = []
            for t in range(g.NT):
                o = ((g.base + per * i) % 160 + t) * 1024
                out.append(f'ds_read_b128 {v(WB_ + 4 * g.NT * (i % 3) + 4 * t, 4)}, v{(b0, 3, 15)[o >> 16]} offset:{o & 65535}')
            return out
        return f
    def exaddr(vw, vr, EXB):
        p(f'''
        s_mul_i32 s28, s3, 5120
        s_xor_b32 s29, s3, 1
        s_mul_i32 s29, s29, 5120
        s_add_u32 s28, s28, {EXB}
        s_add_u32 s29, s29, {EXB}
        v_add_u32 v{vw}, s28, v1
        v_add_u32 v{vr}, s29, v1
        ''')
    ldsbases(True)
    class g5: NT = 5
    kern.cs_loads(p, g5, CS, CS1, 29)
    EXS = 20480
    exaddr(5, 6, 0)
    p(f'''
    s_lshl_b32 s28, s51, 3
    v_add_u32 v4, s28, v1
    s_lshl_b32 s28, s3, 11
    s_add_u32 s28, s28, {EXS}
    v_add_u32 v7, s28, v1
    s_lshl_b32 s28, s3, 9
    s_add_u32 s28, s28, {EXS + 8192}
    v_lshl_add_u32 v8, v0, 2, s28
    s_and_b32 s29, s3, 2
    s_lshl_b32 s28, s29, 9
    s_lshl_b32 s30, s51, 8
    s_add_u32 s28, s28, s30
    s_add_u32 s28, s28, {EXS + 8192}
    v_lshl_add_u32 v9, v0, 2, s28
    s_lshl_b32 s28, s29, 11
    s_lshl_b32 s30, s51, 10
    s_add_u32 s28, s28, s30
    s_add_u32 s28, s28, {EXS}
    v_bfe_u32 v10, v0, 2, 2
    v_lshlrev_b32 v10, 8, v10
    v_and_b32 v11, 15, v0
    v_lshl_add_u32 v10, v11, 4, v10
    v_and_b32 v11, 3, v0
    v_lshl_add_u32 v10, v11, 2, v10
    v_add_u32 v10, s28, v10
    s_lshl_b32 s28, s25, 11
    s_lshl_b32 s29, s25, 9
    s_add_u32 s29, s29, {16384 - 2048}
    v_lshlrev_b32 v11, 7, v0
    v_add_u32 v14, s28, v11
    v_add_u32 v11, s29, v11
    v_cmp_gt_u32 vcc, 16, v0
    v_cndmask_b32 v14, v11, v14, vcc
    v_bfrev_b32 v11, 1
    v_cmp_gt_u32 vcc, 20, v0
    v_cndmask_b32 v14, v11, v14, vcc
    s_lshr_b32 s30, s24, 1
    s_mul_i32 s30, s30, 40960
    s_add_u32 s30, s30, {HQ}
    s_mul_i32 s31, s25, 5120
    s_add_u32 s31, s31, s30
    s_add_u32 s32, s31, 4096
    s_lshl_b32 s28, s51, 11
    s_add_u32 s30, s30, s28
    ''')
    for k in range(4): p(f'v_mov_b32 v{ONES + k}, 0x3f803f80')
    poll(p, 'p1', lambda: p(f'v_lshlrev_b32 v253, {Cfg.FS}, v0\ns_lshl_b32 s56, s3, {6 + Cfg.FS}\ns_add_u32 s56, s56, {F1}\ns_mov_b64 s[58:59], -1\ns_lshl_b32 s95, s3, 6\ns_sub_u32 s95, s2, s95'), True, 's95')
    stamp(p, 8)
    def xl1(i):
        L = ['s_add_u32 s30, s30, 4096'] if i else []
        return L + [f'buffer_load_dwordx4 {v(X + 8 * i + 4 * h_, 4)}, v1, s[4:7], s30 offen offset:{1024 * h_}{SC}' for h_ in range(2)]
    def mf1(i):
        c = lambda r: v(r, 4) if i else '0'
        M = []
        for t in range(5):
            for sl in range(2):
                r = (A0, A1)[sl] + 4 * t
                M.append(f'{MF} {v(r, 4)}, {v(WB + 20 * (i % 3) + 4 * t, 4)}, {v(X + 8 * i + 4 * sl, 4)}, {c(r)}')
            if t < 2:
                x = v(X + 8 * i + 4 * t, 4)
                M.append(f'{MF} {v(SUM + 4 * t, 4)}, {v(ONES, 4)}, {x}, {c(SUM + 4 * t)}')
                M.append(f'{MF} {v(GR + 4 * t, 4)}, {x}, {x}, {c(GR + 4 * t)}')
        return M
    def epoch():
        p(f'''
        s_or_b32 s29, s2, s3
        s_cmp_lg_u32 s29, 0
        s_cbranch_scc1 noep
        v_mov_b32 v252, s60
        v_mov_b32 v253, 0
        s_mov_b32 s56, {EPW}
        s_mov_b64 exec, 1
        buffer_store_dword v252, v253, s[4:7], s56 offen sc1
        s_mov_b64 exec, -1
        noep:
        ''')
    HPL = [f'buffer_load_dwordx2 {v(HP + 2 * t, 2)}, v4, s[4:7], s{31 if t < 4 else 32} offen offset:{1024 * (t & 3)}{SC}' for t in range(5)]
    ex = spread(dma(g2, 0, 15) + HPL, range(10 - Cfg.U1, 10))
    mainloop(p, 10, 5, mf1, wreads(g1, WB, 10, 2), xl1, Cfg.U1, ex,
             lambda i: [f'v_swap_b32 v{X + 8 * i + 2 + k}, v{X + 8 * i + 4 + k}' for k in range(2)])
    stamp(p, 9)
    TX = WB
    p('s_barrier')
    if Cfg.early: emit(p, dma(g2, 60, 10))
    p(f'''
    ds_write_b128 v7, {v(GR, 4)}
    ds_write_b128 v7, {v(GR + 4, 4)} offset:1024
    ds_write2st64_b32 v8, v{SUM}, v{SUM + 4} offset0:0 offset1:1
    s_cmp_lg_u32 s51, 0
    s_cbranch_scc1 x1_odd
    ''')
    xr = [f'ds_read2st64_b32 v[8:9], v9 offset0:0 offset1:2', f'ds_read2st64_b32 v[10:11], v10 offset0:0 offset1:8'] + \
         [f'ds_read_b128 {v(TX + 4 * t, 4)}, v6 offset:{1024 * t}' for t in range(5)]
    for t in range(5): p(f'ds_write_b128 v5, {v(A1 + 4 * t, 4)} offset:{1024 * t}')
    p('s_waitcnt lgkmcnt(0)\ns_barrier'); emit(p, xr)
    for k in range(10): p(f'v_pk_add_f32 {v(A0 + 2 * k, 2)}, {v(A0 + 2 * k, 2)}, {v(TX + 2 * k, 2)}')
    p('s_branch x1_join\nx1_odd:')
    for t in range(5): p(f'ds_write_b128 v5, {v(A0 + 4 * t, 4)} offset:{1024 * t}')
    p('s_waitcnt lgkmcnt(0)\ns_barrier'); emit(p, xr)
    for k in range(10): p(f'v_pk_add_f32 {v(A0 + 2 * k, 2)}, {v(A1 + 2 * k, 2)}, {v(TX + 2 * k, 2)}')
    p('x1_join:')
    K, ONE, O, T = 56, 58, 60, 136
    code = [f'v_mov_b32 v{K}, {f2u(C0)}', f'v_mov_b32 v{K + 1}, {f2u(C1)}', f'v_mov_b32 v{ONE}, 1.0',
            'v_add_f32 v8, v8, v9', 'v_add_f32 v10, v10, v11',
            f'v_mul_f32 v8, {f2u(1 / 640)}, v8', 'v_mul_f32 v9, v8, v8', f'v_mov_b32 v13, {f2u(1 / 640)}',
            'v_fma_f32 v10, v10, v13, -v9', 'v_max_f32 v10, 0, v10', f'v_add_f32 v11, {f2u(EPS)}, v10', 'v_rsq_f32 v12, v11',
            'v_mul_f32 v11, v12, v12', f'v_mov_b32 v13, {f2u(EPS)}', 'v_fma_f32 v11, v11, v10, v13', 'v_rsq_f32 v11, v11',
            'v_mul_f32 v13, -v8, v12', 'v_mul_f32 v10, v12, v11', 'v_mul_f32 v11, v13, v11']
    for k in range(10):
        A = A0 + 2 * k; t = T + 2 * k
        code += [f'v_pk_mul_f32 {v(CS + 2 * k, 2)}, {v(CS + 2 * k, 2)}, v[10:11] op_sel:[0,1] op_sel_hi:[1,1]',
                 f'v_pk_fma_f32 {v(A, 2)}, {v(A, 2)}, v[10:11], {v(CS + 2 * k, 2)} op_sel_hi:[1,0,1]']
        code += gelu_code(A, t, K, ONE, O + k)
    emit(p, sched(code))
    FS1 = SC if Cfg.fast1 is None else Cfg.fast1
    kern.SC = FS1
    frag_store80(p, O, H1F)
    kern.SC = SC
    m = p.mark()
    if not Cfg.early: emit(p, dma(g2, 60, 10))
    stamp(p, 10)
    publish(p, 's62', F2, 'pb1', m, f'buffer_load_dword v251, v14, s[4:7], s28 offen{SC}')
    epoch()
    stamp(p, 11)
    if Cfg.warm:
        p(f'''
        s_lshr_b32 s28, s2, 3
        s_lshl_b32 s28, s28, 2
        s_add_u32 s28, s28, s3
        s_mul_i32 s28, s28, 15360
        s_add_u32 s28, s28, {W4F}
        s_add_u32 s29, s28, 8192
        v_lshlrev_b32 v5, 7, v0
        buffer_load_dword v249, v5, s[4:7], s28 offen{SC}
        buffer_load_dword v250, v5, s[4:7], s29 offen{SC}
        ''')
    p('''
    v_and_b32 v9, 15, v0
    v_lshlrev_b32 v9, 1, v9
    v_and_b32 v10, 48, v0
    v_lshlrev_b32 v10, 4, v10
    s_movk_i32 s32, 0x800
    v_bfrev_b32 v56, 1
    s_mov_b32 s33, 0xffff0000
    s_lshr_b32 s29, s24, 1
    s_lshl_b32 s29, s29, 5
    s_lshl_b32 s30, s51, 1
    ''')
    for ds_, sl, expr in ((0, 0, 's_sub_u32 s28, s29, 1'), (0, 1, 's_sub_u32 s28, s29, s30'),
                          (1, 0, 's_add_u32 s28, s29, s30\ns_add_u32 s28, s28, 1'), (1, 1, 's_add_u32 s28, s29, 2')):
        p(expr)
        p(f'''
        v_add_u32 v11, s28, v9
        v_cmp_gt_u32 vcc, s32, v11
        v_lshrrev_b32 v57, 5, v11
        v_and_b32 v58, 1, v11
        v_lshl_add_u32 v57, v57, 1, v58
        v_mul_u32_u24 v57, 20480, v57
        v_bfe_u32 v11, v11, 1, 4
        v_lshl_add_u32 v57, v11, 4, v57
        v_add_u32 v57, v57, v10
        v_cndmask_b32 v{5 + 2 * ds_ + sl}, v56, v57, vcc
        ''')
    for k in range(10):
        emit(p, unpack(HX + 2 * k, HP + k, 33))
        p(f'v_pk_fma_f32 {v(A0 + 2 * k, 2)}, {v(HX + 2 * k, 2)}, v[12:13], v[12:13] op_sel:[0,0,1] op_sel_hi:[1,0,1]')
    exaddr(9, 10, 120 * 1024)
    CS3R = 204
    p(f'''
    s_lshl_b32 s30, s51, 13
    s_add_u32 s30, s30, {H1F}
    s_lshl_b32 s31, s51, 11
    s_add_u32 s31, s31, {H1F + 16384}
    v_and_b32 v4, 48, v0
    s_mul_i32 s32, s53, 384
    s_add_u32 s32, s32, {CS3}
    ''')
    def su3():
        p(f'''
        s_and_b32 s56, s62, 0xf8
        s_sub_u32 s56, s56, 8
        v_add_u32 v253, s56, v0
        s_movk_i32 s57, 0x100
        v_cmp_gt_u32 vcc, s57, v253
        v_lshlrev_b32 v253, {Cfg.FS}, v253
        s_and_b32 s58, vcc_lo, 0xffffff
        s_mov_b32 s59, 0
        s_sub_u32 s95, s62, s56
        s_mov_b32 s56, {F2}
        ''')
    poll(p, 'p2', su3, False, 's95')
    stamp(p, 12)
    def xl2(i):
        L = ['s_add_u32 s30, s30, 4096'] if i == 4 else []
        ds_ = (i >> 2) if i < 8 else i - 8
        so, off = (30, 1024 * (i & 3)) if i < 8 else (31, 1024 * (i - 8))
        return L + [f'buffer_load_dwordx4 {a(8 * i + 4 * sl, 4)}, v{5 + 2 * ds_ + sl}, s[4:7], s{so} offen offset:{off}{SC}' for sl in range(2)]
    def mfk(AS, WB_):
        def f(i):
            M = []
            for t in range(5):
                for sl in range(2):
                    r = AS[sl] + 4 * t
                    M.append(f'{MF} {v(r, 4)}, {v(WB_ + 20 * (i % 3) + 4 * t, 4)}, {a(8 * i + 4 * sl, 4)}, {v(r, 4) if (i or not sl) else 0}')
            return M
        return f
    C3L = [f'buffer_load_dwordx4 {v(CS3R + 4 * t, 4)}, v4, s[4:7], s32 offen offset:{64 * t}{SC}' for t in range(6)]
    ex = spread(dma(g3, 0, 15) + C3L, range(10 - Cfg.U2, 10))
    mainloop(p, 10, 5, mfk((A0, A1), WB), wreads(g2, WB, 10, 2), xl2, Cfg.U2, ex)
    stamp(p, 13)
    def exch(vw, vr, Akeep, Agive, fill=[]):
        p('s_barrier')
        for t in range(5): p(f'ds_write_b128 v{vw}, {v(Agive + 4 * t, 4)} offset:{1024 * t}')
        emit(p, fill)
        p('s_waitcnt lgkmcnt(0)\ns_barrier')
        for t in range(5): p(f'ds_read_b128 {v(TX + 4 * t, 4)}, v{vr} offset:{1024 * t}')
        return [f'v_pk_add_f32 {v(Akeep + 2 * k, 2)}, {v(Akeep + 2 * k, 2)}, {v(TX + 2 * k, 2)}' for k in range(10)]
    code = exch(9, 10, A0, A1, dma(g3, 60, 15) if Cfg.early else [])
    O = 60
    code += ['v_mov_b32 v8, 0', 'v_mov_b32 v9, 0', 'v_mov_b32 v10, 0', 'v_mov_b32 v11, 0', 'v_lshlrev_b32 v4, 3, v0']
    for k in range(10):
        A = A0 + 2 * k
        code += [f'v_cvt_pk_bf16_f32 v{O + k}, v{A}, v{A + 1}',
                 f'v_dot2c_f32_bf16 v{8 + 2 * (k & 1)}, v{O + k}, v{ONES}', f'v_dot2c_f32_bf16 v{9 + 2 * (k & 1)}, v{O + k}, v{O + k}']
    code += ['v_pk_add_f32 v[8:9], v[8:9], v[10:11]'] + qreduce(8, 10) + qreduce(9, 11)
    emit(p, sched(code))
    FS_ = SC if Cfg.fast is None else Cfg.fast
    kern.SC = FS_
    frag_store80(p, O, X1F)
    kern.SC = SC
    p(f'''
    s_lshl_b32 s29, s24, 3
    s_add_u32 s29, s29, s25
    s_lshl_b32 s29, s29, 7
    s_add_u32 s29, s29, {PS2}
    s_mov_b64 exec, 0xffff
    buffer_store_dwordx2 v[8:9], v4, s[4:7], s29 offen{FS_}
    s_mov_b64 exec, -1
    ''')
    m = p.mark()
    HA = [f'v_pk_add_f32 {v(HX + 2 * k, 2)}, {v(HX + 2 * k, 2)}, {v(A0 + 2 * k, 2)}' for k in range(10)]
    emit(p, HA if Cfg.early else weave(dma(g3, 60, 15), HA))
    stamp(p, 14)
    publish(p, 's62', F3, 'pb2', m, f'buffer_load_dword v251, v14, s[4:7], s28 offen{SC}' if Cfg.fast is None else None, FS_)
    stamp(p, 15)
    CS = CS3R; PS = 136; WB3 = 64
    ldsbases(False)
    p(f'''
    v_and_b32 v6, 15, v0
    v_and_b32 v7, 48, v0
    v_lshlrev_b32 v7, 4, v7
    v_lshl_add_u32 v7, v6, 3, v7
    s_lshl_b32 s29, s52, 10
    s_add_u32 s29, s29, {PS2}
    s_mul_i32 s30, s52, 20480
    s_add_u32 s30, s30, {X1F}
    s_add_u32 s31, s30, 20480
    v_lshlrev_b32 v14, 7, v0
    v_add_u32 v5, {49152 - 3072}, v14
    v_cmp_gt_u32 vcc, 24, v0
    v_cndmask_b32 v14, v5, v14, vcc
    v_bfrev_b32 v5, 1
    v_cmp_gt_u32 vcc, 48, v0
    v_cndmask_b32 v14, v5, v14, vcc
    ''')
    def su4():
        p(f'''
        s_and_b32 s56, s63, 0xf0
        s_sub_u32 s95, s62, s56
        s_lshl_b32 s56, s56, {Cfg.FS}
        s_add_u32 s56, s56, {F3}
        v_lshlrev_b32 v253, {Cfg.FS}, v0
        s_mov_b64 s[58:59], 0xffff
        ''')
    poll(p, 'p3', su4, False, 's95')
    stamp(p, 16)
    acc3 = lambda mt, t: 16 + 24 * mt + 4 * t
    for mt in range(2):
        for i in range(2):
            p(f'buffer_load_dwordx2 {v(PS + 4 * mt + 2 * i, 2)}, v7, s[4:7], s29 offen offset:{1024 * mt + 128 * i}{SC}')
    def xl3(i):
        L = ['s_add_u32 s30, s30, 4096', 's_add_u32 s31, s31, 4096'] if i and i % 4 == 0 else []
        return L + [f'buffer_load_dwordx4 {a(8 * i + 4 * mt, 4)}, v1, s[4:7], s{30 + mt} offen offset:{1024 * (i & 3)}{SC}' for mt in range(2)]
    def mf3(i):
        return [f'{MF} {v(acc3(mt, t), 4)}, {v(WB3 + 24 * (i % 3) + 4 * t, 4)}, {a(8 * i + 4 * mt, 4)}, {v(acc3(mt, t), 4) if i else 0}'
                for t in range(6) for mt in range(2)]
    code = [f'v_mov_b32 v13, {f2u(1 / 640)}']
    for mt in range(2):
        r = PS + 4 * mt
        code += [f'v_pk_add_f32 {v(r, 2)}, {v(r, 2)}, {v(r + 2, 2)}'] + qreduce(r, r + 2) + qreduce(r + 1, r + 3) + [
            f'v_mul_f32 v{r}, v13, -v{r}', f'v_mul_f32 v{r + 2}, v{r}, v{r}', f'v_fma_f32 v{r + 1}, v{r + 1}, v13, -v{r + 2}',
            f'v_max_f32 v{r + 1}, 0, v{r + 1}', f'v_add_f32 v{r + 1}, {f2u(EPS)}, v{r + 1}', f'v_rsq_f32 v{r + 1}, v{r + 1}',
            f'v_mul_f32 v{r}, v{r}, v{r + 1}']
    n3 = 20 - Cfg.U3
    D4 = dma(g4, 0, 10) + (dma(g4, 40, Cfg.m3) if Cfg.m3 else [])
    ex = spread(D4, range(max(n3, 10) if Cfg.m3 else n3, 20))
    for k_, L in spread(sched(code), range(0, 8)).items(): ex[k_] = ex.get(k_, []) + L
    mainloop(p, 20, 6, mf3, wreads(g3, WB3, 6, 1), xl3, Cfg.U3, ex, None, {10: lambda: p('s_barrier')} if Cfg.m3 else {})
    stamp(p, 17)
    p('s_barrier')
    K, ONE, O, T = 8, 10, 64, 144
    p(f'''
    v_mov_b32 v{K}, {f2u(C0)}
    v_mov_b32 v{K + 1}, {f2u(C1)}
    v_mov_b32 v{ONE}, 1.0
    s_mul_i32 s30, s52, 49152
    s_mul_i32 s31, s53, 3072
    s_add_u32 s30, s30, s31
    s_add_u32 s30, s30, {H3F}
    s_add_u32 s31, s30, 49152
    ''')
    code = []
    for mt in range(2):
        c2 = []
        for k in range(12):
            A = acc3(mt, 0) + 2 * k; t = T + 2 * k + 24 * mt; r = PS + 4 * mt
            c2 += [f'v_pk_mul_f32 {v(t, 2)}, {v(CS + 2 * k, 2)}, {v(r, 2)} op_sel_hi:[1,0]',
                   f'v_pk_fma_f32 {v(A, 2)}, {v(A, 2)}, {v(r, 2)}, {v(t, 2)} op_sel:[0,1,0] op_sel_hi:[1,1,1]']
            c2 += gelu_code(A, t, K, ONE, O + 12 * mt + k)
            if k % 4 == 3:
                c2.append(f'buffer_store_dwordx4 {v(O + 12 * mt + k - 3, 4)}, v1, s[4:7], s{30 + mt} offen offset:{1024 * (k // 4)}{FS_}')
        code += sched(c2)
    e3 = min(Cfg.e3, 30 - Cfg.m3)
    if e3: code = weave(code, dma(g4, 40 + 4 * Cfg.m3, e3), 0.0, Cfg.w3)
    emit(p, code)
    m = p.mark()
    if e3 + Cfg.m3 < 30: emit(p, dma(g4, 40 + 4 * (Cfg.m3 + e3), 30 - Cfg.m3 - e3))
    stamp(p, 18)
    publish(p, 's63', F4, 'pb3', m, f'buffer_load_dword v251, v14, s[4:7], s30 offen{SC}' if Cfg.fast is None else None, FS_)
    stamp(p, 19)
    srd(p, 8, 'out', 2048 * 1280)
    ldsbases(True)
    exaddr(9, 10, 0)
    p(f'''
    v_and_b32 v5, 15, v0
    v_mul_u32_u24 v5, 2560, v5
    v_lshrrev_b32 v7, 4, v0
    v_lshl_add_u32 v6, v7, 3, v5
    v_and_b32 v8, 1, v7
    v_lshl_add_u32 v5, v8, 5, v5
    v_lshrrev_b32 v7, 1, v7
    v_lshl_add_u32 v5, v7, 4, v5
    s_lshr_b32 s32, s24, 1
    s_lshl_b32 s32, s32, 5
    s_add_u32 s32, s32, s51
    s_mul_i32 s32, s32, 1280
    s_mul_i32 s33, s25, 160
    s_add_u32 s32, s32, s33
    s_lshl_b32 s28, s51, 10
    s_add_u32 s28, s28, {H3F}
    s_mul_i32 s30, s24, 49152
    s_add_u32 s30, s30, s28
    s_xor_b32 s31, s24, 1
    s_mul_i32 s31, s31, 49152
    s_add_u32 s31, s31, s28
    ''')
    def su5():
        p(f'''
        s_and_b32 s56, s62, 0xf0
        s_sub_u32 s95, s63, s56
        s_lshl_b32 s56, s56, {Cfg.FS}
        s_add_u32 s56, s56, {F4}
        v_lshlrev_b32 v253, {Cfg.FS}, v0
        s_mov_b64 s[58:59], 0xffff
        ''')
    poll(p, 'p4', su5, False, 's95')
    stamp(p, 20)
    def xl4(i):
        L = ['s_add_u32 s30, s30, 4096', 's_add_u32 s31, s31, 4096'] if i and i % 2 == 0 else []
        return L + [f'buffer_load_dwordx4 {a(8 * i + 4 * sl, 4)}, v1, s[4:7], s{30 + sl} offen offset:{2048 * (i & 1)}{SC}' for sl in range(2)]
    mk = {}
    def setmk(k): return lambda: mk.__setitem__(k, p.mark())
    ex = spread(dma(g4, 160, 10) + [setmk(0)], range(3, 7))
    ex.update(spread(dma(g4, 200, 10) + [setmk(1)], range(7, 11)))
    def wb(k):
        def f(): p.wait_vm(mk[k]); p('s_barrier')
        return f
    bar = lambda: p('s_barrier')
    WB4 = 36; TX = 96
    mainloop(p, 24, 5, mfk((HX, 16), WB4), wreads(g4, WB4, 10, 2), xl4, Cfg.U4, ex, None, {3: bar, 7: bar, 14: wb(0), 18: wb(1)})
    stamp(p, 21)
    emit(p, exch(9, 10, HX, 16))
    O = 120
    for pr in range(2):
        o = O + 4 * pr
        for h_ in range(2):
            A = HX + 4 * (2 * pr + h_)
            p(f'v_cvt_pk_bf16_f32 v{o + 2 * h_}, v{A}, v{A + 1}\nv_cvt_pk_bf16_f32 v{o + 2 * h_ + 1}, v{A + 2}, v{A + 3}')
        p(f'v_permlane16_swap_b32 v{o}, v{o + 2}\nv_permlane16_swap_b32 v{o + 1}, v{o + 3}')
        p(f'buffer_store_dwordx4 {v(o, 4)}, v5, s[8:11], s32 offen offset:{64 * pr}{Cfg.osc}')
    A = HX + 16
    p(f'v_cvt_pk_bf16_f32 v{O + 8}, v{A}, v{A + 1}\nv_cvt_pk_bf16_f32 v{O + 9}, v{A + 2}, v{A + 3}')
    p(f'buffer_store_dwordx2 {v(O + 8, 2)}, v6, s[8:11], s32 offen offset:128{Cfg.osc}')
    if dbg:
        p('s_waitcnt vmcnt(0)')
        stamp(p, 22)
        p('s_memtime s[98:99]\ns_waitcnt lgkmcnt(0)\nv_writelane_b32 v255, s98, 31')
        p(f'''
        s_lshl_b32 s29, s2, 2
        s_add_u32 s29, s29, s3
        s_lshl_b32 s29, s29, 7
        s_add_u32 s29, s29, {DBGW}
        v_lshlrev_b32 v2, 2, v0
        s_mov_b32 exec_hi, 0
        buffer_store_dword v255, v2, s[4:7], s29 offen
        ''')
    p('k_end:\ns_endpgm')
    return p

if __name__ == '__main__':
    import sys
    from build import HDR
    out = sys.argv[1]; dbg = 'dbg' in sys.argv[2:]
    for a_ in sys.argv[2:]:
        if '=' in a_:
            k_, v_ = a_.split('='); setattr(Cfg, k_, eval(v_))
    name = 'pers_kernel' if 'list' in sys.argv[2:] else NAME
    open(out, 'w').write(file_text([(name, build(dbg), 256, 256, LDSZ)], HDR))
```

```python
import kern
from kern import *
kern.SC = ' sc1'
SC = ' sc1'
LDSZ = 163840
F0, F1, F2, F3, F4, EPW = [FLG + 65536 * k for k in range(6)]
NAME = 'sequential_preLN__ssm_conv_s4d__mixer_s_mlp__prompt_kernel'
FB, UC, RC = 0, 69632, 103040
CHY = 8512
XP, SR = 208, 224
MF = 'v_mfma_f32_16x16x32_bf16'

TAG = 's_mul_i32 s60, s60, 0x9e3779b1\ns_add_u32 s60, s60, 0x7f4a7c15'
class Cfg:
    stamp = False
    spin = 0x10000
    inj = 0.72
    U1 = 6; U2 = 7; U3 = 8; U4 = 10
    pf = False
    warm = False
    FS = 7
    pw = 1
    own = True
    jc = 2
    m3 = 15
    slp = 0
    early = True
    w3 = 0.3
    fast = None
    fast1 = None
    osc = ''
    st3 = {}; st4 = {}
    daf = (1, 2)
    cq0 = True; pb64 = True
    wfd = 3
    hx = 16; hdl = 0
    c0 = 52; i2a = 0.1; i2b = 0.8
    ack = True
    sslp = 0
    jf = 6
    e3 = 15

def stamp(p, i):
    if Cfg.stamp:
        p(f's_memrealtime s[98:99]\ns_waitcnt lgkmcnt(0)\nv_writelane_b32 v255, s98, {i}')

def flag_store(p, lab, pairs, R=252, sc=' sc1'):
    p(f's_cmp_lg_u32 s3, 0\ns_cbranch_scc1 {lab}_np\nv_mov_b32 v{R}, s60\nv_mov_b32 v{R + 1}, 0\ns_mov_b64 exec, 1')
    for sidx, base in pairs:
        p(f's_lshl_b32 s56, {sidx}, {Cfg.FS}\ns_add_u32 s56, s56, {base}\nbuffer_store_dword v{R}, v{R + 1}, s[4:7], s56 offen{sc}')
    p(f's_mov_b64 exec, -1\n{lab}_np:')

def publish(p, sidx, base, lab, m=None, pf=None, sc=' sc1'):
    if m is None: p('s_waitcnt vmcnt(0)')
    else: p.wait_vm(m)
    if pf and Cfg.pf: p(pf)
    p('s_barrier')
    flag_store(p, lab, [(sidx, base)], 252, sc)

def spin(p, lab, width, R):
    sfx = {1: 'dword', 2: 'dwordx2', 4: 'dwordx4'}[width]
    p(f's_mov_b64 exec, s[58:59]\ns_mov_b32 s61, {Cfg.spin}\n{lab}_loop:')
    p(f'buffer_load_{sfx} {v(R, width)}, v253, s[4:7], s56 offen sc1\ns_waitcnt vmcnt(0)')
    for k in range(width): p(f'v_xor_b32 v{R + k}, s60, v{R + k}')
    if width == 2: p(f'v_or_b32 v{R}, v{R}, v{R + 1}')
    if width == 4: p(f'v_or3_b32 v{R}, v{R}, v{R + 1}, v{R + 2}\nv_or_b32 v{R}, v{R}, v{R + 3}')
    p(f'''
    v_cmp_ne_u32 vcc, 0, v{R}
    s_sub_u32 s61, s61, 1
    s_cbranch_scc1 {lab}_out
    s_cbranch_vccz {lab}_out
    {f's_sleep {Cfg.slp}' if Cfg.slp else ''}
    s_branch {lab}_loop
    {lab}_out:
    s_mov_b64 exec, -1
    ''')

def poll(p, lab, setup, every=False, own=None):
    if not every: p(f's_cmp_lg_u32 s3, {Cfg.pw}\ns_cbranch_scc1 {lab}_skip')
    setup()
    if own and Cfg.own:
        p(f's_cmp_lt_u32 {own}, 64\ns_cselect_b32 s57, 1, 0\ns_mov_b32 s61, 0\ns_and_b32 {own}, {own}, 63\ns_mov_b32 s96, s57\ns_mov_b32 s97, 0\ns_lshl_b64 s[96:97], s[96:97], {own}\ns_andn2_b64 s[58:59], s[58:59], s[96:97]')
    spin(p, lab, 1, 254)
    p(f'{lab}_skip:\ns_waitcnt vmcnt(0)\ns_barrier')

class PG:
    def __init__(self, NT, NS, WF, sJ, base):
        self.NT, self.NS, self.WF, self.sJ, self.base = NT, NS, WF, sJ, base

def dma(g, first, n, sr='s[4:7]'):
    slot = (g.base + first) % 160
    assert slot + 4 * n <= 160
    L = [f's_mul_i32 s54, s{g.sJ}, {g.NS * g.NT}', f's_mul_i32 s55, s3, {n}', 's_add_u32 s54, s54, s55', f's_add_u32 s55, s55, {slot}',
         's_lshl_b32 s54, s54, 10', 's_lshl_b32 m0, s55, 10', f's_add_u32 s54, s54, {g.WF + first * 1024}']
    for k in range(n):
        if k and k % 4 == 0: L += ['s_add_u32 m0, m0, 4096', 's_add_u32 s54, s54, 4096']
        L.append(f'buffer_load_dwordx4 v1, {sr}, s54 offen offset:{1024 * (k & 3)}{SC} lds')
    return L

def emit(p, L):
    for t in L: p(t)

def spread(L, steps):
    d = {}
    for k, s_ in enumerate(steps):
        d[s_] = L[len(L) * k // len(steps): len(L) * (k + 1) // len(steps)]
    return d

def weave(code, fill, lo=0.0, hi=1.0):
    n = len(code); a_, b_ = int(n * lo), int(n * hi); out = list(code[:a_]); k = 0
    for i in range(a_, b_):
        out.append(code[i])
        e = len(fill) * (i - a_ + 1) // (b_ - a_)
        out += fill[k:e]; k = e
    return out + list(code[b_:])

STUBS = []
CT = 250
class XS:
    def __init__(self, lab, reg, addr, run):
        self.lab, self.reg, self.addr, self.run = lab, reg, addr, run
        self.cur = {b: 0 for b in run}
    def init(self): return [f's_mov_b32 s{r}, s{b}' for b, r in self.run.items()]
    def main(self, i):
        L = []; Q = []
        for h, (vo, b, off) in enumerate(self.addr(i)):
            k = off >> 12
            if k != self.cur[b]:
                L.append(f's_add_u32 s{self.run[b]}, s{b}, {4096 * k}'); self.cur[b] = k
            Q.append(f'buffer_load_dwordx4 {v(self.reg(i) + 4 * h, 4)}, v{vo}, s[4:7], s{self.run[b]} offen offset:{off & 4095}{SC}')
        return L + Q
    def abs(self, i):
        L = []
        for h, (vo, b, off) in enumerate(self.addr(i)):
            L += [f's_add_u32 s57, s{b}, {off & ~4095}',
                  f'buffer_load_dwordx4 {v(self.reg(i) + 4 * h, 4)}, v{vo}, s[4:7], s57 offen offset:{off & 4095}{SC}']
        return L

def chk(x):
    return [f'v_max3_u32 v{CT}, v{x}, v{x + 1}, v{x + 2}', f'v_max3_u32 v{CT + 1}, v{x + 3}, v{x + 4}, v{x + 5}',
            f'v_max3_u32 v{CT}, v{CT}, v{x + 6}, v{x + 7}', f'v_max_u32 v{CT}, v{CT}, v{CT + 1}', f'v_cmp_eq_u32 vcc, -1, v{CT}']

def stub(lab, ents):
    L = [f'{lab}:', 's_waitcnt vmcnt(0)', 's_cmp_eq_u32 s61, 0', f's_cbranch_scc1 {lab}_b', 's_sub_u32 s61, s61, 1']
    if Cfg.sslp: L.append(f's_sleep {Cfg.sslp}')
    L += ents[0][1]
    for k, (x, rl) in enumerate(ents[1:]):
        L += chk(x) + [f's_cbranch_vccz {lab}_s{k}'] + rl + [f'{lab}_s{k}:']
    L += ['s_waitcnt vmcnt(0)'] + chk(ents[0][0]) + [f's_cbranch_vccnz {lab}', f's_branch {lab}_b']
    STUBS.extend('@' + t for t in L)
    return [f'@s_cbranch_vccnz {lab}\n@{lab}_b:']

def mainloop(p, n, NT, mf, wr, xs, U, bar, extra={}, pre=None, sync={}, st={}):
    marks = {}
    ck = bar is not None
    if not ck: emit(p, wr(0) + wr(1))
    emit(p, xs.init())
    for i in range(min(U, n)):
        emit(p, xs.main(i)); marks[i] = p.mark()
    if ck:
        bar()
        emit(p, wr(0) + wr(1))
    win = lambda i, last: stub(f'{xs.lab}{i}', [(xs.reg(j), xs.abs(j)) for j in range(i, min(last, n - 1) + 1)])
    if ck: p.wait_vm(marks[0]); emit(p, chk(xs.reg(0)) + win(0, U - 1))
    if pre: emit(p, pre(0))
    for i in range(n):
        if ck: p(f's_waitcnt lgkmcnt({NT if i + 1 < n else 0})')
        else: p.wait_vm(marks[i], NT if i + 1 < n else 0)
        if i in sync: sync[i]()
        if i in st: stamp(p, st[i])
        fill = [(t, None) for t in (wr(i + 2) if i + 2 < n else [])]
        if i + U < n:
            x = xs.main(i + U); fill += [(t, None) for t in x[:-1]] + [(x[-1], i + U)]
        fill += [(t, None) for t in extra.get(i, [])]
        M = mf(i); G_ = len(M) - (5 if pre else 4) if (ck and i + 1 < n) else len(M); k = 0
        c = chk(xs.reg(i + 1)) if i + 1 < n else []
        for gi, m_ in enumerate(M):
            p(m_)
            if gi < G_:
                e = -(-len(fill) * (gi + 1) // G_)
                for t, mk in fill[k:e]:
                    if callable(t): t()
                    else: p(t)
                    if mk is not None: marks[mk] = p.mark()
                k = e
            elif gi == G_: p.wait_vm(marks[i + 1]); emit(p, c[0:2])
            elif gi == G_ + 1: emit(p, c[2:4])
            elif gi == G_ + 2: emit(p, c[4:])
            elif gi == G_ + 3:
                emit(p, win(i + 1, i + U))
                if pre: emit(p, pre(i + 1))

def helper(p):
    end = H3F + 128 * 49152 if 4 in Cfg.daf else H3F if 3 in Cfg.daf else X1F if 2 in Cfg.daf else H1F
    tot = (end - H1F) // 1024
    y = max(0, -(-(tot - 96 * Cfg.hx) // 256)); x = y + Cfg.hx if tot else 0
    assert H1F + (160 * y + 96 * x) * 1024 <= W1F
    p('helper:')
    if Cfg.hdl: p(f's_sleep {Cfg.hdl}')
    for k in range(4): p(f'v_mov_b32 v{4 + k}, -1')
    p(f'''
    v_lshlrev_b32 v1, 4, v0
    s_cmp_ge_u32 s2, 160
    s_cbranch_scc1 hlp_b
    s_and_b32 s50, s2, 7
    s_mul_i32 s50, s50, 20
    s_lshr_b32 s51, s2, 3
    s_add_u32 s50, s50, s51
    v_lshrrev_b32 v3, 4, v0
    v_mul_u32_u24 v3, 40960, v3
    v_and_b32 v2, 15, v0
    v_lshl_add_u32 v2, v2, 4, v3
    s_lshl_b32 s28, s50, 8
    s_add_u32 s28, s28, {HQ}
    ''')
    for k in range(16):
        p(f'buffer_store_dwordx4 v[4:7], v2, s[4:7], s28 offen{SC}\ns_add_u32 s28, s28, {4 * 40960}')
    p(f'''
    s_mul_i32 s28, s2, {y * 1024}
    s_add_u32 s29, s28, {y * 1024}
    s_branch hlp_go
    hlp_b:
    s_mul_i32 s28, s2, {x * 1024}
    s_sub_u32 s28, s28, {160 * (x - y) * 1024}
    s_add_u32 s29, s28, {x * 1024}
    hlp_go:
    s_add_u32 s28, s28, {H1F}
    s_add_u32 s29, s29, {H1F}
    hlp_top:
    s_cmp_ge_u32 s28, s29
    s_cbranch_scc1 hlp_end
    buffer_store_dwordx4 v[4:7], v1, s[4:7], s28 offen{SC}
    s_add_u32 s28, s28, 1024
    s_branch hlp_top
    hlp_end:
    s_waitcnt vmcnt(0)
    s_endpgm
    ''')

F1L = ['v_lshlrev_b32 v244, %d, v0' % Cfg.FS, f's_lshl_b32 s57, s3, {6 + Cfg.FS}', f's_add_u32 s57, s57, {F1}',
       f'buffer_load_dword v240, v244, s[4:7], s57 offen{SC}']
CW = 65536

def kgen2(p, inject, inject2):
    ACC = 24; FR = 40; Lr = 104; T = 136
    p(f'''
    s_mul_i32 s26, s3, 17408
    s_mov_b32 m0, s26
    v_and_b32 v3, 31, v0
    v_mul_u32_u24 v3, 272, v3
    v_lshrrev_b32 v4, 5, v0
    v_lshl_add_u32 v3, v4, 4, v3
    v_add_u32 v3, s26, v3
    v_mov_b32 v4, 0x3f80
    ds_write_addtid_b32 v4
    s_mul_i32 s27, s3, 4608
    s_add_u32 s27, s27, {RC}
    v_lshlrev_b32 v5, 3, v0
    v_add_u32 v5, s27, v5
    v_mov_b32 v6, 0
    v_mov_b32 v7, 0
    ds_write_b64 v5, v[6:7]
    s_mov_b32 s36, {f2u(LOG2E)}
    s_mov_b32 s37, {f2u(1 / (2 * math.pi))}
    s_mov_b32 s38, 0x41000000
    s_mov_b32 s39, 0x43800000
    v_mul_f32 v20, s36, v20
    v_exp_f32 v20, v20
    v_cvt_pk_bf16_f32 v20, v20, v20
    v_lshlrev_b32 v20, 16, v20
    v_add_f32 v22, v20, v20
    v_cmp_eq_u32 vcc, 0, v0
    v_cndmask_b32 v21, 0, v21, vcc
    ''')
    code = []; tp = [T]
    def new(n=2):
        r = tp[0]; tp[0] += n; return r
    cv = [0]; CV = 240
    def put(val, rows, neg):
        r = CV + (cv[0] % 12); cv[0] += 1
        code.append(f'v_cvt_pk_bf16_f32 v{r}, v{val}, {"-" if neg else ""}v{val + 1}')
        for row in rows: code.append(f'ds_write_addtid_b32 v{r} offset:{272 * row}')
    for st in range(3):
        tp[0] = T
        la, ai, cr, ci = [8 + 4 * st + k for k in range(4)]
        E1, E256, G0 = new(), new(), new()
        E8 = Lr
        t = new(10)
        code += [f'v_mul_f32 v{la}, s36, v{la}', f'v_exp_f32 v{la}, v{la}', f'v_cvt_pk_bf16_f32 v{la}, v{la}, v{la}',
                 f'v_lshlrev_b32 v{la}, 16, v{la}', f'v_mul_f32 v{la}, v{la}, v20', f'v_mul_f32 v{la}, -v{la}, s36',
                 f'v_mul_f32 v{ai}, v{ai}, v20', f'v_mul_f32 v{ai}, s37, v{ai}',
                 f'v_mul_f32 v{G0}, v{cr}, v22', f'v_mul_f32 v{G0 + 1}, v{ci}, v22']
        for k, (E, sc) in enumerate(((E8, 's38'), (E1, None), (E256, 's39'))):
            m_, a_ = t + 3 * k, t + 3 * k + 1
            if sc:
                code += [f'v_mul_f32 v{m_}, {sc}, v{la}', f'v_mul_f32 v{a_}, {sc}, v{ai}', f'v_exp_f32 v{m_}, v{m_}', f'v_fract_f32 v{a_}, v{a_}']
            else:
                code += [f'v_exp_f32 v{m_}, v{la}', f'v_fract_f32 v{a_}, v{ai}']
            code += [f'v_cos_f32 v{E}, v{a_}', f'v_sin_f32 v{E + 1}, v{a_}',
                     f'v_mul_f32 v{E}, v{E}, v{m_}', f'v_mul_f32 v{E + 1}, v{E + 1}, v{m_}']
        Lx = lambda j: Lr + 2 * (j - 1)
        put(E8, [1], False)
        put(G0, [32 + r for r in HROW[0]], True)
        tmp = [new() for _ in range(6)]; ti = [0]
        def nt():
            r = tmp[ti[0] % len(tmp)]; ti[0] += 1; return r
        E2, E4 = new(), new()
        G = {0: G0}
        hi = [(E2, E1, E1, None), (E4, E2, E2, None)]
        HL = ((1, 0, E1), (2, 0, E2), (3, 1, E2), (4, 0, E4), (5, 1, E4), (6, 2, E4), (7, 3, E4), (8, 0, E8),
              (256, 0, E256), (264, 8, E256), (258, 2, E256), (260, 4, E256), (262, 6, E256),
              (512, 256, E256), (520, 264, E256), (516, 260, E256), (768, 512, E256), (776, 520, E256), (772, 516, E256),
              (1024, 768, E256), (1032, 776, E256), (1280, 1024, E256), (1288, 1032, E256),
              (1536, 1280, E256), (1544, 1288, E256), (1792, 1536, E256), (1800, 1544, E256))
        used = {a_ for _, a_, _ in HL}
        for h_, a_, b_ in HL:
            G[h_] = new() if h_ in used else None
            hi.append((G[h_], G[a_], b_, h_))
        lo = []
        for j in range(2, 32):
            pw = 1 << (j.bit_length() - 1)
            a_, b_ = (pw // 2, pw // 2) if j == pw else (j - pw, pw)
            lo.append((Lx(j) if j <= 16 else None, Lx(a_), Lx(b_), j))
        for k in range(max(len(lo), len(hi))):
            if k < len(lo):
                D_, X_, Y_, j = lo[k]; D_ = nt() if D_ is None else D_
                code += cmul(D_, X_, Y_); put(D_, [j], False)
            if k < len(hi):
                D_, X_, Y_, h_ = hi[k]; D_ = nt() if D_ is None else D_
                code += cmul(D_, X_, Y_)
                if h_ in HROW: put(D_, [32 + r for r in HROW[h_]], True)
        assert tp[0] <= XP, tp[0]
        for m in range(8):
            code.append(f'ds_read_b128 {v(FR + 4 * m, 4)}, v3 offset:{32 * 272 + 32 * m}')
            code.append(f'ds_read_b128 {v(FR + 32 + 4 * m, 4)}, v3 offset:{32 * m}')
        for m in range(8):
            c = '0' if (st == 0 and m == 0) else v(ACC, 16)
            code.append(f'v_mfma_f32_32x32x16_bf16 {v(ACC, 16)}, {v(FR + 4 * m, 4)}, {v(FR + 32 + 4 * m, 4)}, {c}')
    S = sched(code)
    k = int(len(S) * Cfg.inj)
    emit(p, weave(S[:k], inject2, Cfg.i2a, Cfg.i2b) + inject + S[k:])
    q = lambda i: f'v{ACC + i}'
    O = FR
    p(f'''
    v_lshlrev_b32 v5, 4, v0
    v_add_u32 v5, s27, v5
    v_lshrrev_b32 v6, 5, v0
    v_lshl_add_u32 v6, v6, 9, v5
    s_mov_b32 s40, 0xaaaaaaaa
    s_mov_b32 s41, 0xaaaaaaaa
    v_add_f32 {q(0)}, {q(0)}, v21
    v_cvt_pk_bf16_f32 v{O}, {q(7)}, {q(6)}
    v_cvt_pk_bf16_f32 v{O + 1}, {q(5)}, {q(4)}
    v_cvt_pk_bf16_f32 v{O + 2}, {q(3)}, {q(2)}
    v_cvt_pk_bf16_f32 v{O + 3}, {q(1)}, {q(0)}
    ds_write_b128 v5, {v(O, 4)} offset:512
    v_cvt_pk_bf16_f32 v{O + 4}, {q(14)}, {q(14)}
    v_cvt_pk_bf16_f32 v{O + 5}, {q(13)}, {q(13)}
    v_cvt_pk_bf16_f32 v{O + 6}, {q(13)}, {q(12)}
    v_cvt_pk_bf16_f32 v{O + 7}, {q(12)}, {q(12)}
    ds_write_b128 v5, {v(O + 4, 4)} offset:{96 * 16}
    ''')
    for k in range(2):
        a_, b_ = q(8 + 2 * k), q(9 + 2 * k); o = O + 8 + 4 * k
        p(f'''
        v_cndmask_b32 v7, {a_}, {b_}, s[40:41]
        v_cvt_pk_bf16_f32 v{o}, {b_}, {b_}
        v_cvt_pk_bf16_f32 v{o + 1}, {b_}, v7
        v_cvt_pk_bf16_f32 v{o + 2}, {a_}, {a_}
        v_mov_b32 v{o + 3}, v{o + 2}
        ds_write_b128 v6, {v(o, 4)} offset:{160 * 16 + 512 * k}
        ''')

def normalize(p):
    M0 = 40960
    p(f'''
    s_lshl_b32 s46, s3, 10
    s_add_u32 m0, s46, {M0}
    s_add_u32 s46, s46, {UC + 4160 + 30}
    v_lshl_add_u32 v8, v0, 2, s46
    s_mov_b32 s48, 0xffff0000
    ''')
    code = []
    for k in range(4):
        B = 64 + 32 * (k & 1)
        for pp in range(2):
            ms = SR + 4 * k + 2 * pp; rn = B + 16 + 2 * pp; F = B + 4 * pp; x = XP + 4 * k + 2 * pp
            code += [f'v_and_b32 v{rn}, s48, v{ms}', f'v_rcp_f32 v{rn}, v{rn}', f'v_lshlrev_b32 v{ms}, 16, v{ms}',
                     f'v_mul_f32 v{rn + 1}, -v{ms}, v{rn}'] + unpack(F, x, 48) + unpack(F + 2, x + 1, 48)
            for h_ in range(2):
                code.append(f'v_pk_fma_f32 {v(F + 2 * h_, 2)}, {v(F + 2 * h_, 2)}, {v(rn, 2)}, {v(rn, 2)} op_sel:[0,0,1] op_sel_hi:[1,0,1]')
        for c in range(4):
            E = B + 8 + c
            code += [f'v_cvt_pk_bf16_f32 v{E}, v{B + c}, v{B + 4 + c}',
                     f'ds_write_addtid_b32 v{E} offset:{UC + 32 - M0 + c * CHS + 256 * k}',
                     f'ds_write_b16 v8, v{E} offset:{c * CHS + 256 * k}',
                     f'ds_write_b16_d16_hi v8, v{E} offset:{c * CHS + 256 * k + 2}']
    emit(p, sched(code))

def conv2(p, fill):
    ACC = 24; KF = [56, 88]; UF = [120, 152]
    p(f'''
    v_and_b32 v8, 15, v0
    v_lshrrev_b32 v9, 4, v0
    v_and_b32 v10, 1, v0
    v_mul_u32_u24 v10, 4158, v10
    v_lshlrev_b32 v11, 1, v8
    v_sub_u32 v11, v11, v10
    v_lshl_add_u32 v11, v9, 4, v11
    s_mul_i32 s46, s3, {CHS}
    s_add_u32 s47, s46, {UC + 4160}
    v_add_u32 v11, s47, v11
    v_add_u32 v12, 1024, v11
    v_add_u32 v13, 2048, v11
    v_add_u32 v14, 3072, v11
    v_lshlrev_b32 v15, 5, v8
    v_lshlrev_b32 v16, 4, v9
    v_sub_u32 v15, v15, v16
    s_mul_i32 s47, s3, 4608
    s_add_u32 s47, s47, {RC + 16 + 512 - 448}
    v_add_u32 v15, s47, v15
    s_waitcnt lgkmcnt(0)
    s_barrier
    ''')
    flag_store(p, 'pba', [('s2', F1)], 245)
    stamp(p, 4)
    def loads(j0):
        b = j0 & 1; out = []
        kf = lambda d: f'ds_read_b128 {v(KF[b] + 4 * d, 4)}, v15 offset:{512 * d - 64 * j0 + 448}'
        out.append(kf(0))
        for jp in range(8):
            o = 128 * (jp & 1) + 16 * j0
            out.append(f'ds_read2_b32 {v(UF[b] + 4 * jp, 2)}, v{11 + (jp >> 1)} offset0:{o} offset1:{o + 1}')
            out.append(f'ds_read2_b32 {v(UF[b] + 4 * jp + 2, 2)}, v{11 + (jp >> 1)} offset0:{o + 2} offset1:{o + 3}')
        out += [kf(d) for d in range(1, 8)]
        return out
    emit(p, loads(0))
    p(f'''
    v_lshlrev_b32 v16, 2, v9
    v_lshl_add_u32 v16, v8, 4, v16
    s_mul_i32 s47, s3, {CHY}
    s_add_u32 s47, s47, {UC}
    v_add_u32 v16, s47, v16
    v_bfe_u32 v17, v0, 2, 2
    v_mul_u32_u24 v17, {CHY}, v17
    v_and_b32 v18, 3, v0
    v_lshl_add_u32 v17, v18, 3, v17
    v_lshl_add_u32 v17, v9, 5, v17
    s_lshl_b32 s47, s3, 10
    s_add_u32 s47, s47, {UC}
    v_add_u32 v17, s47, v17
    v_mul_u32_u24 v18, 40960, v9
    v_lshl_add_u32 v18, v8, 4, v18
    s_mul_i32 s44, s3, {16 * 40960}
    s_lshl_b32 s45, s50, 8
    s_add_u32 s44, s44, s45
    s_add_u32 s44, s44, {HQ}
    ''')
    order = []
    for d in range(8):
        Is = list(range(d, 8))
        if d == 5: Is = [7, 5, 6]
        if d == 6: Is = [7, 6]
        order += [(I, d) for I in Is]
    F = spread(fill, range(Cfg.jc, 8))
    for j0 in range(8):
        b = j0 & 1
        nx = loads(j0 + 1) if j0 < 7 else []
        if j0: p('s_waitcnt lgkmcnt(0)')
        if j0 == Cfg.jc:
            p('''
            v_cmp_ne_u32 vcc, s60, v253
            s_mov_b32 s8, s4
            s_mov_b32 s9, s5
            s_mov_b32 s11, s7
            s_cmp_eq_u64 vcc, 0
            s_cselect_b32 s10, s6, 0
            ''')
        fl = F.get(j0, []) + (F1L if j0 == Cfg.jf else []); k0 = 0
        for k, (I, d) in enumerate(order):
            c = v(ACC + 4 * I, 4)
            src = '0' if (j0 == 0 and d == 0) else c
            p(f'{MF} {c}, {v(UF[b] + 4 * (I - d), 4)}, {v(KF[b] + 4 * d, 4)}, {src}')
            if k < len(nx): p(nx[k])
            if k >= 24:
                e = len(fl) * (k - 23) // 12
                emit(p, fl[k0:e]); k0 = e
    stamp(p, 5)
    for I in (0, 1, 2, 3, 4, 5, 6, 7):
        o = 56 + 2 * I
        p(f'v_cvt_pk_bf16_f32 v{o}, v{ACC + 4 * I}, v{ACC + 4 * I + 2}')
        p(f'v_cvt_pk_bf16_f32 v{o + 1}, v{ACC + 4 * I + 1}, v{ACC + 4 * I + 3}')
        p(f'ds_write2st64_b32 v16, v{o}, v{o + 1} offset0:{2 * I} offset1:{2 * I + 1}')
    U_ = 128
    for r in range(16): emit(p, unpack(U_ + 2 * r, XP + r, 48))
    p(f'''
    s_lshl_b32 s57, s3, 2
    s_add_u32 s57, s57, {CW}
    v_mov_b32 v242, s57
    v_mov_b32 v243, {CW}
    s_waitcnt vmcnt(0)
    v_cmp_ne_u32 vcc, s60, v240
    s_cmp_eq_u32 s10, 0
    s_cselect_b32 s57, 1, vcc_lo
    s_or_b32 s57, s57, vcc_hi
    v_mov_b32 v241, s57
    ds_write_b32 v242, v241
    s_waitcnt lgkmcnt(0)
    s_barrier
    ds_read_b128 v[240:243], v243
    ''')
    Y = 72
    for k in range(4):
        for pp in range(2):
            p(f'ds_read_b64_tr_b16 {v(Y + 4 * k + 2 * pp, 2)}, v17 offset:{512 * (k >> 1) + 256 * pp + 128 * (k & 1)}')
    code = []
    for k in range(4):
        for r in range(4 * k, 4 * k + 4):
            t = 96 + 2 * r
            code += unpack(t, Y + r, 48) + [f'v_pk_add_f32 {v(t, 2)}, {v(t, 2)}, {v(U_ + 2 * r, 2)}', f'v_cvt_pk_bf16_f32 v{Y + r}, v{t}, v{t + 1}']
        code.append(f'buffer_store_dwordx4 {v(Y + 4 * k, 4)}, v18, s[4:7], s44 offen{SC}')
        if k < 3: code.append(f's_add_u32 s44, s44, {4 * 40960}')
    emit(p, code)

def ln_stats(p, sl):
    srd(p, 8, 'x', 2048 * 1280)
    XS = [8, 100]; F = 32
    p(f'''
    v_lshrrev_b32 v1, 4, v0
    v_and_b32 v2, 15, v0
    v_mul_u32_u24 v3, 1280, v1
    v_lshl_add_u32 v3, v2, 4, v3
    s_lshl_b32 s24, s{sl}, 2
    s_add_u32 s24, s24, s3
    s_lshl_b32 s25, s24, 6
    s_add_u32 s25, s25, {STAT}
    s_mul_i32 s24, s24, {8 * 1280}
    ''')
    for n in range(2):
        if n: p('s_add_u32 s24, s24, 5120')
        for i in range(5):
            p(f'buffer_load_dwordx4 {v(XS[n] + 4 * i, 4)}, v3, s[8:11], s24 offen offset:{256 * i}')
    p(f'''
    v_lshl_add_u32 v4, v2, 2, v1
    v_lshlrev_b32 v4, 3, v4
    s_mov_b32 s28, 0xffff0000
    ''')
    for n in range(2):
        X = XS[n]
        for i in range(5):
            for d in range(4):
                k = 4 * i + d
                emit(p, unpack(F + 2 * k, X + k, 28))
            if i == 0:
                p(f'v_pk_add_f32 v[72:73], {v(F, 2)}, {v(F + 2, 2)}')
                p(f'v_pk_add_f32 v[74:75], {v(F + 4, 2)}, {v(F + 6, 2)}')
            else:
                for d in range(4):
                    a_ = 72 + 2 * (d & 1)
                    p(f'v_pk_add_f32 {v(a_, 2)}, {v(a_, 2)}, {v(F + 8 * i + 2 * d, 2)}')
        p('v_pk_add_f32 v[72:73], v[72:73], v[74:75]')
        p('v_add_f32 v72, v72, v73')
        row16_reduce(p, 72)
        p(f'v_mul_f32 v72, {f2u(1 / 640)}, v72')
        for k in range(20):
            p(f'v_pk_add_f32 {v(F + 2 * k, 2)}, {v(F + 2 * k, 2)}, v[72:73] op_sel_hi:[1,0] neg_lo:[0,1] neg_hi:[0,1]')
        for k in range(20):
            a_ = 74 + 2 * (k & 1)
            if k < 2: p(f'v_pk_mul_f32 {v(a_, 2)}, {v(F + 2 * k, 2)}, {v(F + 2 * k, 2)}')
            else: p(f'v_pk_fma_f32 {v(a_, 2)}, {v(F + 2 * k, 2)}, {v(F + 2 * k, 2)}, {v(a_, 2)}')
        p('v_pk_add_f32 v[74:75], v[74:75], v[76:77]')
        p('v_add_f32 v74, v74, v75')
        row16_reduce(p, 74)
        p(f'''
        v_mul_f32 v74, {f2u(1 / 640)}, v74
        v_cvt_pk_bf16_f32 v74, v74, v74
        v_lshlrev_b32 v74, 16, v74
        v_add_f32 v74, {f2u(EPS)}, v74
        v_cvt_pk_bf16_f32 v74, v74, v74
        v_lshlrev_b32 v74, 16, v74
        v_sqrt_f32 v74, v74
        v_cvt_pk_bf16_f32 v{78 + n}, v72, v74
        ''')
    p(TAG)
    p(f'''
    v_cmp_eq_u32 vcc, 0, v2
    v_cndmask_b32 v78, v79, v78, vcc
    v_mov_b32 v79, s60
    s_mov_b32 s30, 0x00030003
    s_mov_b32 s31, 0x00030003
    s_mov_b64 exec, s[30:31]
    buffer_store_dwordx2 v[78:79], v4, s[4:7], s25 offen{SC}
    s_mov_b64 exec, -1
    ''')

def relayout2(p, lab):
    p(f'''
    s_cmp_lt_u32 s20, 20
    s_cbranch_scc1 {lab}_w1
    s_cmp_lt_u32 s20, 40
    s_cbranch_scc1 {lab}_w2
    s_cmp_lt_u32 s20, 88
    s_cbranch_scc1 {lab}_w3
    ''')
    def params(name, rs, nrows, u0, dest, nt, ns, sp, cs):
        srd(p, 8, name, nrows * rs)
        if name == 'w4':
            p(f'''
            s_sub_u32 s24, s20, 88
            s_mul_i32 s35, s24, 205
            s_lshr_b32 s35, s35, 12
            s_mul_i32 s25, s35, 20
            s_sub_u32 s24, s24, s25
            s_lshl_b32 s35, s35, 4
            s_add_u32 s35, s35, s3
            s_lshl_b32 s25, s35, 5
            s_mov_b32 s38, 4
            ''')
        else:
            p(f's_sub_u32 s24, s20, {u0}\ns_mov_b32 s35, s3\ns_mov_b32 s38, 5')
            if sp: p('s_lshr_b32 s25, s3, 1\ns_mul_i32 s25, s25, 80\ns_and_b32 s26, s3, 1\ns_lshl_b32 s26, s26, 5\ns_add_u32 s25, s25, s26')
            else: p('s_lshl_b32 s25, s3, 5')
        p(f's_mul_i32 s25, s25, {rs}\ns_mov_b32 s26, {(160 if sp else 128) * rs}')
        if sp: p(f's_mul_i32 s27, s3, {160 * rs}\ns_add_u32 s27, s27, {64 * rs}')
        else: p(f's_add_u32 s27, s25, {512 * rs}')
        P = nt * 1024
        if name == 'w2':
            p(f'''
            s_lshl_b32 s35, s3, 1
            s_mov_b32 s39, {8 * P}
            s_mov_b32 s40, {(-7 * P) & 0xffffffff}
            s_and_b32 s41, s3, 1
            s_lshl_b32 s41, s41, 1
            s_lshr_b32 s43, s3, 1
            s_add_u32 s41, s41, s43
            s_add_u32 s41, s41, 7
            s_sub_u32 s41, s41, s35
            s_mul_i32 s41, s41, {P}
            ''')
        else:
            p(f's_mov_b32 s39, {4 * P}\ns_mov_b32 s40, {4 * P}\ns_mov_b32 s41, {4 * P}')
        p(f'''
        s_mov_b32 s28, {(8 if sp else 16) * rs}
        s_mov_b32 s29, {(80 if sp else 8) * rs}
        s_mov_b32 s31, {rs}
        s_mov_b32 s32, {dest}
        s_mov_b32 s33, {nt}
        s_mov_b32 s34, {ns * nt}
        s_mov_b32 s36, {cs}
        s_mov_b32 s37, {205 if nt == 5 else 171}
        ''')
    for g in range(40): assert (g * 205) >> 10 == g // 5
    for g in range(96): assert (g * 171) >> 10 == g // 6
    for g in range(60): assert (g * 205) >> 12 == g // 20
    params('w4', 1280, 1536, 88, W4F, 5, 48, False, 0); p(f's_branch {lab}_go')
    p(f'{lab}_w1:'); params('w1', 1280, 640, 0, W1F, 5, 20, False, CS1); p(f's_branch {lab}_go')
    p(f'{lab}_w2:'); params('w2', 1280, 640, 20, W2F, 5, 20, True, 0); p(f's_branch {lab}_go')
    p(f'{lab}_w3:'); params('w3', 3072, 640, 40, W3F, 6, 20, True, CS3)
    p(f'{lab}_go:')
    p(f'''
    v_lshrrev_b32 v3, 1, v0
    v_lshrrev_b32 v4, 4, v0
    v_xor_b32 v3, v3, v4
    v_and_b32 v3, 1, v3
    v_and_b32 v4, 1, v0
    v_lshl_add_u32 v3, v3, 1, v4
    s_lshl_b32 s42, s24, 6
    v_lshl_add_u32 v3, v3, 4, s42
    v_lshrrev_b32 v1, 2, v0
    v_mul_lo_u32 v1, v1, s31
    v_add_u32 v1, v1, v3
    v_bfe_u32 v2, v0, 2, 3
    v_mul_lo_u32 v2, v2, s31
    v_lshrrev_b32 v4, 5, v0
    v_mul_lo_u32 v4, v4, s29
    v_add3_u32 v2, v2, v4, v3
    s_mul_i32 s42, s3, 10240
    s_mov_b32 m0, s42
    s_lshl_b32 s43, s31, 4
    ''')
    for i in range(5):
        if i == 4:
            p(f'''
            s_cmp_eq_u32 s38, 4
            s_cbranch_scc1 {lab}_ld_done
            buffer_load_dwordx4 v2, s[8:11], s27 offen lds
            s_add_u32 m0, m0, 1024
            s_add_u32 s27, s27, s28
            buffer_load_dwordx4 v2, s[8:11], s27 offen lds
            ''')
        else:
            p(f'''
            buffer_load_dwordx4 v1, s[8:11], s25 offen lds
            s_add_u32 m0, m0, 1024
            s_add_u32 s30, s25, s43
            buffer_load_dwordx4 v1, s[8:11], s30 offen lds
            s_add_u32 m0, m0, 1024
            s_add_u32 s25, s25, s26
            ''')
    p(f'{lab}_ld_done:')
    p(f'''
    v_lshrrev_b32 v2, 2, v0
    v_bfe_u32 v3, v0, 4, 1
    v_and_b32 v9, 3, v0
    v_lshlrev_b32 v9, 3, v9
    v_lshl_add_u32 v9, v2, 6, v9
    v_add_u32 v9, s42, v9
    v_lshlrev_b32 v8, 4, v0
    v_mov_b32 v10, 0x3f803f80
    v_mov_b32 v11, 0x3f803f80
    v_mov_b32 v12, 0x3f803f80
    v_mov_b32 v13, 0x3f803f80
    s_mul_i32 s43, s35, s33
    ''')
    for t in range(2):
        p(f'''
        v_xor_b32 v{4 + t}, {t}, v3
        v_lshl_add_u32 v{4 + t}, v{4 + t}, 5, v9
        s_lshl_b32 s48, s24, 1
        s_add_u32 s48, s48, {t}
        s_mul_i32 s49, s48, s37
        s_lshr_b32 s49, s49, 10
        s_mul_i32 s46, s49, s33
        s_sub_u32 s48, s48, s46
        s_mul_i32 s49, s49, s34
        s_add_u32 s48, s48, s49
        s_add_u32 s48, s48, s43
        s_lshl_b32 s48, s48, 10
        s_add_u32 s{44 + t}, s48, s32
        ''')
    for i in range(5):
        if i == 4: p(f's_cmp_eq_u32 s38, 4\ns_cbranch_scc1 {lab}_st_done')
        if i == 0:
            p('s_waitcnt vmcnt(0)'); stamp(p, 23)
        R = 32 + 8 * i
        for t in range(2):
            p(f'ds_read_b64_tr_b16 {v(R + 4 * t, 2)}, v{4 + t} offset:{2048 * i}')
            p(f'ds_read_b64_tr_b16 {v(R + 4 * t + 2, 2)}, v{4 + t} offset:{2048 * i + 1024}')
        for t in range(2):
            p(f'buffer_store_dwordx4 {v(R + 4 * t, 4)}, v8, s[4:7], s{44 + t} offen{SC}')
            if i < 4: p(f's_add_u32 s{44 + t}, s{44 + t}, s{(39, 40, 39, 41)[i]}')
            p(f'{MF} {v(16 + 4 * t, 4)}, {v(R + 4 * t, 4)}, v[10:13], {v(16 + 4 * t, 4) if i else 0}')
    p(f'{lab}_st_done:')
    stamp(p, 24)
    CSL = 40960
    p(f'''
    s_cmp_eq_u32 s36, 0
    s_cbranch_scc1 {lab}_done
    s_lshl_b32 s48, s3, 7
    s_add_u32 s48, s48, {CSL}
    v_and_b32 v2, 48, v0
    v_add_u32 v2, s48, v2
    s_mov_b32 s46, 0x00010001
    s_mov_b32 s47, 0x00010001
    s_mov_b64 exec, s[46:47]
    ds_write_b128 v2, v[16:19]
    ds_write_b128 v2, v[20:23] offset:64
    s_mov_b64 exec, -1
    s_waitcnt lgkmcnt(0)
    s_barrier
    s_cmp_lg_u32 s3, 0
    s_cbranch_scc1 {lab}_done
    v_lshlrev_b32 v2, 2, v0
    v_add_u32 v3, {CSL}, v2
    ds_read_b32 v4, v3
    ds_read_b32 v5, v3 offset:128
    ds_read_b32 v6, v3 offset:256
    ds_read_b32 v7, v3 offset:384
    s_lshl_b32 s48, s24, 7
    s_add_u32 s48, s48, s36
    v_add_f32 v4, v4, v5
    v_add_f32 v6, v6, v7
    v_add_f32 v4, v4, v6
    s_mov_b32 exec_hi, 0
    buffer_store_dword v4, v2, s[4:7], s48 offen{SC}
    s_mov_b32 exec_hi, -1
    {lab}_done:
    ''')

def build(dbg=False):
    Cfg.stamp = dbg
    p = Prog()
    g1 = PG(5, 20, W1F, 25, 120); g2 = PG(5, 20, W2F, 25, 60); g3 = PG(6, 20, W3F, 53, 0); g4 = PG(5, 48, W4F, 25, 120)
    prologue(p, 256, 'k')
    p('s_cmp_eq_u32 s3, 4\ns_cbranch_scc1 helper')
    if dbg: p('v_mov_b32 v255, 0')
    stamp(p, 0)
    if dbg: p('s_memtime s[98:99]\ns_waitcnt lgkmcnt(0)\nv_writelane_b32 v255, s98, 30')
    p(f'''
    s_add_u32 s56, s92, {EPW}
    s_addc_u32 s57, s93, 0
    s_load_dword s60, s[56:57], 0
    s_cmp_ge_u32 s2, 160
    s_cbranch_scc1 role_b
    ''')
    def ids():
        p('''
        s_lshr_b32 s28, s2, 3
        s_and_b32 s29, s2, 7
        s_and_b32 s25, s28, 7
        s_lshr_b32 s24, s28, 3
        s_lshl_b32 s30, s29, 2
        s_add_u32 s24, s24, s30
        s_lshl_b32 s62, s24, 3
        s_add_u32 s62, s62, s25
        s_lshl_b32 s24, s24, 2
        s_add_u32 s24, s24, s3
        s_and_b32 s53, s28, 15
        s_lshr_b32 s52, s28, 4
        s_lshl_b32 s30, s29, 1
        s_add_u32 s52, s52, s30
        s_lshl_b32 s63, s52, 4
        s_add_u32 s63, s63, s53
        s_lshl_b32 s52, s52, 2
        s_add_u32 s52, s52, s3
        s_lshl_b32 s52, s52, 1
        s_and_b32 s51, s3, 1
        v_lshlrev_b32 v1, 4, v0
        ''')
    W1DMA = dma(g1, 0, 10) + dma(g1, 40, 15)
    p('s_and_b32 s50, s2, 7\ns_mul_i32 s50, s50, 20\ns_lshr_b32 s51, s2, 3\ns_add_u32 s50, s50, s51')
    emit_kgen_loads(p, 50)
    srd(p, 44, 'x', 2048 * 1280)
    p(f'''
    v_mul_u32_u24 v254, 2560, v0
    s_mul_i32 s42, s3, {512 * 1280}
    s_lshl_b32 s43, s50, 3
    s_add_u32 s42, s42, s43
    ''')
    for k in range(4):
        p(f'buffer_load_dwordx2 {v(XP + 4 * k, 2)}, v254, s[44:47], s42 offen')
        p(f'buffer_load_dwordx2 {v(XP + 4 * k + 2, 2)}, v254, s[44:47], s42 offen offset:1280')
        if k < 3: p(f's_add_u32 s42, s42, {128 * 1280}')
    CQ = []
    p(f'''
    s_cmp_lg_u32 s3, 0
    s_cbranch_scc1 nozero
    v_lshrrev_b32 v5, 4, v0
    v_mul_u32_u24 v5, {CHS}, v5
    v_bfe_u32 v6, v0, 3, 1
    v_mul_u32_u24 v6, 4160, v6
    v_and_b32 v7, 7, v0
    v_lshl_add_u32 v5, v7, 2, v5
    v_add3_u32 v5, v5, v6, v2
    v_add_u32 v5, {UC}, v5
    ds_write_b32 v5, v2
    nozero:
    v_lshlrev_b32 v23, 4, v0
    s_lshl_b32 s42, s3, 12
    s_add_u32 s42, s42, {STAT}
    ''')
    stamp(p, 1)
    SL = [f'buffer_load_dwordx4 {v(SR + 4 * k, 4)}, v23, s[4:7], s42 offen offset:{1024 * k}{SC}' for k in range(4)]
    kgen2(p, SL, CQ)
    p(TAG)
    stamp(p, 2)
    if dbg:
        p(f's_waitcnt vmcnt({len(SL)})'); stamp(p, 23); p('s_waitcnt vmcnt(0)'); stamp(p, 24)
    p(f's_mov_b32 s61, {Cfg.spin}\nsa_loop:\ns_waitcnt vmcnt(0)')
    for k in range(8): p(f'v_xor_b32 v{SR + 2 * k + 1}, s60, v{SR + 2 * k + 1}')
    p(f'''
    v_or3_b32 v9, v{SR + 1}, v{SR + 3}, v{SR + 5}
    v_or3_b32 v10, v{SR + 7}, v{SR + 9}, v{SR + 11}
    v_or3_b32 v9, v9, v{SR + 13}, v{SR + 15}
    v_or_b32 v9, v9, v10
    v_cmp_ne_u32 vcc, 0, v9
    s_cbranch_vccz sa_out
    s_sub_u32 s61, s61, 1
    s_cbranch_scc1 sa_out
    s_sleep 4
    ''')
    emit(p, SL)
    p('s_branch sa_loop\nsa_out:')
    if dbg: p(f's_sub_u32 s61, {Cfg.spin}, s61\nv_writelane_b32 v255, s61, 29')
    stamp(p, 3)
    ids()
    def w1flags():
        p(f'''
        s_mul_i32 s56, s25, 5
        s_lshr_b32 s56, s56, 1
        s_lshl_b32 s56, s56, {Cfg.FS}
        s_add_u32 s56, s56, {F0}
        v_min_u32 v253, 2, v0
        v_lshlrev_b32 v253, {Cfg.FS}, v253
        s_mov_b64 s[58:59], 7
        ''')
    normalize(p)
    w1flags()
    p(f'buffer_load_dword v253, v253, s[4:7], s56 offen{SC}')
    conv2(p, dma(g1, 0, 10, 's[8:11]') + dma(g1, 40, 15, 's[8:11]'))
    stamp(p, 6)
    p('''
    v_or3_b32 v240, v240, v241, v242
    v_or_b32 v240, v240, v243
    v_cmp_ne_u32 vcc, 0, v240
    s_cbranch_vccz join1
    s_branch slow1
    ''')
    p('role_b:')
    p('s_sub_u32 s20, s2, 160\ns_mov_b32 s22, 1\ns_cmp_lt_u32 s20, 32\ns_cbranch_scc1 rl_top\ns_sub_u32 s21, s20, 32')
    ln_stats(p, 21)
    p('s_mov_b32 s22, 0')
    stamp(p, 1)
    p('rl_top:')
    relayout2(p, 'rl')
    p('s_cmp_eq_u32 s22, 0\ns_cbranch_scc1 rl_tag')
    p(TAG)
    p('s_mov_b32 s22, 0\nrl_tag:')
    p('s_waitcnt vmcnt(0)\ns_barrier')
    flag_store(p, 'pbr', [('s20', F0), ('s2', F1)])
    p('s_add_u32 s20, s20, 96\ns_cmp_ge_u32 s20, 148\ns_cbranch_scc1 rl_end')
    stamp(p, 2)
    p('s_branch rl_top\nrl_end:')
    ids()
    stamp(p, 3)
    p('slow1:')
    w1flags()
    spin(p, 'pb', 1, 254)
    emit(p, W1DMA)
    stamp(p, 4)
    p(f'v_lshlrev_b32 v253, {Cfg.FS}, v0\ns_lshl_b32 s56, s3, {6 + Cfg.FS}\ns_add_u32 s56, s56, {F1}\ns_mov_b64 s[58:59], -1')
    spin(p, 'pf1', 1, 254)
    p('s_barrier')
    p(f'join1:\ns_mov_b32 s61, {Cfg.spin}')
    mj = p.mark()
    stamp(p, 7)
    A0, A1, SUM, GR, ONES, WB, X, CS, HP, HX = 16, 36, 56, 64, 72, 76, 136, 228, 216, 228
    def ldsbases(kh):
        if kh: p('s_mul_i32 s28, s51, 5120\nv_add_u32 v2, s28, v1\nv_add_u32 v3, 65536, v2\nv_add_u32 v15, 131072, v2')
        else: p('v_add_u32 v3, 65536, v1\nv_add_u32 v15, 131072, v1')
    def wreads(g, WB_, per, b0):
        def f(i):
            out = []
            for t in range(g.NT):
                o = ((g.base + per * i) % 160 + t) * 1024
                out.append(f'ds_read_b128 {v(WB_ + 4 * g.NT * (i % 3) + 4 * t, 4)}, v{(b0, 3, 15)[o >> 16]} offset:{o & 65535}')
            return out
        return f
    def exaddr(vw, vr, EXB):
        p(f'''
        s_mul_i32 s28, s3, 5120
        s_xor_b32 s29, s3, 1
        s_mul_i32 s29, s29, 5120
        s_add_u32 s28, s28, {EXB}
        s_add_u32 s29, s29, {EXB}
        v_add_u32 v{vw}, s28, v1
        v_add_u32 v{vr}, s29, v1
        ''')
    ldsbases(True)
    class g5: NT = 5
    kern.cs_loads(p, g5, CS, CS1, 29)
    EXS = 20480
    exaddr(5, 6, 0)
    p(f'''
    s_lshl_b32 s28, s51, 3
    v_add_u32 v4, s28, v1
    s_lshl_b32 s28, s3, 11
    s_add_u32 s28, s28, {EXS}
    v_add_u32 v7, s28, v1
    s_lshl_b32 s28, s3, 9
    s_add_u32 s28, s28, {EXS + 8192}
    v_lshl_add_u32 v8, v0, 2, s28
    s_and_b32 s29, s3, 2
    s_lshl_b32 s28, s29, 9
    s_lshl_b32 s30, s51, 8
    s_add_u32 s28, s28, s30
    s_add_u32 s28, s28, {EXS + 8192}
    v_lshl_add_u32 v9, v0, 2, s28
    s_lshl_b32 s28, s29, 11
    s_lshl_b32 s30, s51, 10
    s_add_u32 s28, s28, s30
    s_add_u32 s28, s28, {EXS}
    v_bfe_u32 v10, v0, 2, 2
    v_lshlrev_b32 v10, 8, v10
    v_and_b32 v11, 15, v0
    v_lshl_add_u32 v10, v11, 4, v10
    v_and_b32 v11, 3, v0
    v_lshl_add_u32 v10, v11, 2, v10
    v_add_u32 v10, s28, v10
    s_lshr_b32 s30, s24, 1
    s_mul_i32 s30, s30, 40960
    s_add_u32 s30, s30, {HQ}
    s_mul_i32 s31, s25, 5120
    s_add_u32 s31, s31, s30
    s_add_u32 s32, s31, 4096
    s_lshl_b32 s28, s51, 11
    s_add_u32 s30, s30, s28
    ''')
    for k in range(4): p(f'v_mov_b32 v{ONES + k}, 0x3f803f80')
    for l in range(15): assert (l * 86) >> 8 == l // 3
    p(f'''
    v_min_u32 v11, 14, v0
    v_mul_u32_u24 v12, 86, v11
    v_lshrrev_b32 v12, 8, v12
    v_mul_u32_u24 v13, 17, v12
    s_mul_i32 s28, s25, 5
    s_lshr_b32 s28, s28, 1
    s_add_u32 s29, s28, 48
    v_add3_u32 v13, v13, v11, s29
    s_add_u32 s28, s28, 20
    v_add_u32 v14, s28, v11
    v_cmp_eq_u32 vcc, 0, v12
    v_cndmask_b32 v13, v13, v14, vcc
    s_mul_i32 s28, s53, 3
    s_add_u32 s28, s28, 37
    v_add_u32 v14, s28, v11
    v_cmp_eq_u32 vcc, 1, v12
    v_cndmask_b32 v13, v13, v14, vcc
    v_lshlrev_b32 v14, {Cfg.FS}, v13
    s_mov_b32 s33, {F0}
    ''')
    WFL = f'buffer_load_dword v13, v14, s[4:7], s33 offen{SC}'
    STUBS.extend('@' + t for t in ['wfs:', 's_cmp_eq_u32 s61, 0', 's_cbranch_scc1 wfs_b', 's_sub_u32 s61, s61, 1', WFL, 's_waitcnt vmcnt(0)',
                                   'v_cmp_ne_u32 vcc, s60, v13', 's_cbranch_vccnz wfs', 's_branch wfs_b'])
    xs1 = XS('x1_', lambda i: X + 8 * i, lambda i: [(1, 30, 4096 * i + 1024 * h_) for h_ in range(2)], {30: 34})
    def mf1(i):
        c = lambda r: v(r, 4) if i else '0'
        M = []
        for t in range(5):
            for sl in range(2):
                r = (A0, A1)[sl] + 4 * t
                M.append(f'{MF} {v(r, 4)}, {v(WB + 20 * (i % 3) + 4 * t, 4)}, {v(X + 8 * i + 4 * sl, 4)}, {c(r)}')
            if t < 2:
                x = v(X + 8 * i + 4 * t, 4)
                M.append(f'{MF} {v(SUM + 4 * t, 4)}, {v(ONES, 4)}, {x}, {c(SUM + 4 * t)}')
                M.append(f'{MF} {v(GR + 4 * t, 4)}, {x}, {x}, {c(GR + 4 * t)}')
        return M
    def epoch():
        p(f'''
        s_or_b32 s29, s2, s3
        s_cmp_lg_u32 s29, 0
        s_cbranch_scc1 noep
        v_mov_b32 v252, s60
        v_mov_b32 v253, 0
        s_mov_b32 s56, {EPW}
        s_mov_b64 exec, 1
        buffer_store_dword v252, v253, s[4:7], s56 offen sc1
        s_mov_b64 exec, -1
        noep:
        ''')
    HPL = [f'buffer_load_dwordx2 {v(HP + 2 * t, 2)}, v4, s[4:7], s{31 if t < 4 else 32} offen offset:{1024 * (t & 3)}{SC}' for t in range(5)]
    ex = spread(dma(g2, 0, 15), range(10 - Cfg.U1, 10))
    k0 = 10 - Cfg.U1
    ex[k0] = ['v_cmp_ne_u32 vcc, s60, v13', '@s_cbranch_vccnz wfs\n@wfs_b:'] + ex[k0]
    ex[max(0, k0 - Cfg.wfd)] = [WFL]
    def bar1():
        stamp(p, 8)
    mainloop(p, 10, 5, mf1, wreads(g1, WB, 10, 2), xs1, Cfg.U1, bar1, ex,
             lambda i: [f'v_swap_b32 v{X + 8 * i + 2 + k}, v{X + 8 * i + 4 + k}' for k in range(2)])
    stamp(p, 9)
    TX = WB
    p('s_barrier')
    emit(p, HPL)
    emit(p, dma(g2, 60, 10))
    p(f'''
    ds_write_b128 v7, {v(GR, 4)}
    ds_write_b128 v7, {v(GR + 4, 4)} offset:1024
    ds_write2st64_b32 v8, v{SUM}, v{SUM + 4} offset0:0 offset1:1
    s_cmp_lg_u32 s51, 0
    s_cbranch_scc1 x1_odd
    ''')
    xr = [f'ds_read2st64_b32 v[8:9], v9 offset0:0 offset1:2', f'ds_read2st64_b32 v[10:11], v10 offset0:0 offset1:8'] + \
         [f'ds_read_b128 {v(TX + 4 * t, 4)}, v6 offset:{1024 * t}' for t in range(5)]
    for t in range(5): p(f'ds_write_b128 v5, {v(A1 + 4 * t, 4)} offset:{1024 * t}')
    p('s_waitcnt lgkmcnt(0)\ns_barrier'); emit(p, xr)
    for k in range(10): p(f'v_pk_add_f32 {v(A0 + 2 * k, 2)}, {v(A0 + 2 * k, 2)}, {v(TX + 2 * k, 2)}')
    p('s_branch x1_join\nx1_odd:')
    for t in range(5): p(f'ds_write_b128 v5, {v(A0 + 4 * t, 4)} offset:{1024 * t}')
    p('s_waitcnt lgkmcnt(0)\ns_barrier'); emit(p, xr)
    for k in range(10): p(f'v_pk_add_f32 {v(A0 + 2 * k, 2)}, {v(A1 + 2 * k, 2)}, {v(TX + 2 * k, 2)}')
    p('x1_join:')
    K, ONE, O, T = 56, 58, 60, 136
    code = [f'v_mov_b32 v{K}, {f2u(C0)}', f'v_mov_b32 v{K + 1}, {f2u(C1)}', f'v_mov_b32 v{ONE}, 1.0',
            'v_add_f32 v8, v8, v9', 'v_add_f32 v10, v10, v11',
            f'v_mul_f32 v8, {f2u(1 / 640)}, v8', 'v_mul_f32 v9, v8, v8', f'v_mov_b32 v13, {f2u(1 / 640)}',
            'v_fma_f32 v10, v10, v13, -v9', 'v_max_f32 v10, 0, v10', f'v_add_f32 v11, {f2u(EPS)}, v10', 'v_rsq_f32 v12, v11',
            'v_mul_f32 v11, v12, v12', f'v_mov_b32 v13, {f2u(EPS)}', 'v_fma_f32 v11, v11, v10, v13', 'v_rsq_f32 v11, v11',
            'v_mul_f32 v13, -v8, v12', 'v_mul_f32 v10, v12, v11', 'v_mul_f32 v11, v13, v11']
    for k in range(10):
        A = A0 + 2 * k; t = T + 2 * k
        code += [f'v_pk_mul_f32 {v(CS + 2 * k, 2)}, {v(CS + 2 * k, 2)}, v[10:11] op_sel:[0,1] op_sel_hi:[1,1]',
                 f'v_pk_fma_f32 {v(A, 2)}, {v(A, 2)}, v[10:11], {v(CS + 2 * k, 2)} op_sel_hi:[1,0,1]']
        code += gelu_code(A, t, K, ONE, O + k)
    emit(p, sched(code))
    mS = [p.mark()]
    FS1 = SC if Cfg.fast1 is None else Cfg.fast1
    kern.SC = FS1
    frag_store80(p, O, H1F)
    kern.SC = SC
    stamp(p, 10)
    epoch()
    p('''
    v_and_b32 v9, 15, v0
    v_lshlrev_b32 v9, 1, v9
    v_and_b32 v10, 48, v0
    v_lshlrev_b32 v10, 4, v10
    s_movk_i32 s32, 0x800
    v_bfrev_b32 v56, 1
    s_mov_b32 s33, 0xffff0000
    s_lshr_b32 s29, s24, 1
    s_lshl_b32 s29, s29, 5
    s_lshl_b32 s30, s51, 1
    ''')
    for ds_, sl, expr in ((0, 0, 's_sub_u32 s28, s29, 1'), (0, 1, 's_sub_u32 s28, s29, s30'),
                          (1, 0, 's_add_u32 s28, s29, s30\ns_add_u32 s28, s28, 1'), (1, 1, 's_add_u32 s28, s29, 2')):
        p(expr)
        p(f'''
        v_add_u32 v11, s28, v9
        v_cmp_gt_u32 vcc, s32, v11
        v_lshrrev_b32 v57, 5, v11
        v_and_b32 v58, 1, v11
        v_lshl_add_u32 v57, v57, 1, v58
        v_mul_u32_u24 v57, 20480, v57
        v_bfe_u32 v11, v11, 1, 4
        v_lshl_add_u32 v57, v11, 4, v57
        v_add_u32 v57, v57, v10
        v_cndmask_b32 v{5 + 2 * ds_ + sl}, v56, v57, vcc
        ''')
    for k in range(10):
        emit(p, unpack(HX + 2 * k, HP + k, 33))
        p(f'v_pk_fma_f32 {v(A0 + 2 * k, 2)}, {v(HX + 2 * k, 2)}, v[12:13], v[12:13] op_sel:[0,0,1] op_sel_hi:[1,0,1]')
    exaddr(9, 10, 120 * 1024)
    p(f'''
    s_lshl_b32 s30, s51, 13
    s_add_u32 s30, s30, {H1F}
    s_lshl_b32 s31, s51, 11
    s_add_u32 s31, s31, {H1F + 16384}
    ''')
    def hop(k, i, sidx, F, su):
        if k not in Cfg.daf:
            publish(p, sidx, F, f'pb{k}x'); stamp(p, i)
            poll(p, f'p{k}', su, False, 's95'); stamp(p, i + 1)
            p(f's_mov_b32 s61, {Cfg.spin}')
            return None
        if Cfg.ack: p('s_waitcnt vmcnt(0)')
        stamp(p, i)
        m = p.mark() if Cfg.ack else mS[0]
        def f():
            p.wait_vm(m); p('s_barrier'); stamp(p, i + 1)
        return f
    def su3():
        p(f'''
        s_and_b32 s56, s62, 0xf8
        s_sub_u32 s56, s56, 8
        v_add_u32 v253, s56, v0
        s_movk_i32 s57, 0x100
        v_cmp_gt_u32 vcc, s57, v253
        v_lshlrev_b32 v253, {Cfg.FS}, v253
        s_and_b32 s58, vcc_lo, 0xffffff
        s_mov_b32 s59, 0
        s_sub_u32 s95, s62, s56
        s_mov_b32 s56, {F2}
        ''')
    def su4():
        p(f'''
        s_and_b32 s56, s63, 0xf0
        s_sub_u32 s95, s62, s56
        s_lshl_b32 s56, s56, {Cfg.FS}
        s_add_u32 s56, s56, {F3}
        v_lshlrev_b32 v253, {Cfg.FS}, v0
        s_mov_b64 s[58:59], 0xffff
        ''')
    def su5():
        p(f'''
        s_and_b32 s56, s62, 0xf0
        s_sub_u32 s95, s63, s56
        s_lshl_b32 s56, s56, {Cfg.FS}
        s_add_u32 s56, s56, {F4}
        v_lshlrev_b32 v253, {Cfg.FS}, v0
        s_mov_b64 s[58:59], 0xffff
        ''')
    def xa2(i):
        ds_ = (i >> 2) if i < 8 else i - 8
        so, off = (30, 1024 * i) if i < 8 else (31, 1024 * (i - 8))
        return [(5 + 2 * ds_ + sl, so, off) for sl in range(2)]
    xs2 = XS('x2_', lambda i: X + 8 * i, xa2, {30: 34, 31: 35})
    def mfk(AS, WB_, xs):
        def f(i):
            M = []
            for t in range(5):
                for sl in range(2):
                    r = AS[sl] + 4 * t
                    M.append(f'{MF} {v(r, 4)}, {v(WB_ + 20 * (i % 3) + 4 * t, 4)}, {v(xs.reg(i) + 4 * sl, 4)}, {v(r, 4) if (i or not sl) else 0}')
            return M
        return f
    ex = spread(dma(g3, 0, 15), range(10 - Cfg.U2, 10))
    bf = hop(2, 11, 's62', F2, su3)
    mainloop(p, 10, 5, mfk((A0, A1), WB, xs2), wreads(g2, WB, 10, 2), xs2, Cfg.U2, bf, ex)
    stamp(p, 13)
    def exch(vw, vr, Akeep, Agive, fill=[]):
        p('s_barrier')
        for t in range(5): p(f'ds_write_b128 v{vw}, {v(Agive + 4 * t, 4)} offset:{1024 * t}')
        emit(p, fill)
        p('s_waitcnt lgkmcnt(0)\ns_barrier')
        for t in range(5): p(f'ds_read_b128 {v(TX + 4 * t, 4)}, v{vr} offset:{1024 * t}')
        return [f'v_pk_add_f32 {v(Akeep + 2 * k, 2)}, {v(Akeep + 2 * k, 2)}, {v(TX + 2 * k, 2)}' for k in range(10)]
    code = exch(9, 10, A0, A1, dma(g3, 60, 15) if Cfg.early else [])
    O = 60
    code += ['v_mov_b32 v8, 0', 'v_mov_b32 v9, 0', 'v_mov_b32 v10, 0', 'v_mov_b32 v11, 0', 'v_lshlrev_b32 v4, 3, v0']
    for k in range(10):
        A = A0 + 2 * k
        code += [f'v_cvt_pk_bf16_f32 v{O + k}, v{A}, v{A + 1}',
                 f'v_dot2c_f32_bf16 v{8 + 2 * (k & 1)}, v{O + k}, v{ONES}', f'v_dot2c_f32_bf16 v{9 + 2 * (k & 1)}, v{O + k}, v{O + k}']
    code += ['v_pk_add_f32 v[8:9], v[8:9], v[10:11]'] + qreduce(8, 10) + qreduce(9, 11)
    emit(p, sched(code))
    mS[0] = p.mark()
    FS_ = SC if Cfg.fast is None else Cfg.fast
    kern.SC = FS_
    frag_store80(p, O, X1F)
    kern.SC = SC
    p(f'''
    s_lshl_b32 s29, s24, 3
    s_add_u32 s29, s29, s25
    s_lshl_b32 s29, s29, 7
    s_add_u32 s29, s29, {PS2}
    s_mov_b64 exec, 0xffff
    buffer_store_dwordx2 v[8:9], v4, s[4:7], s29 offen{FS_}
    s_mov_b64 exec, -1
    ''')
    HA = [f'v_pk_add_f32 {v(HX + 2 * k, 2)}, {v(HX + 2 * k, 2)}, {v(A0 + 2 * k, 2)}' for k in range(10)]
    emit(p, HA)
    stamp(p, 14)
    R3 = Cfg.U3 + 1
    PS = X + 8 * R3; WB3 = 64
    CS = X + 8 * ((20 - R3) % R3)
    assert PS + 8 <= 228 and (20 - R3) % R3 + 3 <= R3
    ldsbases(False)
    p(f'''
    v_and_b32 v6, 15, v0
    v_and_b32 v7, 48, v0
    v_lshlrev_b32 v7, 4, v7
    v_lshl_add_u32 v7, v6, 3, v7
    s_lshl_b32 s29, s52, 10
    s_add_u32 s29, s29, {PS2}
    s_mul_i32 s30, s52, 20480
    s_add_u32 s30, s30, {X1F}
    s_add_u32 s31, s30, 20480
    v_and_b32 v4, 48, v0
    s_mul_i32 s32, s53, 384
    s_add_u32 s32, s32, {CS3}
    ''')
    acc3 = lambda mt, t: 16 + 24 * mt + 4 * t
    PSL = [f'buffer_load_dwordx2 {v(PS + 4 * mt + 2 * i, 2)}, v7, s[4:7], s29 offen offset:{1024 * mt + 128 * i}{SC}' for mt in range(2) for i in range(2)]
    C3L = [f'buffer_load_dwordx4 {v(CS + 4 * t, 4)}, v4, s[4:7], s32 offen offset:{64 * t}{SC}' for t in range(6)]
    xs3 = XS('x3_', lambda i: X + 8 * (i % R3), lambda i: [(1, 30 + mt, 1024 * i) for mt in range(2)], {30: 34, 31: 35})
    def mf3(i):
        return [f'{MF} {v(acc3(mt, t), 4)}, {v(WB3 + 24 * (i % 3) + 4 * t, 4)}, {v(xs3.reg(i) + 4 * mt, 4)}, {v(acc3(mt, t), 4) if i else 0}'
                for t in range(6) for mt in range(2)]
    code = [f'v_mov_b32 v13, {f2u(1 / 640)}']
    for mt in range(2):
        r = PS + 4 * mt
        code += [f'v_add_f32 v{r}, v{r}, v{r + 2}', f'v_add_f32 v{r + 1}, v{r + 1}, v{r + 3}'] + qreduce(r, r + 2) + qreduce(r + 1, r + 3) + [
            f'v_mul_f32 v{r}, v13, -v{r}', f'v_mul_f32 v{r + 2}, v{r}, v{r}', f'v_fma_f32 v{r + 1}, v{r + 1}, v13, -v{r + 2}',
            f'v_max_f32 v{r + 1}, 0, v{r + 1}', f'v_add_f32 v{r + 1}, {f2u(EPS)}, v{r + 1}', f'v_rsq_f32 v{r + 1}, v{r + 1}',
            f'v_mul_f32 v{r}, v{r}, v{r + 1}']
    n3 = 20 - Cfg.U3
    D4 = dma(g4, 0, 10) + (dma(g4, 40, Cfg.m3) if Cfg.m3 else [])
    ex = spread(D4, range(max(n3, 10) if Cfg.m3 else n3, 20))
    ex[4] = PSL
    if 3 in Cfg.daf: ex[10] = chk(PS) + stub('ps3', [(PS, PSL)]) + ex.get(10, [])
    for k_, L in spread(sched(code), range(11, 17)).items(): ex[k_] = ex.get(k_, []) + L
    c0 = 20 - R3 + 3
    for k_, L in spread(C3L, range(c0, c0 + 2)).items(): ex[k_] = L + ex.get(k_, [])
    bf = hop(3, 15, 's62', F3, su4)
    mainloop(p, 20, 6, mf3, wreads(g3, WB3, 6, 1), xs3, Cfg.U3, bf, ex, None, {10: lambda: p('s_barrier')} if Cfg.m3 else {}, Cfg.st3)
    stamp(p, 17)
    p('s_barrier')
    K, ONE, O, T = 8, 10, 64, 88
    p(f'''
    v_mov_b32 v{K}, {f2u(C0)}
    v_mov_b32 v{K + 1}, {f2u(C1)}
    v_mov_b32 v{ONE}, 1.0
    s_mul_i32 s30, s52, 49152
    s_mul_i32 s31, s53, 3072
    s_add_u32 s30, s30, s31
    s_add_u32 s30, s30, {H3F}
    s_add_u32 s31, s30, 49152
    ''')
    code = []
    for mt in range(2):
        c2 = []
        for k in range(12):
            A = acc3(mt, 0) + 2 * k; t = T + 2 * k + 24 * mt; r = PS + 4 * mt
            c2 += [f'v_pk_mul_f32 {v(t, 2)}, {v(CS + 2 * k, 2)}, {v(r, 2)} op_sel_hi:[1,0]',
                   f'v_pk_fma_f32 {v(A, 2)}, {v(A, 2)}, {v(r, 2)}, {v(t, 2)} op_sel:[0,1,0] op_sel_hi:[1,1,1]']
            c2 += gelu_code(A, t, K, ONE, O + 12 * mt + k)
            if k % 4 == 3:
                c2.append(f'buffer_store_dwordx4 {v(O + 12 * mt + k - 3, 4)}, v1, s[4:7], s{30 + mt} offen offset:{1024 * (k // 4)}{FS_}')
        code += sched(c2)
    e3 = min(Cfg.e3, 30 - Cfg.m3)
    assert e3 + Cfg.m3 == 30
    code = weave(code, dma(g4, 40 + 4 * Cfg.m3, e3), 0.0, Cfg.w3)
    kl = max(k for k, t in enumerate(code) if ' lds' in t)
    emit(p, code[:kl + 1]); mS[0] = p.mark(); emit(p, code[kl + 1:])
    stamp(p, 18)
    srd(p, 8, 'out', 2048 * 1280)
    ldsbases(True)
    exaddr(9, 10, 0)
    p(f'''
    v_and_b32 v5, 15, v0
    v_mul_u32_u24 v5, 2560, v5
    v_lshrrev_b32 v7, 4, v0
    v_lshl_add_u32 v6, v7, 3, v5
    v_and_b32 v8, 1, v7
    v_lshl_add_u32 v5, v8, 5, v5
    v_lshrrev_b32 v7, 1, v7
    v_lshl_add_u32 v5, v7, 4, v5
    s_lshr_b32 s32, s24, 1
    s_lshl_b32 s32, s32, 5
    s_add_u32 s32, s32, s51
    s_mul_i32 s32, s32, 1280
    s_mul_i32 s33, s25, 160
    s_add_u32 s32, s32, s33
    s_lshl_b32 s28, s51, 10
    s_add_u32 s28, s28, {H3F}
    s_mul_i32 s30, s24, 49152
    s_add_u32 s30, s30, s28
    s_xor_b32 s31, s24, 1
    s_mul_i32 s31, s31, 49152
    s_add_u32 s31, s31, s28
    ''')
    R4 = Cfg.U4 + 1
    xs4 = XS('x4_', lambda i: 96 + 8 * (i % R4), lambda i: [(1, 30 + sl, 2048 * i) for sl in range(2)], {30: 34, 31: 35})
    assert 96 + 8 * R4 <= 228
    mk = {}
    def setmk(k): return lambda: mk.__setitem__(k, p.mark())
    ex = spread(dma(g4, 160, 10) + [setmk(0)], range(3, 7))
    ex.update(spread(dma(g4, 200, 10) + [setmk(1)], range(7, 11)))
    def wb(k):
        def f(): p.wait_vm(mk[k]); p('s_barrier')
        return f
    bar = lambda: p('s_barrier')
    WB4 = 36; TX = 96
    bf = hop(4, 19, 's63', F4, su5)
    mainloop(p, 24, 5, mfk((HX, 16), WB4, xs4), wreads(g4, WB4, 10, 2), xs4, Cfg.U4, bf, ex, None, {3: bar, 7: bar, 14: wb(0), 18: wb(1)}, Cfg.st4)
    stamp(p, 21)
    emit(p, exch(9, 10, HX, 16))
    O = 120
    for pr in range(2):
        o = O + 4 * pr
        for h_ in range(2):
            A = HX + 4 * (2 * pr + h_)
            p(f'v_cvt_pk_bf16_f32 v{o + 2 * h_}, v{A}, v{A + 1}\nv_cvt_pk_bf16_f32 v{o + 2 * h_ + 1}, v{A + 2}, v{A + 3}')
        p(f'v_permlane16_swap_b32 v{o}, v{o + 2}\nv_permlane16_swap_b32 v{o + 1}, v{o + 3}')
        p(f'buffer_store_dwordx4 {v(o, 4)}, v5, s[8:11], s32 offen offset:{64 * pr}{Cfg.osc}')
    A = HX + 16
    p(f'v_cvt_pk_bf16_f32 v{O + 8}, v{A}, v{A + 1}\nv_cvt_pk_bf16_f32 v{O + 9}, v{A + 2}, v{A + 3}')
    p(f'buffer_store_dwordx2 {v(O + 8, 2)}, v6, s[8:11], s32 offen offset:128{Cfg.osc}')
    if dbg:
        p('s_waitcnt vmcnt(0)')
        p(f's_sub_u32 s61, {Cfg.spin}, s61\nv_writelane_b32 v255, s61, 28')
        stamp(p, 22)
        p('s_memtime s[98:99]\ns_waitcnt lgkmcnt(0)\nv_writelane_b32 v255, s98, 31')
        p(f'''
        s_lshl_b32 s29, s2, 2
        s_add_u32 s29, s29, s3
        s_lshl_b32 s29, s29, 7
        s_add_u32 s29, s29, {DBGW}
        v_lshlrev_b32 v2, 2, v0
        s_mov_b32 exec_hi, 0
        buffer_store_dword v255, v2, s[4:7], s29 offen
        ''')
    p('k_end:\ns_endpgm')
    helper(p)
    emit(p, STUBS)
    return p

if __name__ == '__main__':
    import sys
    from build import HDR
    out = sys.argv[1]; dbg = 'dbg' in sys.argv[2:]
    for a_ in sys.argv[2:]:
        if '=' in a_:
            k_, v_ = a_.split('='); setattr(Cfg, k_, eval(v_))
    name = 'pers_kernel' if 'list' in sys.argv[2:] else NAME
    open(out, 'w').write(file_text([(name, build(dbg), 256, 320, LDSZ)], HDR))
```

```python
import kern
from kern import *
kern.SC = ' sc1'
SC = ' sc1'
LDSZ = 163840
F0, F1, F2, F3, F4, EPW = [FLG + 65536 * k for k in range(6)]
NAME = 'sequential_preLN__ssm_conv_s4d__mixer_s_mlp__prompt_kernel'
FB, UC, RC = 0, 69632, 103040
CHY = 8512
XP, SR = 208, 224
MF = 'v_mfma_f32_16x16x32_bf16'

TAG = 's_mul_i32 s60, s60, 0x9e3779b1\ns_add_u32 s60, s60, 0x7f4a7c15'
class Cfg:
    stamp = False
    spin = 0x10000
    inj = 0.72
    U1 = 6; U2 = 7; U3 = 8; U4 = 10
    pf = False
    warm = False
    FS = 7
    pw = 1
    own = True
    jc = 2
    m3 = 15
    slp = 0
    early = True
    w3 = 0.3
    fast = None
    fast1 = None
    osc = ''
    st3 = {}; st4 = {}
    R4 = 14; n4 = 6; e4a = 0.6; e4b = 0.95; xa4 = 14; xb4 = 18; r4 = 2.8; show = False
    h3c = 1
    ko4 = True
    ack4 = False
    daf = (1, 2, 3, 4)
    cq0 = True; pb64 = True
    wfd = 3
    hx = 16; hdl = 0
    c0 = 52; i2a = 0.1; i2b = 0.8
    ack = True
    sslp = 0
    jf = 6
    e3 = 15

def stamp(p, i):
    if Cfg.stamp:
        p(f's_memrealtime s[98:99]\ns_waitcnt lgkmcnt(0)\nv_writelane_b32 v255, s98, {i}')

def flag_store(p, lab, pairs, R=252, sc=' sc1'):
    p(f's_cmp_lg_u32 s3, 0\ns_cbranch_scc1 {lab}_np\nv_mov_b32 v{R}, s60\nv_mov_b32 v{R + 1}, 0\ns_mov_b64 exec, 1')
    for sidx, base in pairs:
        p(f's_lshl_b32 s56, {sidx}, {Cfg.FS}\ns_add_u32 s56, s56, {base}\nbuffer_store_dword v{R}, v{R + 1}, s[4:7], s56 offen{sc}')
    p(f's_mov_b64 exec, -1\n{lab}_np:')

def publish(p, sidx, base, lab, m=None, pf=None, sc=' sc1'):
    if m is None: p('s_waitcnt vmcnt(0)')
    else: p.wait_vm(m)
    if pf and Cfg.pf: p(pf)
    p('s_barrier')
    flag_store(p, lab, [(sidx, base)], 252, sc)

def spin(p, lab, width, R):
    sfx = {1: 'dword', 2: 'dwordx2', 4: 'dwordx4'}[width]
    p(f's_mov_b64 exec, s[58:59]\ns_mov_b32 s61, {Cfg.spin}\n{lab}_loop:')
    p(f'buffer_load_{sfx} {v(R, width)}, v253, s[4:7], s56 offen sc1\ns_waitcnt vmcnt(0)')
    for k in range(width): p(f'v_xor_b32 v{R + k}, s60, v{R + k}')
    if width == 2: p(f'v_or_b32 v{R}, v{R}, v{R + 1}')
    if width == 4: p(f'v_or3_b32 v{R}, v{R}, v{R + 1}, v{R + 2}\nv_or_b32 v{R}, v{R}, v{R + 3}')
    p(f'''
    v_cmp_ne_u32 vcc, 0, v{R}
    s_sub_u32 s61, s61, 1
    s_cbranch_scc1 {lab}_out
    s_cbranch_vccz {lab}_out
    {f's_sleep {Cfg.slp}' if Cfg.slp else ''}
    s_branch {lab}_loop
    {lab}_out:
    s_mov_b64 exec, -1
    ''')

def poll(p, lab, setup, every=False, own=None):
    if not every: p(f's_cmp_lg_u32 s3, {Cfg.pw}\ns_cbranch_scc1 {lab}_skip')
    setup()
    if own and Cfg.own:
        p(f's_cmp_lt_u32 {own}, 64\ns_cselect_b32 s57, 1, 0\ns_mov_b32 s61, 0\ns_and_b32 {own}, {own}, 63\ns_mov_b32 s96, s57\ns_mov_b32 s97, 0\ns_lshl_b64 s[96:97], s[96:97], {own}\ns_andn2_b64 s[58:59], s[58:59], s[96:97]')
    spin(p, lab, 1, 254)
    p(f'{lab}_skip:\ns_waitcnt vmcnt(0)\ns_barrier')

class PG:
    def __init__(self, NT, NS, WF, sJ, base):
        self.NT, self.NS, self.WF, self.sJ, self.base = NT, NS, WF, sJ, base

def dma(g, first, n, sr='s[4:7]'):
    slot = (g.base + first) % 160
    assert slot + 4 * n <= 160
    L = [f's_mul_i32 s54, s{g.sJ}, {g.NS * g.NT}', f's_mul_i32 s55, s3, {n}', 's_add_u32 s54, s54, s55', f's_add_u32 s55, s55, {slot}',
         's_lshl_b32 s54, s54, 10', 's_lshl_b32 m0, s55, 10', f's_add_u32 s54, s54, {g.WF + first * 1024}']
    for k in range(n):
        if k and k % 4 == 0: L += ['s_add_u32 m0, m0, 4096', 's_add_u32 s54, s54, 4096']
        L.append(f'buffer_load_dwordx4 v1, {sr}, s54 offen offset:{1024 * (k & 3)}{SC} lds')
    return L

def emit(p, L):
    for t in L: p(t)

def spread(L, steps):
    d = {}
    for k, s_ in enumerate(steps):
        d[s_] = L[len(L) * k // len(steps): len(L) * (k + 1) // len(steps)]
    return d

def weave(code, fill, lo=0.0, hi=1.0):
    n = len(code); a_, b_ = int(n * lo), int(n * hi); out = list(code[:a_]); k = 0
    for i in range(a_, b_):
        out.append(code[i])
        e = len(fill) * (i - a_ + 1) // (b_ - a_)
        out += fill[k:e]; k = e
    return out + list(code[b_:])

STUBS = []
CT = 250
class XS:
    def __init__(self, lab, reg, addr, run, R=99):
        self.lab, self.reg, self.addr, self.run, self.R = lab, reg, addr, run, R
        self.issued = []; self.marks = {}
        self.cur = {b: 0 for b in run}
    def init(self): return [f's_mov_b32 s{r}, s{b}' for b, r in self.run.items()]
    def main(self, i):
        L = []; Q = []
        for h, (vo, b, off) in enumerate(self.addr(i)):
            k = off >> 12
            if k != self.cur[b]:
                L.append(f's_add_u32 s{self.run[b]}, s{b}, {4096 * k}'); self.cur[b] = k
            Q.append(f'buffer_load_dwordx4 {v(self.reg(i) + 4 * h, 4)}, v{vo}, s[4:7], s{self.run[b]} offen offset:{off & 4095}{SC}')
        return L + Q
    def abs(self, i):
        L = []
        for h, (vo, b, off) in enumerate(self.addr(i)):
            L += [f's_add_u32 s57, s{b}, {off & ~4095}',
                  f'buffer_load_dwordx4 {v(self.reg(i) + 4 * h, 4)}, v{vo}, s[4:7], s57 offen offset:{off & 4095}{SC}']
        return L

def chk(x):
    return [f'v_max3_u32 v{CT}, v{x}, v{x + 1}, v{x + 2}', f'v_max3_u32 v{CT + 1}, v{x + 3}, v{x + 4}, v{x + 5}',
            f'v_max3_u32 v{CT}, v{CT}, v{x + 6}, v{x + 7}', f'v_max_u32 v{CT}, v{CT}, v{CT + 1}', f'v_cmp_eq_u32 vcc, -1, v{CT}']

def stub(lab, ents):
    L = [f'{lab}:', 's_waitcnt vmcnt(0)', 's_cmp_eq_u32 s61, 0', f's_cbranch_scc1 {lab}_b', 's_sub_u32 s61, s61, 1']
    if Cfg.sslp: L.append(f's_sleep {Cfg.sslp}')
    L += ents[0][1]
    for k, (x, rl) in enumerate(ents[1:]):
        L += chk(x) + [f's_cbranch_vccz {lab}_s{k}'] + rl + [f'{lab}_s{k}:']
    L += ['s_waitcnt vmcnt(0)'] + chk(ents[0][0]) + [f's_cbranch_vccnz {lab}', f's_branch {lab}_b']
    STUBS.extend('@' + t for t in L)
    return [f'@s_cbranch_vccnz {lab}\n@{lab}_b:']

def xitems(p, xs, j):
    x = xs.main(j); xs.issued.append(j)
    def last():
        p(x[-1]); xs.marks[j] = p.mark()
    last.t = x[-1]
    return x[:-1] + [last]

def emitx(p, L):
    for t in L:
        if callable(t): t()
        else: p(t)

def edf(seq, rate, n):
    plan = {i: [] for i in range(n)}; i = 0; credit = rate
    for av, it in seq:
        c = 2 if isinstance(it, int) else (1 if isinstance(it, str) and it.startswith('buffer') else 0)
        while i < n - 1 and (av > i or credit < c - 0.999):
            i += 1; credit = min(credit, 1) + rate
        plan[i].append(it); credit -= c
    return plan

def mainloop(p, n, NT, mf, wr, xs, U, bar, extra={}, pre=None, sync={}, st={}, plan=None):
    marks = xs.marks
    ck = bar is not None
    if plan is None: plan = {i: [i + U] for i in range(n - U)}
    if not ck: emit(p, wr(0) + wr(1))
    if not xs.issued: emit(p, xs.init())
    for i in range(len(xs.issued), min(U, n)): emitx(p, xitems(p, xs, i))
    if ck:
        bar()
        emit(p, wr(0) + wr(1))
    win = lambda i: stub(f'{xs.lab}{i}', [(xs.reg(j), xs.abs(j)) for j in xs.issued if j >= i])
    if ck: p.wait_vm(marks[0]); emit(p, chk(xs.reg(0)) + win(0))
    if pre: emit(p, pre(0))
    for i in range(n):
        if ck: p(f's_waitcnt lgkmcnt({NT if i + 1 < n else 0})')
        else: p.wait_vm(marks[i], NT if i + 1 < n else 0)
        if i in sync: sync[i]()
        if i in st: stamp(p, st[i])
        fill = list(wr(i + 2) if i + 2 < n else [])
        for it in plan.get(i, []):
            if isinstance(it, int):
                assert it - xs.R < i, (it, i)
                fill += xitems(p, xs, it)
            else: fill.append(it)
        fill += extra.get(i, [])
        M = mf(i); G_ = len(M) - (5 if pre else 4) if (ck and i + 1 < n) else len(M); k = 0
        c = chk(xs.reg(i + 1)) if i + 1 < n else []
        for gi, m_ in enumerate(M):
            p(m_)
            if gi < G_:
                e = -(-len(fill) * (gi + 1) // G_)
                emitx(p, fill[k:e]); k = e
            elif gi == G_: p.wait_vm(marks[i + 1]); emit(p, c[0:2])
            elif gi == G_ + 1: emit(p, c[2:4])
            elif gi == G_ + 2: emit(p, c[4:])
            elif gi == G_ + 3:
                emit(p, win(i + 1))
                if pre: emit(p, pre(i + 1))

def helper(p):
    end = H3F + 128 * 49152 if (4 in Cfg.daf and not Cfg.h3c) else H3F if 3 in Cfg.daf else X1F if 2 in Cfg.daf else H1F
    tot = (end - H1F) // 1024
    y = max(0, -(-(tot - 96 * Cfg.hx) // 256)); x = y + Cfg.hx if tot else 0
    assert H1F + (160 * y + 96 * x) * 1024 <= W1F
    p('helper:')
    if Cfg.hdl: p(f's_sleep {Cfg.hdl}')
    for k in range(4): p(f'v_mov_b32 v{4 + k}, -1')
    p(f'''
    v_lshlrev_b32 v1, 4, v0
    s_cmp_ge_u32 s2, 160
    s_cbranch_scc1 hlp_b
    s_and_b32 s50, s2, 7
    s_mul_i32 s50, s50, 20
    s_lshr_b32 s51, s2, 3
    s_add_u32 s50, s50, s51
    v_lshrrev_b32 v3, 4, v0
    v_mul_u32_u24 v3, 40960, v3
    v_and_b32 v2, 15, v0
    v_lshl_add_u32 v2, v2, 4, v3
    s_lshl_b32 s28, s50, 8
    s_add_u32 s28, s28, {HQ}
    ''')
    for k in range(16):
        p(f'buffer_store_dwordx4 v[4:7], v2, s[4:7], s28 offen{SC}\ns_add_u32 s28, s28, {4 * 40960}')
    p(f'''
    s_mul_i32 s28, s2, {y * 1024}
    s_add_u32 s29, s28, {y * 1024}
    s_branch hlp_go
    hlp_b:
    s_mul_i32 s28, s2, {x * 1024}
    s_sub_u32 s28, s28, {160 * (x - y) * 1024}
    s_add_u32 s29, s28, {x * 1024}
    hlp_go:
    s_add_u32 s28, s28, {H1F}
    s_add_u32 s29, s29, {H1F}
    hlp_top:
    s_cmp_ge_u32 s28, s29
    s_cbranch_scc1 hlp_end
    buffer_store_dwordx4 v[4:7], v1, s[4:7], s28 offen{SC}
    s_add_u32 s28, s28, 1024
    s_branch hlp_top
    hlp_end:
    s_waitcnt vmcnt(0)
    ''')
    if 4 in Cfg.daf and Cfg.h3c:
        p(f'''
        s_cmp_ge_u32 s2, 160
        s_cbranch_scc1 k_end
        s_lshr_b32 s28, s2, 3
        s_and_b32 s29, s2, 7
        s_and_b32 s53, s28, 15
        s_lshr_b32 s52, s28, 4
        s_lshl_b32 s30, s29, 1
        s_add_u32 s52, s52, s30
        s_mul_i32 s30, s52, {8 * 49152}
        s_mul_i32 s31, s53, 3072
        s_add_u32 s30, s30, s31
        s_add_u32 s30, s30, {H3F}
        s_barrier
        ''')
        for mt in range(8):
            for k in range(3): p(f'buffer_store_dwordx4 v[4:7], v1, s[4:7], s30 offen offset:{1024 * k}{SC}')
            p('s_add_u32 s30, s30, 49152')
        p('s_waitcnt vmcnt(0)')
    p('s_endpgm')

F1L = ['v_lshlrev_b32 v244, %d, v0' % Cfg.FS, f's_lshl_b32 s57, s3, {6 + Cfg.FS}', f's_add_u32 s57, s57, {F1}',
       f'buffer_load_dword v240, v244, s[4:7], s57 offen{SC}']
CW = 65536

def kgen2(p, inject, inject2):
    ACC = 24; FR = 40; Lr = 104; T = 136
    p(f'''
    s_mul_i32 s26, s3, 17408
    s_mov_b32 m0, s26
    v_and_b32 v3, 31, v0
    v_mul_u32_u24 v3, 272, v3
    v_lshrrev_b32 v4, 5, v0
    v_lshl_add_u32 v3, v4, 4, v3
    v_add_u32 v3, s26, v3
    v_mov_b32 v4, 0x3f80
    ds_write_addtid_b32 v4
    s_mul_i32 s27, s3, 4608
    s_add_u32 s27, s27, {RC}
    v_lshlrev_b32 v5, 3, v0
    v_add_u32 v5, s27, v5
    v_mov_b32 v6, 0
    v_mov_b32 v7, 0
    ds_write_b64 v5, v[6:7]
    s_mov_b32 s36, {f2u(LOG2E)}
    s_mov_b32 s37, {f2u(1 / (2 * math.pi))}
    s_mov_b32 s38, 0x41000000
    s_mov_b32 s39, 0x43800000
    v_mul_f32 v20, s36, v20
    v_exp_f32 v20, v20
    v_cvt_pk_bf16_f32 v20, v20, v20
    v_lshlrev_b32 v20, 16, v20
    v_add_f32 v22, v20, v20
    v_cmp_eq_u32 vcc, 0, v0
    v_cndmask_b32 v21, 0, v21, vcc
    ''')
    code = []; tp = [T]
    def new(n=2):
        r = tp[0]; tp[0] += n; return r
    cv = [0]; CV = 240
    def put(val, rows, neg):
        r = CV + (cv[0] % 12); cv[0] += 1
        code.append(f'v_cvt_pk_bf16_f32 v{r}, v{val}, {"-" if neg else ""}v{val + 1}')
        for row in rows: code.append(f'ds_write_addtid_b32 v{r} offset:{272 * row}')
    for st in range(3):
        tp[0] = T
        la, ai, cr, ci = [8 + 4 * st + k for k in range(4)]
        E1, E256, G0 = new(), new(), new()
        E8 = Lr
        t = new(10)
        code += [f'v_mul_f32 v{la}, s36, v{la}', f'v_exp_f32 v{la}, v{la}', f'v_cvt_pk_bf16_f32 v{la}, v{la}, v{la}',
                 f'v_lshlrev_b32 v{la}, 16, v{la}', f'v_mul_f32 v{la}, v{la}, v20', f'v_mul_f32 v{la}, -v{la}, s36',
                 f'v_mul_f32 v{ai}, v{ai}, v20', f'v_mul_f32 v{ai}, s37, v{ai}',
                 f'v_mul_f32 v{G0}, v{cr}, v22', f'v_mul_f32 v{G0 + 1}, v{ci}, v22']
        for k, (E, sc) in enumerate(((E8, 's38'), (E1, None), (E256, 's39'))):
            m_, a_ = t + 3 * k, t + 3 * k + 1
            if sc:
                code += [f'v_mul_f32 v{m_}, {sc}, v{la}', f'v_mul_f32 v{a_}, {sc}, v{ai}', f'v_exp_f32 v{m_}, v{m_}', f'v_fract_f32 v{a_}, v{a_}']
            else:
                code += [f'v_exp_f32 v{m_}, v{la}', f'v_fract_f32 v{a_}, v{ai}']
            code += [f'v_cos_f32 v{E}, v{a_}', f'v_sin_f32 v{E + 1}, v{a_}',
                     f'v_mul_f32 v{E}, v{E}, v{m_}', f'v_mul_f32 v{E + 1}, v{E + 1}, v{m_}']
        Lx = lambda j: Lr + 2 * (j - 1)
        put(E8, [1], False)
        put(G0, [32 + r for r in HROW[0]], True)
        tmp = [new() for _ in range(6)]; ti = [0]
        def nt():
            r = tmp[ti[0] % len(tmp)]; ti[0] += 1; return r
        E2, E4 = new(), new()
        G = {0: G0}
        hi = [(E2, E1, E1, None), (E4, E2, E2, None)]
        HL = ((1, 0, E1), (2, 0, E2), (3, 1, E2), (4, 0, E4), (5, 1, E4), (6, 2, E4), (7, 3, E4), (8, 0, E8),
              (256, 0, E256), (264, 8, E256), (258, 2, E256), (260, 4, E256), (262, 6, E256),
              (512, 256, E256), (520, 264, E256), (516, 260, E256), (768, 512, E256), (776, 520, E256), (772, 516, E256),
              (1024, 768, E256), (1032, 776, E256), (1280, 1024, E256), (1288, 1032, E256),
              (1536, 1280, E256), (1544, 1288, E256), (1792, 1536, E256), (1800, 1544, E256))
        used = {a_ for _, a_, _ in HL}
        for h_, a_, b_ in HL:
            G[h_] = new() if h_ in used else None
            hi.append((G[h_], G[a_], b_, h_))
        lo = []
        for j in range(2, 32):
            pw = 1 << (j.bit_length() - 1)
            a_, b_ = (pw // 2, pw // 2) if j == pw else (j - pw, pw)
            lo.append((Lx(j) if j <= 16 else None, Lx(a_), Lx(b_), j))
        for k in range(max(len(lo), len(hi))):
            if k < len(lo):
                D_, X_, Y_, j = lo[k]; D_ = nt() if D_ is None else D_
                code += cmul(D_, X_, Y_); put(D_, [j], False)
            if k < len(hi):
                D_, X_, Y_, h_ = hi[k]; D_ = nt() if D_ is None else D_
                code += cmul(D_, X_, Y_)
                if h_ in HROW: put(D_, [32 + r for r in HROW[h_]], True)
        assert tp[0] <= XP, tp[0]
        for m in range(8):
            code.append(f'ds_read_b128 {v(FR + 4 * m, 4)}, v3 offset:{32 * 272 + 32 * m}')
            code.append(f'ds_read_b128 {v(FR + 32 + 4 * m, 4)}, v3 offset:{32 * m}')
        for m in range(8):
            c = '0' if (st == 0 and m == 0) else v(ACC, 16)
            code.append(f'v_mfma_f32_32x32x16_bf16 {v(ACC, 16)}, {v(FR + 4 * m, 4)}, {v(FR + 32 + 4 * m, 4)}, {c}')
    S = sched(code)
    k = int(len(S) * Cfg.inj)
    emit(p, weave(S[:k], inject2, Cfg.i2a, Cfg.i2b) + inject + S[k:])
    q = lambda i: f'v{ACC + i}'
    O = FR
    p(f'''
    v_lshlrev_b32 v5, 4, v0
    v_add_u32 v5, s27, v5
    v_lshrrev_b32 v6, 5, v0
    v_lshl_add_u32 v6, v6, 9, v5
    s_mov_b32 s40, 0xaaaaaaaa
    s_mov_b32 s41, 0xaaaaaaaa
    v_add_f32 {q(0)}, {q(0)}, v21
    v_cvt_pk_bf16_f32 v{O}, {q(7)}, {q(6)}
    v_cvt_pk_bf16_f32 v{O + 1}, {q(5)}, {q(4)}
    v_cvt_pk_bf16_f32 v{O + 2}, {q(3)}, {q(2)}
    v_cvt_pk_bf16_f32 v{O + 3}, {q(1)}, {q(0)}
    ds_write_b128 v5, {v(O, 4)} offset:512
    v_cvt_pk_bf16_f32 v{O + 4}, {q(14)}, {q(14)}
    v_cvt_pk_bf16_f32 v{O + 5}, {q(13)}, {q(13)}
    v_cvt_pk_bf16_f32 v{O + 6}, {q(13)}, {q(12)}
    v_cvt_pk_bf16_f32 v{O + 7}, {q(12)}, {q(12)}
    ds_write_b128 v5, {v(O + 4, 4)} offset:{96 * 16}
    ''')
    for k in range(2):
        a_, b_ = q(8 + 2 * k), q(9 + 2 * k); o = O + 8 + 4 * k
        p(f'''
        v_cndmask_b32 v7, {a_}, {b_}, s[40:41]
        v_cvt_pk_bf16_f32 v{o}, {b_}, {b_}
        v_cvt_pk_bf16_f32 v{o + 1}, {b_}, v7
        v_cvt_pk_bf16_f32 v{o + 2}, {a_}, {a_}
        v_mov_b32 v{o + 3}, v{o + 2}
        ds_write_b128 v6, {v(o, 4)} offset:{160 * 16 + 512 * k}
        ''')

def normalize(p):
    M0 = 40960
    p(f'''
    s_lshl_b32 s46, s3, 10
    s_add_u32 m0, s46, {M0}
    s_add_u32 s46, s46, {UC + 4160 + 30}
    v_lshl_add_u32 v8, v0, 2, s46
    s_mov_b32 s48, 0xffff0000
    ''')
    code = []
    for k in range(4):
        B = 64 + 32 * (k & 1)
        for pp in range(2):
            ms = SR + 4 * k + 2 * pp; rn = B + 16 + 2 * pp; F = B + 4 * pp; x = XP + 4 * k + 2 * pp
            code += [f'v_and_b32 v{rn}, s48, v{ms}', f'v_rcp_f32 v{rn}, v{rn}', f'v_lshlrev_b32 v{ms}, 16, v{ms}',
                     f'v_mul_f32 v{rn + 1}, -v{ms}, v{rn}'] + unpack(F, x, 48) + unpack(F + 2, x + 1, 48)
            for h_ in range(2):
                code.append(f'v_pk_fma_f32 {v(F + 2 * h_, 2)}, {v(F + 2 * h_, 2)}, {v(rn, 2)}, {v(rn, 2)} op_sel:[0,0,1] op_sel_hi:[1,0,1]')
        for c in range(4):
            E = B + 8 + c
            code += [f'v_cvt_pk_bf16_f32 v{E}, v{B + c}, v{B + 4 + c}',
                     f'ds_write_addtid_b32 v{E} offset:{UC + 32 - M0 + c * CHS + 256 * k}',
                     f'ds_write_b16 v8, v{E} offset:{c * CHS + 256 * k}',
                     f'ds_write_b16_d16_hi v8, v{E} offset:{c * CHS + 256 * k + 2}']
    emit(p, sched(code))

def conv2(p, fill):
    ACC = 24; KF = [56, 88]; UF = [120, 152]
    p(f'''
    v_and_b32 v8, 15, v0
    v_lshrrev_b32 v9, 4, v0
    v_and_b32 v10, 1, v0
    v_mul_u32_u24 v10, 4158, v10
    v_lshlrev_b32 v11, 1, v8
    v_sub_u32 v11, v11, v10
    v_lshl_add_u32 v11, v9, 4, v11
    s_mul_i32 s46, s3, {CHS}
    s_add_u32 s47, s46, {UC + 4160}
    v_add_u32 v11, s47, v11
    v_add_u32 v12, 1024, v11
    v_add_u32 v13, 2048, v11
    v_add_u32 v14, 3072, v11
    v_lshlrev_b32 v15, 5, v8
    v_lshlrev_b32 v16, 4, v9
    v_sub_u32 v15, v15, v16
    s_mul_i32 s47, s3, 4608
    s_add_u32 s47, s47, {RC + 16 + 512 - 448}
    v_add_u32 v15, s47, v15
    s_waitcnt lgkmcnt(0)
    s_barrier
    ''')
    flag_store(p, 'pba', [('s2', F1)], 245)
    stamp(p, 4)
    def loads(j0):
        b = j0 & 1; out = []
        kf = lambda d: f'ds_read_b128 {v(KF[b] + 4 * d, 4)}, v15 offset:{512 * d - 64 * j0 + 448}'
        out.append(kf(0))
        for jp in range(8):
            o = 128 * (jp & 1) + 16 * j0
            out.append(f'ds_read2_b32 {v(UF[b] + 4 * jp, 2)}, v{11 + (jp >> 1)} offset0:{o} offset1:{o + 1}')
            out.append(f'ds_read2_b32 {v(UF[b] + 4 * jp + 2, 2)}, v{11 + (jp >> 1)} offset0:{o + 2} offset1:{o + 3}')
        out += [kf(d) for d in range(1, 8)]
        return out
    emit(p, loads(0))
    p(f'''
    v_lshlrev_b32 v16, 2, v9
    v_lshl_add_u32 v16, v8, 4, v16
    s_mul_i32 s47, s3, {CHY}
    s_add_u32 s47, s47, {UC}
    v_add_u32 v16, s47, v16
    v_bfe_u32 v17, v0, 2, 2
    v_mul_u32_u24 v17, {CHY}, v17
    v_and_b32 v18, 3, v0
    v_lshl_add_u32 v17, v18, 3, v17
    v_lshl_add_u32 v17, v9, 5, v17
    s_lshl_b32 s47, s3, 10
    s_add_u32 s47, s47, {UC}
    v_add_u32 v17, s47, v17
    v_mul_u32_u24 v18, 40960, v9
    v_lshl_add_u32 v18, v8, 4, v18
    s_mul_i32 s44, s3, {16 * 40960}
    s_lshl_b32 s45, s50, 8
    s_add_u32 s44, s44, s45
    s_add_u32 s44, s44, {HQ}
    ''')
    order = []
    for d in range(8):
        Is = list(range(d, 8))
        if d == 5: Is = [7, 5, 6]
        if d == 6: Is = [7, 6]
        order += [(I, d) for I in Is]
    F = spread(fill, range(Cfg.jc, 8))
    for j0 in range(8):
        b = j0 & 1
        nx = loads(j0 + 1) if j0 < 7 else []
        if j0: p('s_waitcnt lgkmcnt(0)')
        if j0 == Cfg.jc:
            p('''
            v_cmp_ne_u32 vcc, s60, v253
            s_mov_b32 s8, s4
            s_mov_b32 s9, s5
            s_mov_b32 s11, s7
            s_cmp_eq_u64 vcc, 0
            s_cselect_b32 s10, s6, 0
            ''')
        fl = F.get(j0, []) + (F1L if j0 == Cfg.jf else []); k0 = 0
        for k, (I, d) in enumerate(order):
            c = v(ACC + 4 * I, 4)
            src = '0' if (j0 == 0 and d == 0) else c
            p(f'{MF} {c}, {v(UF[b] + 4 * (I - d), 4)}, {v(KF[b] + 4 * d, 4)}, {src}')
            if k < len(nx): p(nx[k])
            if k >= 24:
                e = len(fl) * (k - 23) // 12
                emit(p, fl[k0:e]); k0 = e
    stamp(p, 5)
    for I in (0, 1, 2, 3, 4, 5, 6, 7):
        o = 56 + 2 * I
        p(f'v_cvt_pk_bf16_f32 v{o}, v{ACC + 4 * I}, v{ACC + 4 * I + 2}')
        p(f'v_cvt_pk_bf16_f32 v{o + 1}, v{ACC + 4 * I + 1}, v{ACC + 4 * I + 3}')
        p(f'ds_write2st64_b32 v16, v{o}, v{o + 1} offset0:{2 * I} offset1:{2 * I + 1}')
    U_ = 128
    for r in range(16): emit(p, unpack(U_ + 2 * r, XP + r, 48))
    p(f'''
    s_lshl_b32 s57, s3, 2
    s_add_u32 s57, s57, {CW}
    v_mov_b32 v242, s57
    v_mov_b32 v243, {CW}
    s_waitcnt vmcnt(0)
    v_cmp_ne_u32 vcc, s60, v240
    s_cmp_eq_u32 s10, 0
    s_cselect_b32 s57, 1, vcc_lo
    s_or_b32 s57, s57, vcc_hi
    v_mov_b32 v241, s57
    ds_write_b32 v242, v241
    s_waitcnt lgkmcnt(0)
    s_barrier
    ds_read_b128 v[240:243], v243
    ''')
    Y = 72
    for k in range(4):
        for pp in range(2):
            p(f'ds_read_b64_tr_b16 {v(Y + 4 * k + 2 * pp, 2)}, v17 offset:{512 * (k >> 1) + 256 * pp + 128 * (k & 1)}')
    code = []
    for k in range(4):
        for r in range(4 * k, 4 * k + 4):
            t = 96 + 2 * r
            code += unpack(t, Y + r, 48) + [f'v_pk_add_f32 {v(t, 2)}, {v(t, 2)}, {v(U_ + 2 * r, 2)}', f'v_cvt_pk_bf16_f32 v{Y + r}, v{t}, v{t + 1}']
        code.append(f'buffer_store_dwordx4 {v(Y + 4 * k, 4)}, v18, s[4:7], s44 offen{SC}')
        if k < 3: code.append(f's_add_u32 s44, s44, {4 * 40960}')
    emit(p, code)

def ln_stats(p, sl):
    srd(p, 8, 'x', 2048 * 1280)
    XS = [8, 100]; F = 32
    p(f'''
    v_lshrrev_b32 v1, 4, v0
    v_and_b32 v2, 15, v0
    v_mul_u32_u24 v3, 1280, v1
    v_lshl_add_u32 v3, v2, 4, v3
    s_lshl_b32 s24, s{sl}, 2
    s_add_u32 s24, s24, s3
    s_lshl_b32 s25, s24, 6
    s_add_u32 s25, s25, {STAT}
    s_mul_i32 s24, s24, {8 * 1280}
    ''')
    for n in range(2):
        if n: p('s_add_u32 s24, s24, 5120')
        for i in range(5):
            p(f'buffer_load_dwordx4 {v(XS[n] + 4 * i, 4)}, v3, s[8:11], s24 offen offset:{256 * i}')
    p(f'''
    v_lshl_add_u32 v4, v2, 2, v1
    v_lshlrev_b32 v4, 3, v4
    s_mov_b32 s28, 0xffff0000
    ''')
    for n in range(2):
        X = XS[n]
        for i in range(5):
            for d in range(4):
                k = 4 * i + d
                emit(p, unpack(F + 2 * k, X + k, 28))
            if i == 0:
                p(f'v_pk_add_f32 v[72:73], {v(F, 2)}, {v(F + 2, 2)}')
                p(f'v_pk_add_f32 v[74:75], {v(F + 4, 2)}, {v(F + 6, 2)}')
            else:
                for d in range(4):
                    a_ = 72 + 2 * (d & 1)
                    p(f'v_pk_add_f32 {v(a_, 2)}, {v(a_, 2)}, {v(F + 8 * i + 2 * d, 2)}')
        p('v_pk_add_f32 v[72:73], v[72:73], v[74:75]')
        p('v_add_f32 v72, v72, v73')
        row16_reduce(p, 72)
        p(f'v_mul_f32 v72, {f2u(1 / 640)}, v72')
        for k in range(20):
            p(f'v_pk_add_f32 {v(F + 2 * k, 2)}, {v(F + 2 * k, 2)}, v[72:73] op_sel_hi:[1,0] neg_lo:[0,1] neg_hi:[0,1]')
        for k in range(20):
            a_ = 74 + 2 * (k & 1)
            if k < 2: p(f'v_pk_mul_f32 {v(a_, 2)}, {v(F + 2 * k, 2)}, {v(F + 2 * k, 2)}')
            else: p(f'v_pk_fma_f32 {v(a_, 2)}, {v(F + 2 * k, 2)}, {v(F + 2 * k, 2)}, {v(a_, 2)}')
        p('v_pk_add_f32 v[74:75], v[74:75], v[76:77]')
        p('v_add_f32 v74, v74, v75')
        row16_reduce(p, 74)
        p(f'''
        v_mul_f32 v74, {f2u(1 / 640)}, v74
        v_cvt_pk_bf16_f32 v74, v74, v74
        v_lshlrev_b32 v74, 16, v74
        v_add_f32 v74, {f2u(EPS)}, v74
        v_cvt_pk_bf16_f32 v74, v74, v74
        v_lshlrev_b32 v74, 16, v74
        v_sqrt_f32 v74, v74
        v_cvt_pk_bf16_f32 v{78 + n}, v72, v74
        ''')
    p(TAG)
    p(f'''
    v_cmp_eq_u32 vcc, 0, v2
    v_cndmask_b32 v78, v79, v78, vcc
    v_mov_b32 v79, s60
    s_mov_b32 s30, 0x00030003
    s_mov_b32 s31, 0x00030003
    s_mov_b64 exec, s[30:31]
    buffer_store_dwordx2 v[78:79], v4, s[4:7], s25 offen{SC}
    s_mov_b64 exec, -1
    ''')

def relayout2(p, lab):
    p(f'''
    s_cmp_lt_u32 s20, 20
    s_cbranch_scc1 {lab}_w1
    s_cmp_lt_u32 s20, 40
    s_cbranch_scc1 {lab}_w2
    s_cmp_lt_u32 s20, 88
    s_cbranch_scc1 {lab}_w3
    ''')
    def params(name, rs, nrows, u0, dest, nt, ns, sp, cs):
        srd(p, 8, name, nrows * rs)
        if name == 'w4':
            p(f'''
            s_sub_u32 s24, s20, 88
            s_mul_i32 s35, s24, 205
            s_lshr_b32 s35, s35, 12
            s_mul_i32 s25, s35, 20
            s_sub_u32 s24, s24, s25
            s_lshl_b32 s35, s35, 4
            s_add_u32 s35, s35, s3
            s_lshl_b32 s25, s35, 5
            s_mov_b32 s38, 4
            ''')
        else:
            p(f's_sub_u32 s24, s20, {u0}\ns_mov_b32 s35, s3\ns_mov_b32 s38, 5')
            if sp: p('s_lshr_b32 s25, s3, 1\ns_mul_i32 s25, s25, 80\ns_and_b32 s26, s3, 1\ns_lshl_b32 s26, s26, 5\ns_add_u32 s25, s25, s26')
            else: p('s_lshl_b32 s25, s3, 5')
        p(f's_mul_i32 s25, s25, {rs}\ns_mov_b32 s26, {(160 if sp else 128) * rs}')
        if sp: p(f's_mul_i32 s27, s3, {160 * rs}\ns_add_u32 s27, s27, {64 * rs}')
        else: p(f's_add_u32 s27, s25, {512 * rs}')
        P = nt * 1024
        if name == 'w2':
            p(f'''
            s_lshl_b32 s35, s3, 1
            s_mov_b32 s39, {8 * P}
            s_mov_b32 s40, {(-7 * P) & 0xffffffff}
            s_and_b32 s41, s3, 1
            s_lshl_b32 s41, s41, 1
            s_lshr_b32 s43, s3, 1
            s_add_u32 s41, s41, s43
            s_add_u32 s41, s41, 7
            s_sub_u32 s41, s41, s35
            s_mul_i32 s41, s41, {P}
            ''')
        else:
            p(f's_mov_b32 s39, {4 * P}\ns_mov_b32 s40, {4 * P}\ns_mov_b32 s41, {4 * P}')
        p('s_mov_b32 s23, s39')
        if name == 'w4' and Cfg.ko4:
            for g_ in range(48): assert (g_ * 86) >> 8 == g_ // 3
            p(f'''
            s_mul_i32 s41, s35, 86
            s_lshr_b32 s41, s41, 8
            s_mul_i32 s43, s41, 3
            s_sub_u32 s43, s35, s43
            s_lshl_b32 s35, s43, 4
            s_add_u32 s35, s35, s41
            s_mov_b32 s41, {17 * P}
            s_cmp_eq_u32 s43, 2
            s_cselect_b32 s39, {(-30 * P) & 0xffffffff}, s41
            s_cmp_eq_u32 s43, 1
            s_cselect_b32 s40, {(-30 * P) & 0xffffffff}, s41
            s_cmp_eq_u32 s43, 0
            s_cselect_b32 s23, {(-30 * P) & 0xffffffff}, s41
            ''')
        p(f'''
        s_mov_b32 s28, {(8 if sp else 16) * rs}
        s_mov_b32 s29, {(80 if sp else 8) * rs}
        s_mov_b32 s31, {rs}
        s_mov_b32 s32, {dest}
        s_mov_b32 s33, {nt}
        s_mov_b32 s34, {ns * nt}
        s_mov_b32 s36, {cs}
        s_mov_b32 s37, {205 if nt == 5 else 171}
        ''')
    for g in range(40): assert (g * 205) >> 10 == g // 5
    for g in range(96): assert (g * 171) >> 10 == g // 6
    for g in range(60): assert (g * 205) >> 12 == g // 20
    params('w4', 1280, 1536, 88, W4F, 5, 48, False, 0); p(f's_branch {lab}_go')
    p(f'{lab}_w1:'); params('w1', 1280, 640, 0, W1F, 5, 20, False, CS1); p(f's_branch {lab}_go')
    p(f'{lab}_w2:'); params('w2', 1280, 640, 20, W2F, 5, 20, True, 0); p(f's_branch {lab}_go')
    p(f'{lab}_w3:'); params('w3', 3072, 640, 40, W3F, 6, 20, True, CS3)
    p(f'{lab}_go:')
    p(f'''
    v_lshrrev_b32 v3, 1, v0
    v_lshrrev_b32 v4, 4, v0
    v_xor_b32 v3, v3, v4
    v_and_b32 v3, 1, v3
    v_and_b32 v4, 1, v0
    v_lshl_add_u32 v3, v3, 1, v4
    s_lshl_b32 s42, s24, 6
    v_lshl_add_u32 v3, v3, 4, s42
    v_lshrrev_b32 v1, 2, v0
    v_mul_lo_u32 v1, v1, s31
    v_add_u32 v1, v1, v3
    v_bfe_u32 v2, v0, 2, 3
    v_mul_lo_u32 v2, v2, s31
    v_lshrrev_b32 v4, 5, v0
    v_mul_lo_u32 v4, v4, s29
    v_add3_u32 v2, v2, v4, v3
    s_mul_i32 s42, s3, 10240
    s_mov_b32 m0, s42
    s_lshl_b32 s43, s31, 4
    ''')
    for i in range(5):
        if i == 4:
            p(f'''
            s_cmp_eq_u32 s38, 4
            s_cbranch_scc1 {lab}_ld_done
            buffer_load_dwordx4 v2, s[8:11], s27 offen lds
            s_add_u32 m0, m0, 1024
            s_add_u32 s27, s27, s28
            buffer_load_dwordx4 v2, s[8:11], s27 offen lds
            ''')
        else:
            p(f'''
            buffer_load_dwordx4 v1, s[8:11], s25 offen lds
            s_add_u32 m0, m0, 1024
            s_add_u32 s30, s25, s43
            buffer_load_dwordx4 v1, s[8:11], s30 offen lds
            s_add_u32 m0, m0, 1024
            s_add_u32 s25, s25, s26
            ''')
    p(f'{lab}_ld_done:')
    p(f'''
    v_lshrrev_b32 v2, 2, v0
    v_bfe_u32 v3, v0, 4, 1
    v_and_b32 v9, 3, v0
    v_lshlrev_b32 v9, 3, v9
    v_lshl_add_u32 v9, v2, 6, v9
    v_add_u32 v9, s42, v9
    v_lshlrev_b32 v8, 4, v0
    v_mov_b32 v10, 0x3f803f80
    v_mov_b32 v11, 0x3f803f80
    v_mov_b32 v12, 0x3f803f80
    v_mov_b32 v13, 0x3f803f80
    s_mul_i32 s43, s35, s33
    ''')
    for t in range(2):
        p(f'''
        v_xor_b32 v{4 + t}, {t}, v3
        v_lshl_add_u32 v{4 + t}, v{4 + t}, 5, v9
        s_lshl_b32 s48, s24, 1
        s_add_u32 s48, s48, {t}
        s_mul_i32 s49, s48, s37
        s_lshr_b32 s49, s49, 10
        s_mul_i32 s46, s49, s33
        s_sub_u32 s48, s48, s46
        s_mul_i32 s49, s49, s34
        s_add_u32 s48, s48, s49
        s_add_u32 s48, s48, s43
        s_lshl_b32 s48, s48, 10
        s_add_u32 s{44 + t}, s48, s32
        ''')
    for i in range(5):
        if i == 4: p(f's_cmp_eq_u32 s38, 4\ns_cbranch_scc1 {lab}_st_done')
        if i == 0:
            p('s_waitcnt vmcnt(0)'); stamp(p, 23)
        R = 32 + 8 * i
        for t in range(2):
            p(f'ds_read_b64_tr_b16 {v(R + 4 * t, 2)}, v{4 + t} offset:{2048 * i}')
            p(f'ds_read_b64_tr_b16 {v(R + 4 * t + 2, 2)}, v{4 + t} offset:{2048 * i + 1024}')
        for t in range(2):
            p(f'buffer_store_dwordx4 {v(R + 4 * t, 4)}, v8, s[4:7], s{44 + t} offen{SC}')
            if i < 4: p(f's_add_u32 s{44 + t}, s{44 + t}, s{(39, 40, 23, 41)[i]}')
            p(f'{MF} {v(16 + 4 * t, 4)}, {v(R + 4 * t, 4)}, v[10:13], {v(16 + 4 * t, 4) if i else 0}')
    p(f'{lab}_st_done:')
    stamp(p, 24)
    CSL = 40960
    p(f'''
    s_cmp_eq_u32 s36, 0
    s_cbranch_scc1 {lab}_done
    s_lshl_b32 s48, s3, 7
    s_add_u32 s48, s48, {CSL}
    v_and_b32 v2, 48, v0
    v_add_u32 v2, s48, v2
    s_mov_b32 s46, 0x00010001
    s_mov_b32 s47, 0x00010001
    s_mov_b64 exec, s[46:47]
    ds_write_b128 v2, v[16:19]
    ds_write_b128 v2, v[20:23] offset:64
    s_mov_b64 exec, -1
    s_waitcnt lgkmcnt(0)
    s_barrier
    s_cmp_lg_u32 s3, 0
    s_cbranch_scc1 {lab}_done
    v_lshlrev_b32 v2, 2, v0
    v_add_u32 v3, {CSL}, v2
    ds_read_b32 v4, v3
    ds_read_b32 v5, v3 offset:128
    ds_read_b32 v6, v3 offset:256
    ds_read_b32 v7, v3 offset:384
    s_lshl_b32 s48, s24, 7
    s_add_u32 s48, s48, s36
    v_add_f32 v4, v4, v5
    v_add_f32 v6, v6, v7
    v_add_f32 v4, v4, v6
    s_mov_b32 exec_hi, 0
    buffer_store_dword v4, v2, s[4:7], s48 offen{SC}
    s_mov_b32 exec_hi, -1
    {lab}_done:
    ''')

def build(dbg=False):
    Cfg.stamp = dbg
    p = Prog()
    g1 = PG(5, 20, W1F, 25, 120); g2 = PG(5, 20, W2F, 25, 60); g3 = PG(6, 20, W3F, 53, 0); g4 = PG(5, 48, W4F, 25, 120)
    prologue(p, 256, 'k')
    p('s_cmp_eq_u32 s3, 4\ns_cbranch_scc1 helper')
    if dbg: p('v_mov_b32 v255, 0')
    stamp(p, 0)
    if dbg: p('s_memtime s[98:99]\ns_waitcnt lgkmcnt(0)\nv_writelane_b32 v255, s98, 30')
    p(f'''
    s_add_u32 s56, s92, {EPW}
    s_addc_u32 s57, s93, 0
    s_load_dword s60, s[56:57], 0
    s_cmp_ge_u32 s2, 160
    s_cbranch_scc1 role_b
    ''')
    def ids():
        p('''
        s_lshr_b32 s28, s2, 3
        s_and_b32 s29, s2, 7
        s_and_b32 s25, s28, 7
        s_lshr_b32 s24, s28, 3
        s_lshl_b32 s30, s29, 2
        s_add_u32 s24, s24, s30
        s_lshl_b32 s62, s24, 3
        s_add_u32 s62, s62, s25
        s_lshl_b32 s24, s24, 2
        s_add_u32 s24, s24, s3
        s_and_b32 s53, s28, 15
        s_lshr_b32 s52, s28, 4
        s_lshl_b32 s30, s29, 1
        s_add_u32 s52, s52, s30
        s_lshl_b32 s63, s52, 4
        s_add_u32 s63, s63, s53
        s_lshl_b32 s52, s52, 2
        s_add_u32 s52, s52, s3
        s_lshl_b32 s52, s52, 1
        s_and_b32 s51, s3, 1
        v_lshlrev_b32 v1, 4, v0
        ''')
    W1DMA = dma(g1, 0, 10) + dma(g1, 40, 15)
    p('s_and_b32 s50, s2, 7\ns_mul_i32 s50, s50, 20\ns_lshr_b32 s51, s2, 3\ns_add_u32 s50, s50, s51')
    emit_kgen_loads(p, 50)
    srd(p, 44, 'x', 2048 * 1280)
    p(f'''
    v_mul_u32_u24 v254, 2560, v0
    s_mul_i32 s42, s3, {512 * 1280}
    s_lshl_b32 s43, s50, 3
    s_add_u32 s42, s42, s43
    ''')
    for k in range(4):
        p(f'buffer_load_dwordx2 {v(XP + 4 * k, 2)}, v254, s[44:47], s42 offen')
        p(f'buffer_load_dwordx2 {v(XP + 4 * k + 2, 2)}, v254, s[44:47], s42 offen offset:1280')
        if k < 3: p(f's_add_u32 s42, s42, {128 * 1280}')
    CQ = []
    p(f'''
    s_cmp_lg_u32 s3, 0
    s_cbranch_scc1 nozero
    v_lshrrev_b32 v5, 4, v0
    v_mul_u32_u24 v5, {CHS}, v5
    v_bfe_u32 v6, v0, 3, 1
    v_mul_u32_u24 v6, 4160, v6
    v_and_b32 v7, 7, v0
    v_lshl_add_u32 v5, v7, 2, v5
    v_add3_u32 v5, v5, v6, v2
    v_add_u32 v5, {UC}, v5
    ds_write_b32 v5, v2
    nozero:
    v_lshlrev_b32 v23, 4, v0
    s_lshl_b32 s42, s3, 12
    s_add_u32 s42, s42, {STAT}
    ''')
    stamp(p, 1)
    SL = [f'buffer_load_dwordx4 {v(SR + 4 * k, 4)}, v23, s[4:7], s42 offen offset:{1024 * k}{SC}' for k in range(4)]
    kgen2(p, SL, CQ)
    p(TAG)
    stamp(p, 2)
    if dbg:
        p(f's_waitcnt vmcnt({len(SL)})'); stamp(p, 23); p('s_waitcnt vmcnt(0)'); stamp(p, 24)
    p(f's_mov_b32 s61, {Cfg.spin}\nsa_loop:\ns_waitcnt vmcnt(0)')
    for k in range(8): p(f'v_xor_b32 v{SR + 2 * k + 1}, s60, v{SR + 2 * k + 1}')
    p(f'''
    v_or3_b32 v9, v{SR + 1}, v{SR + 3}, v{SR + 5}
    v_or3_b32 v10, v{SR + 7}, v{SR + 9}, v{SR + 11}
    v_or3_b32 v9, v9, v{SR + 13}, v{SR + 15}
    v_or_b32 v9, v9, v10
    v_cmp_ne_u32 vcc, 0, v9
    s_cbranch_vccz sa_out
    s_sub_u32 s61, s61, 1
    s_cbranch_scc1 sa_out
    s_sleep 4
    ''')
    emit(p, SL)
    p('s_branch sa_loop\nsa_out:')
    if dbg: p(f's_sub_u32 s61, {Cfg.spin}, s61\nv_writelane_b32 v255, s61, 29')
    stamp(p, 3)
    ids()
    def w1flags():
        p(f'''
        s_mul_i32 s56, s25, 5
        s_lshr_b32 s56, s56, 1
        s_lshl_b32 s56, s56, {Cfg.FS}
        s_add_u32 s56, s56, {F0}
        v_min_u32 v253, 2, v0
        v_lshlrev_b32 v253, {Cfg.FS}, v253
        s_mov_b64 s[58:59], 7
        ''')
    normalize(p)
    w1flags()
    p(f'buffer_load_dword v253, v253, s[4:7], s56 offen{SC}')
    conv2(p, dma(g1, 0, 10, 's[8:11]') + dma(g1, 40, 15, 's[8:11]'))
    stamp(p, 6)
    p('''
    v_or3_b32 v240, v240, v241, v242
    v_or_b32 v240, v240, v243
    v_cmp_ne_u32 vcc, 0, v240
    s_cbranch_vccz join1
    s_branch slow1
    ''')
    p('role_b:')
    p('s_sub_u32 s20, s2, 160\ns_mov_b32 s22, 1\ns_cmp_lt_u32 s20, 32\ns_cbranch_scc1 rl_top\ns_sub_u32 s21, s20, 32')
    ln_stats(p, 21)
    p('s_mov_b32 s22, 0')
    stamp(p, 1)
    p('rl_top:')
    relayout2(p, 'rl')
    p('s_cmp_eq_u32 s22, 0\ns_cbranch_scc1 rl_tag')
    p(TAG)
    p('s_mov_b32 s22, 0\nrl_tag:')
    p('s_waitcnt vmcnt(0)\ns_barrier')
    flag_store(p, 'pbr', [('s20', F0), ('s2', F1)])
    p('s_add_u32 s20, s20, 96\ns_cmp_ge_u32 s20, 148\ns_cbranch_scc1 rl_end')
    stamp(p, 2)
    p('s_branch rl_top\nrl_end:')
    ids()
    if 4 in Cfg.daf and Cfg.h3c:
        for k in range(4): p(f'v_mov_b32 v{4 + k}, -1')
        p(f'''
        s_mul_i32 s30, s52, 49152
        s_mul_i32 s31, s53, 3072
        s_add_u32 s30, s30, s31
        s_add_u32 s30, s30, {H3F}
        s_add_u32 s31, s30, 49152
        ''')
        for mt in range(2):
            for k in range(3): p(f'buffer_store_dwordx4 v[4:7], v1, s[4:7], s{30 + mt} offen offset:{1024 * k}{SC}')
    stamp(p, 3)
    p('slow1:')
    w1flags()
    spin(p, 'pb', 1, 254)
    emit(p, W1DMA)
    stamp(p, 4)
    p(f'v_lshlrev_b32 v253, {Cfg.FS}, v0\ns_lshl_b32 s56, s3, {6 + Cfg.FS}\ns_add_u32 s56, s56, {F1}\ns_mov_b64 s[58:59], -1')
    spin(p, 'pf1', 1, 254)
    p('s_barrier')
    p(f'join1:\ns_mov_b32 s61, {Cfg.spin}')
    mj = p.mark()
    stamp(p, 7)
    A0, A1, SUM, GR, ONES, WB, X, CS, HP, HX = 16, 36, 56, 64, 72, 76, 136, 228, 216, 228
    def ldsbases(kh):
        if kh: p('s_mul_i32 s28, s51, 5120\nv_add_u32 v2, s28, v1\nv_add_u32 v3, 65536, v2\nv_add_u32 v15, 131072, v2')
        else: p('v_add_u32 v3, 65536, v1\nv_add_u32 v15, 131072, v1')
    def wreads(g, WB_, per, b0):
        def f(i):
            out = []
            for t in range(g.NT):
                o = ((g.base + per * i) % 160 + t) * 1024
                out.append(f'ds_read_b128 {v(WB_ + 4 * g.NT * (i % 3) + 4 * t, 4)}, v{(b0, 3, 15)[o >> 16]} offset:{o & 65535}')
            return out
        return f
    def exaddr(vw, vr, EXB):
        p(f'''
        s_mul_i32 s28, s3, 5120
        s_xor_b32 s29, s3, 1
        s_mul_i32 s29, s29, 5120
        s_add_u32 s28, s28, {EXB}
        s_add_u32 s29, s29, {EXB}
        v_add_u32 v{vw}, s28, v1
        v_add_u32 v{vr}, s29, v1
        ''')
    ldsbases(True)
    class g5: NT = 5
    kern.cs_loads(p, g5, CS, CS1, 29)
    EXS = 20480
    exaddr(5, 6, 0)
    p(f'''
    s_lshl_b32 s28, s51, 3
    v_add_u32 v4, s28, v1
    s_lshl_b32 s28, s3, 11
    s_add_u32 s28, s28, {EXS}
    v_add_u32 v7, s28, v1
    s_lshl_b32 s28, s3, 9
    s_add_u32 s28, s28, {EXS + 8192}
    v_lshl_add_u32 v8, v0, 2, s28
    s_and_b32 s29, s3, 2
    s_lshl_b32 s28, s29, 9
    s_lshl_b32 s30, s51, 8
    s_add_u32 s28, s28, s30
    s_add_u32 s28, s28, {EXS + 8192}
    v_lshl_add_u32 v9, v0, 2, s28
    s_lshl_b32 s28, s29, 11
    s_lshl_b32 s30, s51, 10
    s_add_u32 s28, s28, s30
    s_add_u32 s28, s28, {EXS}
    v_bfe_u32 v10, v0, 2, 2
    v_lshlrev_b32 v10, 8, v10
    v_and_b32 v11, 15, v0
    v_lshl_add_u32 v10, v11, 4, v10
    v_and_b32 v11, 3, v0
    v_lshl_add_u32 v10, v11, 2, v10
    v_add_u32 v10, s28, v10
    s_lshr_b32 s30, s24, 1
    s_mul_i32 s30, s30, 40960
    s_add_u32 s30, s30, {HQ}
    s_mul_i32 s31, s25, 5120
    s_add_u32 s31, s31, s30
    s_add_u32 s32, s31, 4096
    s_lshl_b32 s28, s51, 11
    s_add_u32 s30, s30, s28
    ''')
    for k in range(4): p(f'v_mov_b32 v{ONES + k}, 0x3f803f80')
    for l in range(15): assert (l * 86) >> 8 == l // 3
    p(f'''
    v_min_u32 v11, 14, v0
    v_mul_u32_u24 v12, 86, v11
    v_lshrrev_b32 v12, 8, v12
    v_mul_u32_u24 v13, 17, v12
    s_mul_i32 s28, s25, 5
    s_lshr_b32 s28, s28, 1
    s_add_u32 s29, s28, 48
    v_add3_u32 v13, v13, v11, s29
    s_add_u32 s28, s28, 20
    v_add_u32 v14, s28, v11
    v_cmp_eq_u32 vcc, 0, v12
    v_cndmask_b32 v13, v13, v14, vcc
    s_mul_i32 s28, s53, 3
    s_add_u32 s28, s28, 37
    v_add_u32 v14, s28, v11
    v_cmp_eq_u32 vcc, 1, v12
    v_cndmask_b32 v13, v13, v14, vcc
    v_lshlrev_b32 v14, {Cfg.FS}, v13
    s_mov_b32 s33, {F0}
    ''')
    WFL = f'buffer_load_dword v13, v14, s[4:7], s33 offen{SC}'
    STUBS.extend('@' + t for t in ['wfs:', 's_cmp_eq_u32 s61, 0', 's_cbranch_scc1 wfs_b', 's_sub_u32 s61, s61, 1', WFL, 's_waitcnt vmcnt(0)',
                                   'v_cmp_ne_u32 vcc, s60, v13', 's_cbranch_vccnz wfs', 's_branch wfs_b'])
    xs1 = XS('x1_', lambda i: X + 8 * i, lambda i: [(1, 30, 4096 * i + 1024 * h_) for h_ in range(2)], {30: 34})
    def mf1(i):
        c = lambda r: v(r, 4) if i else '0'
        M = []
        for t in range(5):
            for sl in range(2):
                r = (A0, A1)[sl] + 4 * t
                M.append(f'{MF} {v(r, 4)}, {v(WB + 20 * (i % 3) + 4 * t, 4)}, {v(X + 8 * i + 4 * sl, 4)}, {c(r)}')
            if t < 2:
                x = v(X + 8 * i + 4 * t, 4)
                M.append(f'{MF} {v(SUM + 4 * t, 4)}, {v(ONES, 4)}, {x}, {c(SUM + 4 * t)}')
                M.append(f'{MF} {v(GR + 4 * t, 4)}, {x}, {x}, {c(GR + 4 * t)}')
        return M
    def epoch():
        p(f'''
        s_or_b32 s29, s2, s3
        s_cmp_lg_u32 s29, 0
        s_cbranch_scc1 noep
        v_mov_b32 v252, s60
        v_mov_b32 v253, 0
        s_mov_b32 s56, {EPW}
        s_mov_b64 exec, 1
        buffer_store_dword v252, v253, s[4:7], s56 offen sc1
        s_mov_b64 exec, -1
        noep:
        ''')
    HPL = [f'buffer_load_dwordx2 {v(HP + 2 * t, 2)}, v4, s[4:7], s{31 if t < 4 else 32} offen offset:{1024 * (t & 3)}{SC}' for t in range(5)]
    ex = spread(dma(g2, 0, 15), range(10 - Cfg.U1, 10))
    k0 = 10 - Cfg.U1
    ex[k0] = ['v_cmp_ne_u32 vcc, s60, v13', '@s_cbranch_vccnz wfs\n@wfs_b:'] + ex[k0]
    ex[max(0, k0 - Cfg.wfd)] = [WFL]
    def bar1():
        stamp(p, 8)
    mainloop(p, 10, 5, mf1, wreads(g1, WB, 10, 2), xs1, Cfg.U1, bar1, ex,
             lambda i: [f'v_swap_b32 v{X + 8 * i + 2 + k}, v{X + 8 * i + 4 + k}' for k in range(2)])
    stamp(p, 9)
    TX = WB
    p('s_barrier')
    emit(p, HPL)
    emit(p, dma(g2, 60, 10))
    p(f'''
    ds_write_b128 v7, {v(GR, 4)}
    ds_write_b128 v7, {v(GR + 4, 4)} offset:1024
    ds_write2st64_b32 v8, v{SUM}, v{SUM + 4} offset0:0 offset1:1
    s_cmp_lg_u32 s51, 0
    s_cbranch_scc1 x1_odd
    ''')
    xr = [f'ds_read2st64_b32 v[8:9], v9 offset0:0 offset1:2', f'ds_read2st64_b32 v[10:11], v10 offset0:0 offset1:8'] + \
         [f'ds_read_b128 {v(TX + 4 * t, 4)}, v6 offset:{1024 * t}' for t in range(5)]
    for t in range(5): p(f'ds_write_b128 v5, {v(A1 + 4 * t, 4)} offset:{1024 * t}')
    p('s_waitcnt lgkmcnt(0)\ns_barrier'); emit(p, xr)
    for k in range(10): p(f'v_pk_add_f32 {v(A0 + 2 * k, 2)}, {v(A0 + 2 * k, 2)}, {v(TX + 2 * k, 2)}')
    p('s_branch x1_join\nx1_odd:')
    for t in range(5): p(f'ds_write_b128 v5, {v(A0 + 4 * t, 4)} offset:{1024 * t}')
    p('s_waitcnt lgkmcnt(0)\ns_barrier'); emit(p, xr)
    for k in range(10): p(f'v_pk_add_f32 {v(A0 + 2 * k, 2)}, {v(A1 + 2 * k, 2)}, {v(TX + 2 * k, 2)}')
    p('x1_join:')
    K, ONE, O, T = 56, 58, 60, 136
    code = [f'v_mov_b32 v{K}, {f2u(C0)}', f'v_mov_b32 v{K + 1}, {f2u(C1)}', f'v_mov_b32 v{ONE}, 1.0',
            'v_add_f32 v8, v8, v9', 'v_add_f32 v10, v10, v11',
            f'v_mul_f32 v8, {f2u(1 / 640)}, v8', 'v_mul_f32 v9, v8, v8', f'v_mov_b32 v13, {f2u(1 / 640)}',
            'v_fma_f32 v10, v10, v13, -v9', 'v_max_f32 v10, 0, v10', f'v_add_f32 v11, {f2u(EPS)}, v10', 'v_rsq_f32 v12, v11',
            'v_mul_f32 v11, v12, v12', f'v_mov_b32 v13, {f2u(EPS)}', 'v_fma_f32 v11, v11, v10, v13', 'v_rsq_f32 v11, v11',
            'v_mul_f32 v13, -v8, v12', 'v_mul_f32 v10, v12, v11', 'v_mul_f32 v11, v13, v11']
    for k in range(10):
        A = A0 + 2 * k; t = T + 2 * k
        code += [f'v_pk_mul_f32 {v(CS + 2 * k, 2)}, {v(CS + 2 * k, 2)}, v[10:11] op_sel:[0,1] op_sel_hi:[1,1]',
                 f'v_pk_fma_f32 {v(A, 2)}, {v(A, 2)}, v[10:11], {v(CS + 2 * k, 2)} op_sel_hi:[1,0,1]']
        code += gelu_code(A, t, K, ONE, O + k)
    emit(p, sched(code))
    mS = [p.mark()]
    FS1 = SC if Cfg.fast1 is None else Cfg.fast1
    kern.SC = FS1
    frag_store80(p, O, H1F)
    kern.SC = SC
    stamp(p, 10)
    epoch()
    p('''
    v_and_b32 v9, 15, v0
    v_lshlrev_b32 v9, 1, v9
    v_and_b32 v10, 48, v0
    v_lshlrev_b32 v10, 4, v10
    s_movk_i32 s32, 0x800
    v_bfrev_b32 v56, 1
    s_mov_b32 s33, 0xffff0000
    s_lshr_b32 s29, s24, 1
    s_lshl_b32 s29, s29, 5
    s_lshl_b32 s30, s51, 1
    ''')
    for ds_, sl, expr in ((0, 0, 's_sub_u32 s28, s29, 1'), (0, 1, 's_sub_u32 s28, s29, s30'),
                          (1, 0, 's_add_u32 s28, s29, s30\ns_add_u32 s28, s28, 1'), (1, 1, 's_add_u32 s28, s29, 2')):
        p(expr)
        p(f'''
        v_add_u32 v11, s28, v9
        v_cmp_gt_u32 vcc, s32, v11
        v_lshrrev_b32 v57, 5, v11
        v_and_b32 v58, 1, v11
        v_lshl_add_u32 v57, v57, 1, v58
        v_mul_u32_u24 v57, 20480, v57
        v_bfe_u32 v11, v11, 1, 4
        v_lshl_add_u32 v57, v11, 4, v57
        v_add_u32 v57, v57, v10
        v_cndmask_b32 v{5 + 2 * ds_ + sl}, v56, v57, vcc
        ''')
    for k in range(10):
        emit(p, unpack(HX + 2 * k, HP + k, 33))
        p(f'v_pk_fma_f32 {v(A0 + 2 * k, 2)}, {v(HX + 2 * k, 2)}, v[12:13], v[12:13] op_sel:[0,0,1] op_sel_hi:[1,0,1]')
    exaddr(9, 10, 120 * 1024)
    p(f'''
    s_lshl_b32 s30, s51, 13
    s_add_u32 s30, s30, {H1F}
    s_lshl_b32 s31, s51, 11
    s_add_u32 s31, s31, {H1F + 16384}
    ''')
    def hop(k, i, sidx, F, su):
        if k not in Cfg.daf:
            publish(p, sidx, F, f'pb{k}x'); stamp(p, i)
            poll(p, f'p{k}', su, False, 's95'); stamp(p, i + 1)
            p(f's_mov_b32 s61, {Cfg.spin}')
            return None
        ack = Cfg.ack4 if k == 4 else Cfg.ack
        if ack: p('s_waitcnt vmcnt(0)')
        stamp(p, i)
        m = p.mark() if ack else mS[0]
        def f():
            p.wait_vm(m); p('s_barrier'); stamp(p, i + 1)
        return f
    def su3():
        p(f'''
        s_and_b32 s56, s62, 0xf8
        s_sub_u32 s56, s56, 8
        v_add_u32 v253, s56, v0
        s_movk_i32 s57, 0x100
        v_cmp_gt_u32 vcc, s57, v253
        v_lshlrev_b32 v253, {Cfg.FS}, v253
        s_and_b32 s58, vcc_lo, 0xffffff
        s_mov_b32 s59, 0
        s_sub_u32 s95, s62, s56
        s_mov_b32 s56, {F2}
        ''')
    def su4():
        p(f'''
        s_and_b32 s56, s63, 0xf0
        s_sub_u32 s95, s62, s56
        s_lshl_b32 s56, s56, {Cfg.FS}
        s_add_u32 s56, s56, {F3}
        v_lshlrev_b32 v253, {Cfg.FS}, v0
        s_mov_b64 s[58:59], 0xffff
        ''')
    def su5():
        p(f'''
        s_and_b32 s56, s62, 0xf0
        s_sub_u32 s95, s63, s56
        s_lshl_b32 s56, s56, {Cfg.FS}
        s_add_u32 s56, s56, {F4}
        v_lshlrev_b32 v253, {Cfg.FS}, v0
        s_mov_b64 s[58:59], 0xffff
        ''')
    def xa2(i):
        ds_ = (i >> 2) if i < 8 else i - 8
        so, off = (30, 1024 * i) if i < 8 else (31, 1024 * (i - 8))
        return [(5 + 2 * ds_ + sl, so, off) for sl in range(2)]
    xs2 = XS('x2_', lambda i: X + 8 * i, xa2, {30: 34, 31: 35})
    def mfk(AS, WB_, xs):
        def f(i):
            M = []
            for t in range(5):
                for sl in range(2):
                    r = AS[sl] + 4 * t
                    M.append(f'{MF} {v(r, 4)}, {v(WB_ + 20 * (i % 3) + 4 * t, 4)}, {v(xs.reg(i) + 4 * sl, 4)}, {v(r, 4) if (i or not sl) else 0}')
            return M
        return f
    ex = spread(dma(g3, 0, 15), range(10 - Cfg.U2, 10))
    bf = hop(2, 11, 's62', F2, su3)
    mainloop(p, 10, 5, mfk((A0, A1), WB, xs2), wreads(g2, WB, 10, 2), xs2, Cfg.U2, bf, ex)
    stamp(p, 13)
    def exch(vw, vr, Akeep, Agive, fill=[]):
        p('s_barrier')
        for t in range(5): p(f'ds_write_b128 v{vw}, {v(Agive + 4 * t, 4)} offset:{1024 * t}')
        emit(p, fill)
        p('s_waitcnt lgkmcnt(0)\ns_barrier')
        for t in range(5): p(f'ds_read_b128 {v(TX + 4 * t, 4)}, v{vr} offset:{1024 * t}')
        return [f'v_pk_add_f32 {v(Akeep + 2 * k, 2)}, {v(Akeep + 2 * k, 2)}, {v(TX + 2 * k, 2)}' for k in range(10)]
    code = exch(9, 10, A0, A1, dma(g3, 60, 15) if Cfg.early else [])
    O = 60
    code += ['v_mov_b32 v8, 0', 'v_mov_b32 v9, 0', 'v_mov_b32 v10, 0', 'v_mov_b32 v11, 0', 'v_lshlrev_b32 v4, 3, v0']
    for k in range(10):
        A = A0 + 2 * k
        code += [f'v_cvt_pk_bf16_f32 v{O + k}, v{A}, v{A + 1}',
                 f'v_dot2c_f32_bf16 v{8 + 2 * (k & 1)}, v{O + k}, v{ONES}', f'v_dot2c_f32_bf16 v{9 + 2 * (k & 1)}, v{O + k}, v{O + k}']
    code += ['v_pk_add_f32 v[8:9], v[8:9], v[10:11]'] + qreduce(8, 10) + qreduce(9, 11)
    emit(p, sched(code))
    mS[0] = p.mark()
    FS_ = SC if Cfg.fast is None else Cfg.fast
    kern.SC = FS_
    frag_store80(p, O, X1F)
    kern.SC = SC
    p(f'''
    s_lshl_b32 s29, s24, 3
    s_add_u32 s29, s29, s25
    s_lshl_b32 s29, s29, 7
    s_add_u32 s29, s29, {PS2}
    s_mov_b64 exec, 0xffff
    buffer_store_dwordx2 v[8:9], v4, s[4:7], s29 offen{FS_}
    s_mov_b64 exec, -1
    ''')
    HA = [f'v_pk_add_f32 {v(HX + 2 * k, 2)}, {v(HX + 2 * k, 2)}, {v(A0 + 2 * k, 2)}' for k in range(10)]
    emit(p, HA)
    stamp(p, 14)
    R3 = Cfg.U3 + 1
    PS = X + 8 * R3; WB3 = 64
    CS = X + 8 * ((20 - R3) % R3)
    assert PS + 8 <= 228 and (20 - R3) % R3 + 3 <= R3
    ldsbases(False)
    p(f'''
    v_and_b32 v6, 15, v0
    v_and_b32 v7, 48, v0
    v_lshlrev_b32 v7, 4, v7
    v_lshl_add_u32 v7, v6, 3, v7
    s_lshl_b32 s29, s52, 10
    s_add_u32 s29, s29, {PS2}
    s_mul_i32 s30, s52, 20480
    s_add_u32 s30, s30, {X1F}
    s_add_u32 s31, s30, 20480
    v_and_b32 v4, 48, v0
    s_mul_i32 s32, s53, 384
    s_add_u32 s32, s32, {CS3}
    ''')
    acc3 = lambda mt, t: 16 + 24 * mt + 4 * t
    PSL = [f'buffer_load_dwordx2 {v(PS + 4 * mt + 2 * i, 2)}, v7, s[4:7], s29 offen offset:{1024 * mt + 128 * i}{SC}' for mt in range(2) for i in range(2)]
    C3L = [f'buffer_load_dwordx4 {v(CS + 4 * t, 4)}, v4, s[4:7], s32 offen offset:{64 * t}{SC}' for t in range(6)]
    xs3 = XS('x3_', lambda i: X + 8 * (i % R3), lambda i: [(1, 30 + mt, 1024 * i) for mt in range(2)], {30: 34, 31: 35}, R3)
    def mf3(i):
        return [f'{MF} {v(acc3(mt, t), 4)}, {v(WB3 + 24 * (i % 3) + 4 * t, 4)}, {v(xs3.reg(i) + 4 * mt, 4)}, {v(acc3(mt, t), 4) if i else 0}'
                for t in range(6) for mt in range(2)]
    code = [f'v_mov_b32 v13, {f2u(1 / 640)}']
    for mt in range(2):
        r = PS + 4 * mt
        code += [f'v_add_f32 v{r}, v{r}, v{r + 2}', f'v_add_f32 v{r + 1}, v{r + 1}, v{r + 3}'] + qreduce(r, r + 2) + qreduce(r + 1, r + 3) + [
            f'v_mul_f32 v{r}, v13, -v{r}', f'v_mul_f32 v{r + 2}, v{r}, v{r}', f'v_fma_f32 v{r + 1}, v{r + 1}, v13, -v{r + 2}',
            f'v_max_f32 v{r + 1}, 0, v{r + 1}', f'v_add_f32 v{r + 1}, {f2u(EPS)}, v{r + 1}', f'v_rsq_f32 v{r + 1}, v{r + 1}',
            f'v_mul_f32 v{r}, v{r}, v{r + 1}']
    n3 = 20 - Cfg.U3
    D4 = dma(g4, 0, 10) + (dma(g4, 40, Cfg.m3) if Cfg.m3 else [])
    ex = spread(D4, range(max(n3, 10) if Cfg.m3 else n3, 20))
    ex[4] = PSL
    if 3 in Cfg.daf: ex[10] = chk(PS) + stub('ps3', [(PS, PSL)]) + ex.get(10, [])
    for k_, L in spread(sched(code), range(11, 17)).items(): ex[k_] = ex.get(k_, []) + L
    c0 = 20 - R3 + 3
    for k_, L in spread(C3L, range(c0, c0 + 2)).items(): ex[k_] = L + ex.get(k_, [])
    bf = hop(3, 15, 's62', F3, su4)
    mainloop(p, 20, 6, mf3, wreads(g3, WB3, 6, 1), xs3, Cfg.U3, bf, ex, None, {10: lambda: p('s_barrier')} if Cfg.m3 else {}, Cfg.st3)
    stamp(p, 17)
    p('s_barrier')
    K, ONE, O, T = 8, 10, 64, 88
    p(f'''
    v_mov_b32 v{K}, {f2u(C0)}
    v_mov_b32 v{K + 1}, {f2u(C1)}
    v_mov_b32 v{ONE}, 1.0
    s_mul_i32 s30, s52, 49152
    s_mul_i32 s31, s53, 3072
    s_add_u32 s30, s30, s31
    s_add_u32 s30, s30, {H3F}
    s_add_u32 s31, s30, 49152
    s_mul_i32 s28, s51, 3072
    s_add_u32 s28, s28, {H3F}
    s_mul_i32 s36, s24, 49152
    s_add_u32 s36, s36, s28
    s_xor_b32 s37, s24, 1
    s_mul_i32 s37, s37, 49152
    s_add_u32 s37, s37, s28
    ''')
    R4 = Cfg.R4; XB4 = 104
    xs4 = XS('x4_', lambda i: XB4 + 8 * (i % R4), lambda i: [(1, 36 + sl, 1024 * (6 * (i & 7) + (i >> 3))) for sl in range(2)], {36: 34, 37: 35}, R4)
    assert XB4 + 8 * R4 <= 228 and XB4 + 8 * Cfg.n4 <= CS and Cfg.ko4
    code = []
    for grp in ([[(mt, k) for mt in range(2) for k in range(4 * pc, 4 * pc + 4)] for pc in range(3)] if Cfg.ko4 else [[(mt, k) for k in range(12)] for mt in range(2)]):
        c2 = []
        for mt, k in grp:
            A = acc3(mt, 0) + 2 * k; t = T + 2 * (k & 3) + 8 * mt; r = PS + 4 * mt
            c2 += [f'v_pk_mul_f32 {v(t, 2)}, {v(CS + 2 * k, 2)}, {v(r, 2)} op_sel_hi:[1,0]',
                   f'v_pk_fma_f32 {v(A, 2)}, {v(A, 2)}, {v(r, 2)}, {v(t, 2)} op_sel:[0,1,0] op_sel_hi:[1,1,1]']
            c2 += gelu_code(A, t, K, ONE, O + 12 * mt + k)
            if k % 4 == 3:
                c2.append(f'buffer_store_dwordx4 {v(O + 12 * mt + k - 3, 4)}, v1, s[4:7], s{30 + mt} offen offset:{1024 * (k // 4)}{FS_}')
        code += sched(c2)
    e3 = min(Cfg.e3, 30 - Cfg.m3)
    assert e3 + Cfg.m3 == 30
    code = weave(code, dma(g4, 40 + 4 * Cfg.m3, e3), 0.0, Cfg.w3)
    kl = max(k for k, t in enumerate(code) if ' lds' in t)
    emit(p, code[:kl + 1]); mS[0] = p.mark()
    code = code[kl + 1:]
    if Cfg.n4:
        E = xs4.init()
        for j in range(Cfg.n4): E += xitems(p, xs4, j)
        code = weave(code, E, Cfg.e4a, Cfg.e4b)
    emitx(p, code)
    stamp(p, 18)
    srd(p, 8, 'out', 2048 * 1280)
    ldsbases(True)
    exaddr(9, 10, 0)
    p(f'''
    v_and_b32 v5, 15, v0
    v_mul_u32_u24 v5, 2560, v5
    v_lshrrev_b32 v7, 4, v0
    v_lshl_add_u32 v6, v7, 3, v5
    v_and_b32 v8, 1, v7
    v_lshl_add_u32 v5, v8, 5, v5
    v_lshrrev_b32 v7, 1, v7
    v_lshl_add_u32 v5, v7, 4, v5
    s_lshr_b32 s32, s24, 1
    s_lshl_b32 s32, s32, 5
    s_add_u32 s32, s32, s51
    s_mul_i32 s32, s32, 1280
    s_mul_i32 s33, s25, 160
    s_add_u32 s32, s32, s33
    ''')
    mk = {}
    def setmk(k): return lambda: mk.__setitem__(k, p.mark())
    U4 = Cfg.U4
    X_ = lambda a_, b_: [(max(0, j - R4 + 1), j) for j in range(a_, b_)]
    D_ = lambda f, av, k: [(av, t) for t in dma(g4, f, 10) + [setmk(k)]]
    seq = X_(U4, Cfg.xa4) + D_(160, 3, 0) + X_(max(U4, Cfg.xa4), Cfg.xb4) + D_(200, 7, 1) + X_(Cfg.xb4, 24)
    plan4 = edf(seq, Cfg.r4, 24)
    if Cfg.show: print({k: [t if isinstance(t, int) else 'd' for t in L if isinstance(t, int) or (isinstance(t, str) and t.startswith('buffer'))] for k, L in plan4.items()})
    ex = {}
    def wb(k):
        def f(): p.wait_vm(mk[k]); p('s_barrier')
        return f
    bar = lambda: p('s_barrier')
    WB4 = 36; TX = 104
    bf = hop(4, 19, 's63', F4, su5)
    mainloop(p, 24, 5, mfk((HX, 16), WB4, xs4), wreads(g4, WB4, 10, 2), xs4, Cfg.U4, bf, ex, None, {3: bar, 7: bar, 14: wb(0), 18: wb(1)}, Cfg.st4, plan4)
    stamp(p, 21)
    emit(p, exch(9, 10, HX, 16))
    O = 128
    for pr in range(2):
        o = O + 4 * pr
        for h_ in range(2):
            A = HX + 4 * (2 * pr + h_)
            p(f'v_cvt_pk_bf16_f32 v{o + 2 * h_}, v{A}, v{A + 1}\nv_cvt_pk_bf16_f32 v{o + 2 * h_ + 1}, v{A + 2}, v{A + 3}')
        p(f'v_permlane16_swap_b32 v{o}, v{o + 2}\nv_permlane16_swap_b32 v{o + 1}, v{o + 3}')
        p(f'buffer_store_dwordx4 {v(o, 4)}, v5, s[8:11], s32 offen offset:{64 * pr}{Cfg.osc}')
    A = HX + 16
    p(f'v_cvt_pk_bf16_f32 v{O + 8}, v{A}, v{A + 1}\nv_cvt_pk_bf16_f32 v{O + 9}, v{A + 2}, v{A + 3}')
    p(f'buffer_store_dwordx2 {v(O + 8, 2)}, v6, s[8:11], s32 offen offset:128{Cfg.osc}')
    if dbg:
        p('s_waitcnt vmcnt(0)')
        p(f's_sub_u32 s61, {Cfg.spin}, s61\nv_writelane_b32 v255, s61, 28')
        stamp(p, 22)
        p('s_memtime s[98:99]\ns_waitcnt lgkmcnt(0)\nv_writelane_b32 v255, s98, 31')
        p(f'''
        s_lshl_b32 s29, s2, 2
        s_add_u32 s29, s29, s3
        s_lshl_b32 s29, s29, 7
        s_add_u32 s29, s29, {DBGW}
        v_lshlrev_b32 v2, 2, v0
        s_mov_b32 exec_hi, 0
        buffer_store_dword v255, v2, s[4:7], s29 offen
        ''')
    p('k_end:\ns_endpgm')
    helper(p)
    emit(p, STUBS)
    return p

if __name__ == '__main__':
    import sys
    from build import HDR
    out = sys.argv[1]; dbg = 'dbg' in sys.argv[2:]
    for a_ in sys.argv[2:]:
        if '=' in a_:
            k_, v_ = a_.split('='); setattr(Cfg, k_, eval(v_))
    name = 'pers_kernel' if 'list' in sys.argv[2:] else NAME
    open(out, 'w').write(file_text([(name, build(dbg), 256, 320, LDSZ)], HDR))
```

```python
import kern
from kern import *
kern.SC = ' sc1'
SC = ' sc1'
LDSZ = 163840
F0, F1, F2, F3, F4, EPW = [FLG + 65536 * k for k in range(6)]
NAME = 'sequential_preLN__ssm_conv_s4d__mixer_s_mlp__prompt_kernel'
FB, UC, RC = 0, 69632, 103040
CHY = 8512
XP, SR = 208, 224
XL = 122880
MF = 'v_mfma_f32_16x16x32_bf16'

TAG = 's_mul_i32 s60, s60, 0x9e3779b1\ns_add_u32 s60, s60, 0x7f4a7c15'
class Cfg:
    stamp = False
    spin = 0x10000
    inj = 0.72
    U1 = 6; U2 = 7; U3 = 8; U4 = 10
    pf = False
    warm = False
    FS = 7
    pw = 1
    own = True
    jc = 4
    m3 = 15
    slp = 0
    early = True
    w3 = 0.3
    fast = None
    fast1 = None
    osc = ''
    st3 = {}; st4 = {}
    R4 = 14; n4 = 0; e4a = 0.6; e4b = 0.95; xa4 = 14; xb4 = 18; r4 = 2.8; show = False
    h3c = 1
    ko4 = True
    ack4 = False
    daf = (1, 2, 3)
    cq0 = True; pb64 = True
    wfd = 3
    ipf = True; xdef = True; xh = True; pfw = 2; pf34 = 32; jl = 3; bw1 = True; hld = True; hx2 = 64; hq0 = 4; hb2 = 0; nopois = False; xrot = True; kname = NAME
    cf0 = 24
    hx = 16; hdl = 0
    c0 = 52; i2a = 0.1; i2b = 0.8
    ack = True
    sslp = 0
    jf = 7
    e3 = 15

def stamp(p, i):
    if Cfg.stamp:
        p(f's_memrealtime s[98:99]\ns_waitcnt lgkmcnt(0)\nv_writelane_b32 v255, s98, {i}')

def flag_store(p, lab, pairs, R=252, sc=' sc1'):
    p(f's_cmp_lg_u32 s3, 0\ns_cbranch_scc1 {lab}_np\nv_mov_b32 v{R}, s60\nv_mov_b32 v{R + 1}, 0\ns_mov_b64 exec, 1')
    for sidx, base in pairs:
        p(f's_lshl_b32 s56, {sidx}, {Cfg.FS}\ns_add_u32 s56, s56, {base}\nbuffer_store_dword v{R}, v{R + 1}, s[4:7], s56 offen{sc}')
    p(f's_mov_b64 exec, -1\n{lab}_np:')

def publish(p, sidx, base, lab, m=None, pf=None, sc=' sc1'):
    if m is None: p('s_waitcnt vmcnt(0)')
    else: p.wait_vm(m)
    if pf and Cfg.pf: p(pf)
    p('s_barrier')
    flag_store(p, lab, [(sidx, base)], 252, sc)

def spin(p, lab, width, R):
    sfx = {1: 'dword', 2: 'dwordx2', 4: 'dwordx4'}[width]
    p(f's_mov_b64 exec, s[58:59]\ns_mov_b32 s61, {Cfg.spin}\n{lab}_loop:')
    p(f'buffer_load_{sfx} {v(R, width)}, v253, s[4:7], s56 offen sc1\ns_waitcnt vmcnt(0)')
    for k in range(width): p(f'v_xor_b32 v{R + k}, s60, v{R + k}')
    if width == 2: p(f'v_or_b32 v{R}, v{R}, v{R + 1}')
    if width == 4: p(f'v_or3_b32 v{R}, v{R}, v{R + 1}, v{R + 2}\nv_or_b32 v{R}, v{R}, v{R + 3}')
    p(f'''
    v_cmp_ne_u32 vcc, 0, v{R}
    s_sub_u32 s61, s61, 1
    s_cbranch_scc1 {lab}_out
    s_cbranch_vccz {lab}_out
    {f's_sleep {Cfg.slp}' if Cfg.slp else ''}
    s_branch {lab}_loop
    {lab}_out:
    s_mov_b64 exec, -1
    ''')

def poll(p, lab, setup, every=False, own=None):
    if not every: p(f's_cmp_lg_u32 s3, {Cfg.pw}\ns_cbranch_scc1 {lab}_skip')
    setup()
    if own and Cfg.own:
        p(f's_cmp_lt_u32 {own}, 64\ns_cselect_b32 s57, 1, 0\ns_mov_b32 s61, 0\ns_and_b32 {own}, {own}, 63\ns_mov_b32 s96, s57\ns_mov_b32 s97, 0\ns_lshl_b64 s[96:97], s[96:97], {own}\ns_andn2_b64 s[58:59], s[58:59], s[96:97]')
    spin(p, lab, 1, 254)
    p(f'{lab}_skip:\ns_waitcnt vmcnt(0)\ns_barrier')

class PG:
    def __init__(self, NT, NS, WF, sJ, base):
        self.NT, self.NS, self.WF, self.sJ, self.base = NT, NS, WF, sJ, base

def dma(g, first, n, sr='s[4:7]'):
    slot = (g.base + first) % 160
    assert slot + 4 * n <= 160
    L = [f's_mul_i32 s54, s{g.sJ}, {g.NS * g.NT}', f's_mul_i32 s55, s3, {n}', 's_add_u32 s54, s54, s55', f's_add_u32 s55, s55, {slot}',
         's_lshl_b32 s54, s54, 10', 's_lshl_b32 m0, s55, 10', f's_add_u32 s54, s54, {g.WF + first * 1024}']
    for k in range(n):
        if k and k % 4 == 0: L += ['s_add_u32 m0, m0, 4096', 's_add_u32 s54, s54, 4096']
        L.append(f'buffer_load_dwordx4 v1, {sr}, s54 offen offset:{1024 * (k & 3)}{SC} lds')
    return L

def emit(p, L):
    for t in L: p(t)

def spread(L, steps):
    d = {}
    for k, s_ in enumerate(steps):
        d[s_] = L[len(L) * k // len(steps): len(L) * (k + 1) // len(steps)]
    return d

def weave(code, fill, lo=0.0, hi=1.0):
    n = len(code); a_, b_ = int(n * lo), int(n * hi); out = list(code[:a_]); k = 0
    for i in range(a_, b_):
        out.append(code[i])
        e = len(fill) * (i - a_ + 1) // (b_ - a_)
        out += fill[k:e]; k = e
    return out + list(code[b_:])

STUBS = []
CT = 250
class XS:
    def __init__(self, lab, reg, addr, run, R=99):
        self.lab, self.reg, self.addr, self.run, self.R = lab, reg, addr, run, R
        self.issued = []; self.marks = {}
        self.cur = {b: 0 for b in run}
    def init(self): return [f's_mov_b32 s{r}, s{b}' for b, r in self.run.items()]
    def main(self, i):
        L = []; Q = []
        for h, (vo, b, off) in enumerate(self.addr(i)):
            k = off >> 12
            if k != self.cur[b]:
                L.append(f's_add_u32 s{self.run[b]}, s{b}, {4096 * k}'); self.cur[b] = k
            Q.append(f'buffer_load_dwordx4 {v(self.reg(i) + 4 * h, 4)}, v{vo}, s[4:7], s{self.run[b]} offen offset:{off & 4095}{SC}')
        return L + Q
    def abs(self, i):
        L = []
        for h, (vo, b, off) in enumerate(self.addr(i)):
            L += [f's_add_u32 s57, s{b}, {off & ~4095}',
                  f'buffer_load_dwordx4 {v(self.reg(i) + 4 * h, 4)}, v{vo}, s[4:7], s57 offen offset:{off & 4095}{SC}']
        return L

def chk(x):
    return [f'v_max3_u32 v{CT}, v{x}, v{x + 1}, v{x + 2}', f'v_max3_u32 v{CT + 1}, v{x + 3}, v{x + 4}, v{x + 5}',
            f'v_max3_u32 v{CT}, v{CT}, v{x + 6}, v{x + 7}', f'v_max_u32 v{CT}, v{CT}, v{CT + 1}', f'v_cmp_eq_u32 vcc, -1, v{CT}']

def stub(lab, ents):
    L = [f'{lab}:', 's_waitcnt vmcnt(0)', 's_cmp_eq_u32 s61, 0', f's_cbranch_scc1 {lab}_b', 's_sub_u32 s61, s61, 1']
    if Cfg.sslp: L.append(f's_sleep {Cfg.sslp}')
    L += ents[0][1]
    for k, (x, rl) in enumerate(ents[1:]):
        L += chk(x) + [f's_cbranch_vccz {lab}_s{k}'] + rl + [f'{lab}_s{k}:']
    L += ['s_waitcnt vmcnt(0)'] + chk(ents[0][0]) + [f's_cbranch_vccnz {lab}', f's_branch {lab}_b']
    STUBS.extend('@' + t for t in L)
    return [f'@s_cbranch_vccnz {lab}\n@{lab}_b:']

def xitems(p, xs, j):
    x = xs.main(j); xs.issued.append(j)
    def last():
        p(x[-1]); xs.marks[j] = p.mark()
    last.t = x[-1]
    return x[:-1] + [last]

def emitx(p, L):
    for t in L:
        if callable(t): t()
        else: p(t)

def edf(seq, rate, n):
    plan = {i: [] for i in range(n)}; i = 0; credit = rate
    for av, it in seq:
        c = 2 if isinstance(it, int) else (1 if isinstance(it, str) and it.startswith('buffer') else 0)
        while i < n - 1 and (av > i or credit < c - 0.999):
            i += 1; credit = min(credit, 1) + rate
        plan[i].append(it); credit -= c
    return plan

def mainloop(p, n, NT, mf, wr, xs, U, bar, extra={}, pre=None, sync={}, st={}, plan=None):
    marks = xs.marks
    ck = bar is not None
    if plan is None: plan = {i: [i + U] for i in range(n - U)}
    if not ck: emit(p, wr(0) + wr(1))
    if not xs.issued: emit(p, xs.init())
    for i in range(len(xs.issued), min(U, n)): emitx(p, xitems(p, xs, i))
    if ck:
        bar()
        emit(p, wr(0) + wr(1))
    win = lambda i: stub(f'{xs.lab}{i}', [(xs.reg(j), xs.abs(j)) for j in xs.issued if j >= i])
    if ck: p.wait_vm(marks[0]); emit(p, chk(xs.reg(0)) + win(0))
    if pre: emit(p, pre(0))
    for i in range(n):
        if ck: p(f's_waitcnt lgkmcnt({NT if i + 1 < n else 0})')
        else: p.wait_vm(marks[i], NT if i + 1 < n else 0)
        if i in sync: sync[i]()
        if i in st: stamp(p, st[i])
        fill = list(wr(i + 2) if i + 2 < n else [])
        for it in plan.get(i, []):
            if isinstance(it, int):
                assert it - xs.R < i, (it, i)
                fill += xitems(p, xs, it)
            else: fill.append(it)
        fill += extra.get(i, [])
        M = mf(i); G_ = len(M) - (5 if pre else 4) if (ck and i + 1 < n) else len(M); k = 0
        c = chk(xs.reg(i + 1)) if i + 1 < n else []
        for gi, m_ in enumerate(M):
            p(m_)
            if gi < G_:
                e = -(-len(fill) * (gi + 1) // G_)
                emitx(p, fill[k:e]); k = e
            elif gi == G_: p.wait_vm(marks[i + 1]); emit(p, c[0:2])
            elif gi == G_ + 1: emit(p, c[2:4])
            elif gi == G_ + 2: emit(p, c[4:])
            elif gi == G_ + 3:
                emit(p, win(i + 1))
                if pre: emit(p, pre(i + 1))

UNIT = """
s_sub_u32 s20, s2, 180
s_and_b32 s21, s20, 7
s_mul_i32 s21, s21, 3
s_lshr_b32 s22, s20, 3
s_add_u32 s21, s21, s22
s_cmp_lt_u32 s20, 24
s_cselect_b32 s20, s21, s20
s_add_u32 s20, s20, 20
s_lshl_b32 s20, s20, 1
s_mov_b32 s22, 0
"""
def helper(p):
    assert Cfg.daf == (1, 2, 3)
    tot = (H3F - H1F) // 1024; x = Cfg.hx2
    y = -(-(tot - 22 * x) // 160)
    assert H1F + (160 * y + 22 * x) * 1024 <= W1F
    p('helper:')
    if Cfg.ipf:
        p(f'''
        @s_getpc_b64 s[30:31]
        @hlp_pc:
        s_sub_u32 s30, s30, hlp_pc-{Cfg.kname}
        s_subb_u32 s31, s31, 0
        s_lshr_b32 s28, s2, 3
        s_lshl_b32 s28, s28, 11
        v_lshl_add_u32 v8, v0, 4, s28
        v_add_u32 v9, 1024, v8
        v_min_u32 v8, code_end-{Cfg.kname}-16, v8
        v_min_u32 v9, code_end-{Cfg.kname}-16, v9
        @s_nop 0
        @global_load_dwordx4 v[12:15], v8, s[30:31]
        @global_load_dwordx4 v[16:19], v9, s[30:31]
        ''')
    for k in range(4): p(f'v_mov_b32 v{4 + k}, -1')
    p(f'''
    v_lshlrev_b32 v1, 4, v0
    s_cmp_ge_u32 s2, 160
    s_cbranch_scc1 hlp_b
    s_add_u32 s56, s92, {EPW}
    s_addc_u32 s57, s93, 0
    s_load_dword s60, s[56:57], 0
    s_and_b32 s50, s2, 7
    s_mul_i32 s50, s50, 20
    s_lshr_b32 s51, s2, 3
    s_add_u32 s50, s50, s51
    v_lshrrev_b32 v3, 4, v0
    v_mul_u32_u24 v3, 40960, v3
    v_and_b32 v2, 15, v0
    v_lshl_add_u32 v3, v2, 4, v3
    s_lshl_b32 s28, s50, 8
    s_add_u32 s28, s28, {HQ}
    ''')
    HS = [f'buffer_store_dwordx4 v[4:7], v3, s[4:7], s28 offen{SC}\ns_add_u32 s28, s28, {4 * 40960}' for k in range(16)]
    emit(p, HS[:Cfg.hq0])
    if Cfg.hdl: p(f's_sleep {Cfg.hdl}')
    srd(p, 44, 'x', 2048 * 1280)
    p('v_mul_u32_u24 v2, 2560, v0\ns_lshl_b32 s42, s50, 3')
    for k in range(16):
        p(f's_add_u32 s43, s51, {k}\ns_and_b32 s43, s43, 15\ns_mul_i32 s43, s43, {128 * 1280}\ns_add_u32 s43, s43, s42')
        p(f'buffer_load_dwordx2 {v(32 + 4 * k, 2)}, v2, s[44:47], s43 offen')
        p(f'buffer_load_dwordx2 {v(32 + 4 * k + 2, 2)}, v2, s[44:47], s43 offen offset:1280')
    SL = []
    for k in range(16):
        if k % 4 == 0: SL.append(f's_mov_b32 s42, {STAT + 1024 * k}')
        SL.append(f'buffer_load_dwordx4 {v(96 + 4 * k, 4)}, v1, s[4:7], s42 offen offset:{1024 * (k & 3)}{SC}')
    p('s_waitcnt lgkmcnt(0)')
    p(TAG)
    emit(p, SL)
    for k in range(16):
        p(f's_add_u32 s43, s51, {k}\ns_and_b32 s43, s43, 15\ns_lshl_b32 s43, s43, 10\ns_add_u32 s43, s43, {XL}\nv_add_u32 v{8 + (k & 3)}, s43, v1')
        p(f'ds_write_b128 v{8 + (k & 3)}, {v(32 + 4 * k, 4)}')
    if Cfg.stamp: p('s_memrealtime s[96:97]')
    p(f's_mov_b32 s61, {Cfg.spin}\nv_add_u32 v8, {XL + 16384}, v1\nsa_loop:\nv_mov_b32 v9, 0')
    for k in range(16):
        p(f'v_xor_b32 v{97 + 4 * k}, s60, v{97 + 4 * k}\nv_xor_b32 v{99 + 4 * k}, s60, v{99 + 4 * k}\nv_or3_b32 v9, v9, v{97 + 4 * k}, v{99 + 4 * k}')
        p(f'ds_write_b128 v8, {v(96 + 4 * k, 4)} offset:{1024 * k}')
    p(f'''
    v_cmp_ne_u32 vcc, 0, v9
    s_cbranch_vccz sa_out
    s_sub_u32 s61, s61, 1
    s_cbranch_scc1 sa_out
    s_waitcnt lgkmcnt(0)
    ''')
    emit(p, SL)
    p('s_branch sa_loop\nsa_out:\ns_waitcnt lgkmcnt(0)\ns_barrier')
    emit(p, HS[Cfg.hq0:])
    p(f's_mul_i32 s28, s2, {y * 1024}\ns_add_u32 s28, s28, {H1F}')
    for k in range(y):
        if k and k % 4 == 0: p('s_add_u32 s28, s28, 4096')
        p(f'buffer_store_dwordx4 v[4:7], v1, s[4:7], s28 offen offset:{1024 * (k & 3)}{SC}')
        if k == y - 1 - Cfg.hb2: p('s_barrier')
    p(f'''
    s_lshl_b32 s56, s2, {Cfg.FS}
    s_add_u32 s56, s56, {F1}
    v_mov_b32 v8, s60
    v_mov_b32 v9, 0
    s_mov_b64 exec, 1
    s_waitcnt vmcnt(0)
    buffer_store_dword v8, v9, s[4:7], s56 offen{SC}
    s_mov_b64 exec, -1
    s_branch hlp_end
    hlp_b:
    s_cmp_lt_u32 s2, 234
    s_cbranch_scc1 {'hlp_l' if Cfg.hld else 'hlp_end'}
    s_mul_i32 s28, s2, {x * 1024}
    s_add_u32 s28, s28, {H1F + (160 * y - 234 * x) * 1024}
    s_add_u32 s29, s28, {x * 1024}
    hlp_top:
    buffer_store_dwordx4 v[4:7], v1, s[4:7], s28 offen{SC}
    s_add_u32 s28, s28, 1024
    s_cmp_lt_u32 s28, s29
    s_cbranch_scc1 hlp_top
    ''')
    if Cfg.hld:
        p('s_branch hlp_end\nhlp_l:' + UNIT + 's_mov_b32 s3, 0\nhlp_lw:')
        relayout2(p, 'la', 0)
        p('s_add_u32 s3, s3, 1\ns_cmp_lt_u32 s3, 4\ns_cbranch_scc1 hlp_lw')
    p('hlp_end:\ns_waitcnt vmcnt(0)')
    if Cfg.stamp:
        p(f's_memrealtime s[98:99]\ns_lshl_b32 s28, s2, 2\ns_add_u32 s28, s28, {DBGW + 0x20000}\nv_mov_b32 v2, 0\ns_waitcnt lgkmcnt(0)\nv_mov_b32 v3, s98\nbuffer_store_dword v3, v2, s[4:7], s28 offen\nv_mov_b32 v3, s96\nbuffer_store_dword v3, v2, s[4:7], s28 offen offset:1024')
    p('s_endpgm')

F1L = ['v_lshlrev_b32 v244, %d, v0' % Cfg.FS, f's_lshl_b32 s57, s3, {6 + Cfg.FS}', f's_add_u32 s57, s57, {F1}',
       f'buffer_load_dword v240, v244, s[4:7], s57 offen{SC}']
CW = 65536

def kgen2(p, inject, inject2):
    ACC = 24; FR = 40; Lr = 104; T = 136
    p(f'''
    s_mul_i32 s26, s3, 17408
    s_mov_b32 m0, s26
    v_and_b32 v3, 31, v0
    v_mul_u32_u24 v3, 272, v3
    v_lshrrev_b32 v4, 5, v0
    v_lshl_add_u32 v3, v4, 4, v3
    v_add_u32 v3, s26, v3
    v_mov_b32 v4, 0x3f80
    ds_write_addtid_b32 v4
    s_mul_i32 s27, s3, 4608
    s_add_u32 s27, s27, {RC}
    v_lshlrev_b32 v5, 3, v0
    v_add_u32 v5, s27, v5
    v_mov_b32 v6, 0
    v_mov_b32 v7, 0
    ds_write_b64 v5, v[6:7]
    s_mov_b32 s36, {f2u(LOG2E)}
    s_mov_b32 s37, {f2u(1 / (2 * math.pi))}
    s_mov_b32 s38, 0x41000000
    s_mov_b32 s39, 0x43800000
    v_mul_f32 v20, s36, v20
    v_exp_f32 v20, v20
    v_cvt_pk_bf16_f32 v20, v20, v20
    v_lshlrev_b32 v20, 16, v20
    v_add_f32 v22, v20, v20
    v_cmp_eq_u32 vcc, 0, v0
    v_cndmask_b32 v21, 0, v21, vcc
    ''')
    code = []; tp = [T]
    def new(n=2):
        r = tp[0]; tp[0] += n; return r
    cv = [0]; CV = 240
    def put(val, rows, neg):
        r = CV + (cv[0] % 12); cv[0] += 1
        code.append(f'v_cvt_pk_bf16_f32 v{r}, v{val}, {"-" if neg else ""}v{val + 1}')
        for row in rows: code.append(f'ds_write_addtid_b32 v{r} offset:{272 * row}')
    for st in range(3):
        tp[0] = T
        la, ai, cr, ci = [8 + 4 * st + k for k in range(4)]
        E1, E256, G0 = new(), new(), new()
        E8 = Lr
        t = new(10)
        code += [f'v_mul_f32 v{la}, s36, v{la}', f'v_exp_f32 v{la}, v{la}', f'v_cvt_pk_bf16_f32 v{la}, v{la}, v{la}',
                 f'v_lshlrev_b32 v{la}, 16, v{la}', f'v_mul_f32 v{la}, v{la}, v20', f'v_mul_f32 v{la}, -v{la}, s36',
                 f'v_mul_f32 v{ai}, v{ai}, v20', f'v_mul_f32 v{ai}, s37, v{ai}',
                 f'v_mul_f32 v{G0}, v{cr}, v22', f'v_mul_f32 v{G0 + 1}, v{ci}, v22']
        for k, (E, sc) in enumerate(((E8, 's38'), (E1, None), (E256, 's39'))):
            m_, a_ = t + 3 * k, t + 3 * k + 1
            if sc:
                code += [f'v_mul_f32 v{m_}, {sc}, v{la}', f'v_mul_f32 v{a_}, {sc}, v{ai}', f'v_exp_f32 v{m_}, v{m_}', f'v_fract_f32 v{a_}, v{a_}']
            else:
                code += [f'v_exp_f32 v{m_}, v{la}', f'v_fract_f32 v{a_}, v{ai}']
            code += [f'v_cos_f32 v{E}, v{a_}', f'v_sin_f32 v{E + 1}, v{a_}',
                     f'v_mul_f32 v{E}, v{E}, v{m_}', f'v_mul_f32 v{E + 1}, v{E + 1}, v{m_}']
        Lx = lambda j: Lr + 2 * (j - 1)
        put(E8, [1], False)
        put(G0, [32 + r for r in HROW[0]], True)
        tmp = [new() for _ in range(6)]; ti = [0]
        def nt():
            r = tmp[ti[0] % len(tmp)]; ti[0] += 1; return r
        E2, E4 = new(), new()
        G = {0: G0}
        hi = [(E2, E1, E1, None), (E4, E2, E2, None)]
        HL = ((1, 0, E1), (2, 0, E2), (3, 1, E2), (4, 0, E4), (5, 1, E4), (6, 2, E4), (7, 3, E4), (8, 0, E8),
              (256, 0, E256), (264, 8, E256), (258, 2, E256), (260, 4, E256), (262, 6, E256),
              (512, 256, E256), (520, 264, E256), (516, 260, E256), (768, 512, E256), (776, 520, E256), (772, 516, E256),
              (1024, 768, E256), (1032, 776, E256), (1280, 1024, E256), (1288, 1032, E256),
              (1536, 1280, E256), (1544, 1288, E256), (1792, 1536, E256), (1800, 1544, E256))
        used = {a_ for _, a_, _ in HL}
        for h_, a_, b_ in HL:
            G[h_] = new() if h_ in used else None
            hi.append((G[h_], G[a_], b_, h_))
        lo = []
        for j in range(2, 32):
            pw = 1 << (j.bit_length() - 1)
            a_, b_ = (pw // 2, pw // 2) if j == pw else (j - pw, pw)
            lo.append((Lx(j) if j <= 16 else None, Lx(a_), Lx(b_), j))
        for k in range(max(len(lo), len(hi))):
            if k < len(lo):
                D_, X_, Y_, j = lo[k]; D_ = nt() if D_ is None else D_
                code += cmul(D_, X_, Y_); put(D_, [j], False)
            if k < len(hi):
                D_, X_, Y_, h_ = hi[k]; D_ = nt() if D_ is None else D_
                code += cmul(D_, X_, Y_)
                if h_ in HROW: put(D_, [32 + r for r in HROW[h_]], True)
        assert tp[0] <= XP, tp[0]
        for m in range(8):
            code.append(f'ds_read_b128 {v(FR + 4 * m, 4)}, v3 offset:{32 * 272 + 32 * m}')
            code.append(f'ds_read_b128 {v(FR + 32 + 4 * m, 4)}, v3 offset:{32 * m}')
        for m in range(8):
            c = '0' if (st == 0 and m == 0) else v(ACC, 16)
            code.append(f'v_mfma_f32_32x32x16_bf16 {v(ACC, 16)}, {v(FR + 4 * m, 4)}, {v(FR + 32 + 4 * m, 4)}, {c}')
    S = sched(code)
    k = int(len(S) * Cfg.inj)
    W_ = weave(S[:k], inject2, Cfg.i2a, Cfg.i2b)
    if Cfg.stamp:
        emit(p, W_[:12]); stamp(p, 25); emit(p, W_[12:len(W_) // 2]); stamp(p, 26); W_ = W_[len(W_) // 2:]
    emit(p, W_ + inject + S[k:])
    q = lambda i: f'v{ACC + i}'
    O = FR
    p(f'''
    v_lshlrev_b32 v5, 4, v0
    v_add_u32 v5, s27, v5
    v_lshrrev_b32 v6, 5, v0
    v_lshl_add_u32 v6, v6, 9, v5
    s_mov_b32 s40, 0xaaaaaaaa
    s_mov_b32 s41, 0xaaaaaaaa
    v_add_f32 {q(0)}, {q(0)}, v21
    v_cvt_pk_bf16_f32 v{O}, {q(7)}, {q(6)}
    v_cvt_pk_bf16_f32 v{O + 1}, {q(5)}, {q(4)}
    v_cvt_pk_bf16_f32 v{O + 2}, {q(3)}, {q(2)}
    v_cvt_pk_bf16_f32 v{O + 3}, {q(1)}, {q(0)}
    ds_write_b128 v5, {v(O, 4)} offset:512
    v_cvt_pk_bf16_f32 v{O + 4}, {q(14)}, {q(14)}
    v_cvt_pk_bf16_f32 v{O + 5}, {q(13)}, {q(13)}
    v_cvt_pk_bf16_f32 v{O + 6}, {q(13)}, {q(12)}
    v_cvt_pk_bf16_f32 v{O + 7}, {q(12)}, {q(12)}
    ds_write_b128 v5, {v(O + 4, 4)} offset:{96 * 16}
    ''')
    for k in range(2):
        a_, b_ = q(8 + 2 * k), q(9 + 2 * k); o = O + 8 + 4 * k
        p(f'''
        v_cndmask_b32 v7, {a_}, {b_}, s[40:41]
        v_cvt_pk_bf16_f32 v{o}, {b_}, {b_}
        v_cvt_pk_bf16_f32 v{o + 1}, {b_}, v7
        v_cvt_pk_bf16_f32 v{o + 2}, {a_}, {a_}
        v_mov_b32 v{o + 3}, v{o + 2}
        ds_write_b128 v6, {v(o, 4)} offset:{160 * 16 + 512 * k}
        ''')

def normalize(p):
    M0 = 40960
    p(f'''
    s_lshl_b32 s46, s3, 10
    s_add_u32 m0, s46, {M0}
    s_add_u32 s46, s46, {UC + 4160 + 30}
    v_lshl_add_u32 v8, v0, 2, s46
    s_mov_b32 s48, 0xffff0000
    ''')
    code = []
    for k in range(4):
        B = 64 + 32 * (k & 1)
        for pp in range(2):
            ms = SR + 4 * k + 2 * pp; rn = B + 16 + 2 * pp; F = B + 4 * pp; x = XP + 4 * k + 2 * pp
            code += [f'v_and_b32 v{rn}, s48, v{ms}', f'v_rcp_f32 v{rn}, v{rn}', f'v_lshlrev_b32 v{ms}, 16, v{ms}',
                     f'v_mul_f32 v{rn + 1}, -v{ms}, v{rn}'] + unpack(F, x, 48) + unpack(F + 2, x + 1, 48)
            for h_ in range(2):
                code.append(f'v_pk_fma_f32 {v(F + 2 * h_, 2)}, {v(F + 2 * h_, 2)}, {v(rn, 2)}, {v(rn, 2)} op_sel:[0,0,1] op_sel_hi:[1,0,1]')
        for c in range(4):
            E = B + 8 + c
            code += [f'v_cvt_pk_bf16_f32 v{E}, v{B + c}, v{B + 4 + c}',
                     f'ds_write_addtid_b32 v{E} offset:{UC + 32 - M0 + c * CHS + 256 * k}',
                     f'ds_write_b16 v8, v{E} offset:{c * CHS + 256 * k}',
                     f'ds_write_b16_d16_hi v8, v{E} offset:{c * CHS + 256 * k + 2}']
    emit(p, sched(code))

def conv2(p, fill):
    ACC = 24; KF = [56, 88]; UF = [120, 152]
    p(f'''
    v_and_b32 v8, 15, v0
    v_lshrrev_b32 v9, 4, v0
    v_and_b32 v10, 1, v0
    v_mul_u32_u24 v10, 4158, v10
    v_lshlrev_b32 v11, 1, v8
    v_sub_u32 v11, v11, v10
    v_lshl_add_u32 v11, v9, 4, v11
    s_mul_i32 s46, s3, {CHS}
    s_add_u32 s47, s46, {UC + 4160}
    v_add_u32 v11, s47, v11
    v_add_u32 v12, 1024, v11
    v_add_u32 v13, 2048, v11
    v_add_u32 v14, 3072, v11
    v_lshlrev_b32 v15, 5, v8
    v_lshlrev_b32 v16, 4, v9
    v_sub_u32 v15, v15, v16
    s_mul_i32 s47, s3, 4608
    s_add_u32 s47, s47, {RC + 16 + 512 - 448}
    v_add_u32 v15, s47, v15
    s_waitcnt lgkmcnt(0)
    s_barrier
    ''')
    if not Cfg.xh: flag_store(p, 'pba', [('s2', F1)], 245)
    stamp(p, 4)
    def loads(j0):
        b = j0 & 1; out = []
        kf = lambda d: f'ds_read_b128 {v(KF[b] + 4 * d, 4)}, v15 offset:{512 * d - 64 * j0 + 448}'
        out.append(kf(0))
        for jp in range(8):
            o = 128 * (jp & 1) + 16 * j0
            out.append(f'ds_read2_b32 {v(UF[b] + 4 * jp, 2)}, v{11 + (jp >> 1)} offset0:{o} offset1:{o + 1}')
            out.append(f'ds_read2_b32 {v(UF[b] + 4 * jp + 2, 2)}, v{11 + (jp >> 1)} offset0:{o + 2} offset1:{o + 3}')
        out += [kf(d) for d in range(1, 8)]
        return out
    emit(p, loads(0))
    p(f'''
    v_lshlrev_b32 v16, 2, v9
    v_lshl_add_u32 v16, v8, 4, v16
    s_mul_i32 s47, s3, {CHY}
    s_add_u32 s47, s47, {UC}
    v_add_u32 v16, s47, v16
    v_bfe_u32 v17, v0, 2, 2
    v_mul_u32_u24 v17, {CHY}, v17
    v_and_b32 v18, 3, v0
    v_lshl_add_u32 v17, v18, 3, v17
    v_lshl_add_u32 v17, v9, 5, v17
    s_lshl_b32 s47, s3, 10
    s_add_u32 s47, s47, {UC}
    v_add_u32 v17, s47, v17
    v_mul_u32_u24 v18, 40960, v9
    v_lshl_add_u32 v18, v8, 4, v18
    s_mul_i32 s44, s3, {16 * 40960}
    s_lshl_b32 s45, s50, 8
    s_add_u32 s44, s44, s45
    s_add_u32 s44, s44, {HQ}
    ''')
    order = []
    for d in range(8):
        Is = list(range(d, 8))
        if d == 5: Is = [7, 5, 6]
        if d == 6: Is = [7, 6]
        order += [(I, d) for I in Is]
    F = spread(fill, range(Cfg.jc, 8))
    for j0 in range(8):
        b = j0 & 1
        nx = loads(j0 + 1) if j0 < 7 else []
        if j0: p('s_waitcnt lgkmcnt(0)')
        if j0 == Cfg.jc:
            p('''
            v_cmp_ne_u32 vcc, s60, v253
            s_mov_b32 s8, s4
            s_mov_b32 s9, s5
            s_mov_b32 s11, s7
            s_cmp_eq_u64 vcc, 0
            s_cselect_b32 s10, s6, 0
            ''')
        fl = F.get(j0, []) + (F1L if j0 == Cfg.jf else []); k0 = 0
        if j0 == Cfg.jl: p(f'buffer_load_dword v253, v253, s[4:7], s49 offen{SC}')
        for k, (I, d) in enumerate(order):
            c = v(ACC + 4 * I, 4)
            src = '0' if (j0 == 0 and d == 0) else c
            p(f'{MF} {c}, {v(UF[b] + 4 * (I - d), 4)}, {v(KF[b] + 4 * d, 4)}, {src}')
            if k < len(nx): p(nx[k])
            if k >= Cfg.cf0:
                e = len(fl) * (k - Cfg.cf0 + 1) // (36 - Cfg.cf0)
                emit(p, fl[k0:e]); k0 = e
    stamp(p, 5)
    for I in (0, 1, 2, 3, 4, 5, 6, 7):
        o = 56 + 2 * I
        p(f'v_cvt_pk_bf16_f32 v{o}, v{ACC + 4 * I}, v{ACC + 4 * I + 2}')
        p(f'v_cvt_pk_bf16_f32 v{o + 1}, v{ACC + 4 * I + 1}, v{ACC + 4 * I + 3}')
        p(f'ds_write2st64_b32 v16, v{o}, v{o + 1} offset0:{2 * I} offset1:{2 * I + 1}')
    U_ = 128
    for r in range(16): emit(p, unpack(U_ + 2 * r, XP + r, 48))
    p(f'''
    s_lshl_b32 s57, s3, 2
    s_add_u32 s57, s57, {CW}
    v_mov_b32 v242, s57
    v_mov_b32 v243, {CW}
    s_waitcnt vmcnt(0)
    v_cmp_ne_u32 vcc, s60, v240
    s_cmp_eq_u32 s10, 0
    s_cselect_b32 s57, 1, vcc_lo
    s_or_b32 s57, s57, vcc_hi
    v_mov_b32 v241, s57
    ds_write_b32 v242, v241
    s_waitcnt lgkmcnt(0)
    s_barrier
    ds_read_b128 v[240:243], v243
    ''')
    Y = 72
    for k in range(4):
        for pp in range(2):
            p(f'ds_read_b64_tr_b16 {v(Y + 4 * k + 2 * pp, 2)}, v17 offset:{512 * (k >> 1) + 256 * pp + 128 * (k & 1)}')
    code = []
    for k in range(4):
        for r in range(4 * k, 4 * k + 4):
            t = 96 + 2 * r
            code += unpack(t, Y + r, 48) + [f'v_pk_add_f32 {v(t, 2)}, {v(t, 2)}, {v(U_ + 2 * r, 2)}', f'v_cvt_pk_bf16_f32 v{Y + r}, v{t}, v{t + 1}']
        code.append(f'buffer_store_dwordx4 {v(Y + 4 * k, 4)}, v18, s[4:7], s44 offen{SC}')
        if k < 3: code.append(f's_add_u32 s44, s44, {4 * 40960}')
    emit(p, code)

def ln_stats(p, sl, part):
    XS = [8, 100]; F = 32
    p(f'''
    v_lshrrev_b32 v1, 4, v0
    v_and_b32 v2, 15, v0
    s_lshl_b32 s24, s{sl}, 2
    s_add_u32 s24, s24, s3
    ''')
    if part == 0:
        srd(p, 8, 'x', 2048 * 1280)
        p(f'''
        v_mul_u32_u24 v3, 1280, v1
        v_lshl_add_u32 v3, v2, 4, v3
        s_mul_i32 s24, s24, {8 * 1280}
        ''')
        for n in range(2):
            if n: p('s_add_u32 s24, s24, 5120')
            for i in range(5):
                p(f'buffer_load_dwordx4 {v(XS[n] + 4 * i, 4)}, v3, s[8:11], s24 offen offset:{256 * i}')
        return
    p(f'''
    s_lshl_b32 s25, s24, 6
    s_add_u32 s25, s25, {STAT}
    v_lshl_add_u32 v4, v2, 2, v1
    v_lshlrev_b32 v4, 3, v4
    s_mov_b32 s28, 0xffff0000
    ''')
    for n in range(2):
        X = XS[n]
        for i in range(5):
            for d in range(4):
                k = 4 * i + d
                emit(p, unpack(F + 2 * k, X + k, 28))
            if i == 0:
                p(f'v_pk_add_f32 v[72:73], {v(F, 2)}, {v(F + 2, 2)}')
                p(f'v_pk_add_f32 v[74:75], {v(F + 4, 2)}, {v(F + 6, 2)}')
            else:
                for d in range(4):
                    a_ = 72 + 2 * (d & 1)
                    p(f'v_pk_add_f32 {v(a_, 2)}, {v(a_, 2)}, {v(F + 8 * i + 2 * d, 2)}')
        p('v_pk_add_f32 v[72:73], v[72:73], v[74:75]')
        p('v_add_f32 v72, v72, v73')
        row16_reduce(p, 72)
        p(f'v_mul_f32 v72, {f2u(1 / 640)}, v72')
        for k in range(20):
            p(f'v_pk_add_f32 {v(F + 2 * k, 2)}, {v(F + 2 * k, 2)}, v[72:73] op_sel_hi:[1,0] neg_lo:[0,1] neg_hi:[0,1]')
        for k in range(20):
            a_ = 74 + 2 * (k & 1)
            if k < 2: p(f'v_pk_mul_f32 {v(a_, 2)}, {v(F + 2 * k, 2)}, {v(F + 2 * k, 2)}')
            else: p(f'v_pk_fma_f32 {v(a_, 2)}, {v(F + 2 * k, 2)}, {v(F + 2 * k, 2)}, {v(a_, 2)}')
        p('v_pk_add_f32 v[74:75], v[74:75], v[76:77]')
        p('v_add_f32 v74, v74, v75')
        row16_reduce(p, 74)
        p(f'''
        v_mul_f32 v74, {f2u(1 / 640)}, v74
        v_cvt_pk_bf16_f32 v74, v74, v74
        v_lshlrev_b32 v74, 16, v74
        v_add_f32 v74, {f2u(EPS)}, v74
        v_cvt_pk_bf16_f32 v74, v74, v74
        v_lshlrev_b32 v74, 16, v74
        v_sqrt_f32 v74, v74
        v_cvt_pk_bf16_f32 v{78 + n}, v72, v74
        ''')
    p(TAG)
    p(f'''
    v_cmp_eq_u32 vcc, 0, v2
    v_cndmask_b32 v78, v79, v78, vcc
    v_mov_b32 v79, s60
    s_mov_b32 s30, 0x00030003
    s_mov_b32 s31, 0x00030003
    s_mov_b64 exec, s[30:31]
    buffer_store_dwordx2 v[78:79], v4, s[4:7], s25 offen{SC}
    s_mov_b64 exec, -1
    ''')

def relayout2(p, lab, part, *a):
    p(f'''
    s_cmp_lt_u32 s20, 20
    s_cbranch_scc1 {lab}_w1
    s_cmp_lt_u32 s20, 40
    s_cbranch_scc1 {lab}_w2
    s_cmp_lt_u32 s20, 88
    s_cbranch_scc1 {lab}_w3
    ''')
    def params(name, rs, nrows, u0, dest, nt, ns, sp, cs):
        srd(p, 8, name, nrows * rs)
        if name == 'w4':
            p(f'''
            s_sub_u32 s24, s20, 88
            s_mul_i32 s35, s24, 205
            s_lshr_b32 s35, s35, 12
            s_mul_i32 s25, s35, 20
            s_sub_u32 s24, s24, s25
            s_lshl_b32 s35, s35, 4
            s_add_u32 s35, s35, s3
            s_lshl_b32 s25, s35, 5
            s_mov_b32 s38, 4
            ''')
        else:
            p(f's_sub_u32 s24, s20, {u0}\ns_mov_b32 s35, s3\ns_mov_b32 s38, 5')
            if sp: p('s_lshr_b32 s25, s3, 1\ns_mul_i32 s25, s25, 80\ns_and_b32 s26, s3, 1\ns_lshl_b32 s26, s26, 5\ns_add_u32 s25, s25, s26')
            else: p('s_lshl_b32 s25, s3, 5')
        p(f's_mul_i32 s25, s25, {rs}\ns_mov_b32 s26, {(160 if sp else 128) * rs}')
        if sp: p(f's_mul_i32 s27, s3, {160 * rs}\ns_add_u32 s27, s27, {64 * rs}')
        else: p(f's_add_u32 s27, s25, {512 * rs}')
        P = nt * 1024
        if name == 'w2':
            p(f'''
            s_lshl_b32 s35, s3, 1
            s_mov_b32 s39, {8 * P}
            s_mov_b32 s40, {(-7 * P) & 0xffffffff}
            s_and_b32 s41, s3, 1
            s_lshl_b32 s41, s41, 1
            s_lshr_b32 s43, s3, 1
            s_add_u32 s41, s41, s43
            s_add_u32 s41, s41, 7
            s_sub_u32 s41, s41, s35
            s_mul_i32 s41, s41, {P}
            ''')
        else:
            p(f's_mov_b32 s39, {4 * P}\ns_mov_b32 s40, {4 * P}\ns_mov_b32 s41, {4 * P}')
        p('s_mov_b32 s23, s39')
        if name == 'w4' and Cfg.ko4:
            for g_ in range(48): assert (g_ * 86) >> 8 == g_ // 3
            p(f'''
            s_mul_i32 s41, s35, 86
            s_lshr_b32 s41, s41, 8
            s_mul_i32 s43, s41, 3
            s_sub_u32 s43, s35, s43
            s_lshl_b32 s35, s43, 4
            s_add_u32 s35, s35, s41
            s_mov_b32 s41, {17 * P}
            s_cmp_eq_u32 s43, 2
            s_cselect_b32 s39, {(-30 * P) & 0xffffffff}, s41
            s_cmp_eq_u32 s43, 1
            s_cselect_b32 s40, {(-30 * P) & 0xffffffff}, s41
            s_cmp_eq_u32 s43, 0
            s_cselect_b32 s23, {(-30 * P) & 0xffffffff}, s41
            ''')
        p(f'''
        s_mov_b32 s28, {(8 if sp else 16) * rs}
        s_mov_b32 s29, {(80 if sp else 8) * rs}
        s_mov_b32 s31, {rs}
        s_mov_b32 s32, {dest}
        s_mov_b32 s33, {nt}
        s_mov_b32 s34, {ns * nt}
        s_mov_b32 s36, {cs}
        s_mov_b32 s37, {205 if nt == 5 else 171}
        ''')
    for g in range(40): assert (g * 205) >> 10 == g // 5
    for g in range(96): assert (g * 171) >> 10 == g // 6
    for g in range(60): assert (g * 205) >> 12 == g // 20
    params('w4', 1280, 1536, 88, W4F, 5, 48, False, 0); p(f's_branch {lab}_go')
    p(f'{lab}_w1:'); params('w1', 1280, 640, 0, W1F, 5, 20, False, CS1); p(f's_branch {lab}_go')
    p(f'{lab}_w2:'); params('w2', 1280, 640, 20, W2F, 5, 20, True, 0); p(f's_branch {lab}_go')
    p(f'{lab}_w3:'); params('w3', 3072, 640, 40, W3F, 6, 20, True, CS3)
    p(f'{lab}_go:')
    if part == 0: rl_load(p, lab)
    else: rl_store(p, lab, *a)

def rl_load(p, lab):
    p(f'''
    v_lshrrev_b32 v3, 1, v0
    v_lshrrev_b32 v4, 4, v0
    v_xor_b32 v3, v3, v4
    v_and_b32 v3, 1, v3
    v_and_b32 v4, 1, v0
    v_lshl_add_u32 v3, v3, 1, v4
    s_lshl_b32 s42, s24, 6
    v_lshl_add_u32 v3, v3, 4, s42
    v_lshrrev_b32 v1, 2, v0
    v_mul_lo_u32 v1, v1, s31
    v_add_u32 v1, v1, v3
    v_bfe_u32 v2, v0, 2, 3
    v_mul_lo_u32 v2, v2, s31
    v_lshrrev_b32 v4, 5, v0
    v_mul_lo_u32 v4, v4, s29
    v_add3_u32 v2, v2, v4, v3
    s_mul_i32 s42, s3, 10240
    s_add_u32 m0, s42, s22
    s_lshl_b32 s43, s31, 4
    ''')
    def ld(va, so):
        return f'''
        buffer_load_dwordx4 {va}, s[8:11], {so} offen lds
        s_add_u32 m0, m0, {49152 - 64}
        buffer_load_dwordx4 {va}, s[8:11], {so} offen offset:64 lds
        s_sub_u32 m0, m0, {49152 - 64 - 1024}
        '''
    for i in range(5):
        if i == 4:
            p(f's_cmp_eq_u32 s38, 4\ns_cbranch_scc1 {lab}_ld_done')
            p(ld('v2', 's27')); p('s_add_u32 s27, s27, s28'); p(ld('v2', 's27'))
        else:
            p(ld('v1', 's25')); p('s_add_u32 s30, s25, s43'); p(ld('v1', 's30')); p('s_add_u32 s25, s25, s26')
    p(f'{lab}_ld_done:')

def rl_store(p, lab, pre=None, mid=None, post=None):
    p(f'''
    s_mul_i32 s42, s3, 10240
    v_lshrrev_b32 v2, 2, v0
    v_bfe_u32 v3, v0, 4, 1
    v_and_b32 v9, 3, v0
    v_lshlrev_b32 v9, 3, v9
    v_lshl_add_u32 v9, v2, 6, v9
    v_add_u32 v9, s42, v9
    v_lshlrev_b32 v8, 4, v0
    v_mov_b32 v10, 0x3f803f80
    v_mov_b32 v11, 0x3f803f80
    v_mov_b32 v12, 0x3f803f80
    v_mov_b32 v13, 0x3f803f80
    s_mul_i32 s43, s35, s33
    ''')
    for t in range(4):
        if t < 2: p(f'v_xor_b32 v{4 + t}, {t}, v3\nv_lshl_add_u32 v{4 + t}, v{4 + t}, 5, v9')
        p(f'''
        s_lshl_b32 s48, s24, 1
        s_add_u32 s48, s48, {t}
        s_mul_i32 s49, s48, s37
        s_lshr_b32 s49, s49, 10
        s_mul_i32 s46, s49, s33
        s_sub_u32 s48, s48, s46
        s_mul_i32 s49, s49, s34
        s_add_u32 s48, s48, s49
        s_add_u32 s48, s48, s43
        s_lshl_b32 s48, s48, 10
        s_add_u32 s{12 + t}, s48, s32
        ''')
    CSL = 40960
    p(f'''
    s_lshl_b32 s48, s3, 8
    s_add_u32 s48, s48, {CSL}
    v_and_b32 v2, 48, v0
    v_add_u32 v2, s48, v2
    s_mov_b32 s46, 0x00010001
    s_mov_b32 s47, 0x00010001
    v_lshlrev_b32 v6, 2, v0
    v_add_u32 v7, {CSL}, v6
    s_lshl_b32 s48, s24, 7
    s_add_u32 s48, s48, s36
    ''')
    if pre: pre()
    p('s_barrier')
    stamp(p, 27)
    if mid: mid()
    def rd(i):
        R = 32 + 16 * i
        for t in range(4):
            p(f'ds_read_b64_tr_b16 {v(R + 4 * t, 2)}, v{4 + (t & 1)} offset:{2048 * i + 49152 * (t >> 1)}')
            p(f'ds_read_b64_tr_b16 {v(R + 4 * t + 2, 2)}, v{4 + (t & 1)} offset:{2048 * i + 1024 + 49152 * (t >> 1)}')
    for i in range(5): rd(i)
    for i in range(5):
        if i == 4: p(f's_cmp_eq_u32 s38, 4\ns_cbranch_scc1 {lab}_st_done')
        R = 32 + 16 * i
        for t in range(4):
            p(f'buffer_store_dwordx4 {v(R + 4 * t, 4)}, v8, s[4:7], s{12 + t} offen{SC}')
            if i < 4: p(f's_add_u32 s{12 + t}, s{12 + t}, s{(39, 40, 23, 41)[i]}')
            p(f'{MF} {v(16 + 4 * t, 4)}, {v(R + 4 * t, 4)}, v[10:13], {v(16 + 4 * t, 4) if i else 0}')
    p(f'{lab}_st_done:')
    stamp(p, 24)
    p(f'''
    s_cmp_eq_u32 s36, 0
    s_cbranch_scc1 {lab}_done
    s_mov_b64 exec, s[46:47]
    ds_write_b128 v2, v[16:19]
    ds_write_b128 v2, v[20:23] offset:64
    ds_write_b128 v2, v[24:27] offset:128
    ds_write_b128 v2, v[28:31] offset:192
    s_mov_b64 exec, -1
    s_waitcnt lgkmcnt(0)
    s_barrier
    s_cmp_lg_u32 s3, 0
    s_cbranch_scc1 {lab}_done
    ds_read_b32 v4, v7
    ds_read_b32 v5, v7 offset:256
    ds_read_b32 v8, v7 offset:512
    ds_read_b32 v9, v7 offset:768
    v_add_f32 v4, v4, v5
    v_add_f32 v8, v8, v9
    v_add_f32 v4, v4, v8
    buffer_store_dword v4, v6, s[4:7], s48 offen{SC}
    {lab}_done:
    ''')
    if post: post()

def build(dbg=False):
    Cfg.stamp = dbg
    p = Prog()
    g1 = PG(5, 20, W1F, 25, 120); g2 = PG(5, 20, W2F, 25, 60); g3 = PG(6, 20, W3F, 53, 0); g4 = PG(5, 48, W4F, 25, 120)
    prologue(p, 256, 'k')
    p('s_cmp_eq_u32 s3, 4\ns_cbranch_scc1 helper')
    if dbg: p('v_mov_b32 v255, 0')
    stamp(p, 0)
    if dbg: p('s_memtime s[98:99]\ns_waitcnt lgkmcnt(0)\nv_writelane_b32 v255, s98, 30')
    p(f'''
    s_add_u32 s56, s92, {EPW}
    s_addc_u32 s57, s93, 0
    s_load_dword s60, s[56:57], 0
    s_cmp_ge_u32 s2, 160
    s_cbranch_scc1 role_b
    ''')
    def ids():
        p('''
        s_lshr_b32 s28, s2, 3
        s_and_b32 s29, s2, 7
        s_and_b32 s25, s28, 7
        s_lshr_b32 s24, s28, 3
        s_lshl_b32 s30, s29, 2
        s_add_u32 s24, s24, s30
        s_lshl_b32 s62, s24, 3
        s_add_u32 s62, s62, s25
        s_lshl_b32 s24, s24, 2
        s_add_u32 s24, s24, s3
        s_and_b32 s53, s28, 15
        s_lshr_b32 s52, s28, 4
        s_lshl_b32 s30, s29, 1
        s_add_u32 s52, s52, s30
        s_lshl_b32 s63, s52, 4
        s_add_u32 s63, s63, s53
        s_lshl_b32 s52, s52, 2
        s_add_u32 s52, s52, s3
        s_lshl_b32 s52, s52, 1
        s_and_b32 s51, s3, 1
        v_lshlrev_b32 v1, 4, v0
        ''')
    W1DMA = dma(g1, 0, 10) + dma(g1, 40, 15)
    p('s_and_b32 s50, s2, 7\ns_mul_i32 s50, s50, 20\ns_lshr_b32 s51, s2, 3\ns_add_u32 s50, s50, s51')
    emit_kgen_loads(p, 50)
    if Cfg.pfw:
        p(f'''
        s_cmp_ge_u32 s3, {Cfg.pfw}
        s_cbranch_scc1 pfw_end
        s_cmp_eq_u32 s3, 1
        s_cselect_b64 s[44:45], s[82:83], s[80:81]
        s_cmp_eq_u32 s3, 2
        s_cselect_b64 s[44:45], s[84:85], s[44:45]
        s_cmp_eq_u32 s3, 3
        s_cselect_b64 s[44:45], s[86:87], s[44:45]
        s_cmp_lt_u32 s3, 2
        s_cselect_b32 s43, 39, {Cfg.pf34 - 1}
        s_mov_b32 s47, 0x20000
        s_add_u32 s42, s43, 1
        s_mul_i32 s46, s42, 20480
        s_mul_i32 s42, s42, s2
        s_lshl_b32 s42, s42, 7
        v_min_u32 v252, s43, v0
        v_lshlrev_b32 v252, 7, v252
        buffer_load_dword v254, v252, s[44:47], s42 offen
        pfw_end:
        ''')
    p(f'''
    s_cmp_lg_u32 s3, 0
    s_cbranch_scc1 nozero
    v_lshrrev_b32 v5, 4, v0
    v_mul_u32_u24 v5, {CHS}, v5
    v_bfe_u32 v6, v0, 3, 1
    v_mul_u32_u24 v6, 4160, v6
    v_and_b32 v7, 7, v0
    v_lshl_add_u32 v5, v7, 2, v5
    v_add3_u32 v5, v5, v6, v2
    v_add_u32 v5, {UC}, v5
    ds_write_b32 v5, v2
    nozero:
    ''')
    stamp(p, 1)
    assert Cfg.xh
    kgen2(p, [], [])
    p(TAG)
    stamp(p, 2)
    ids()
    def w1flags():
        p(f'''
        s_mul_i32 s56, s25, 5
        s_lshr_b32 s56, s56, 1
        s_lshl_b32 s56, s56, {Cfg.FS}
        s_add_u32 s56, s56, {F0}
        v_min_u32 v253, 2, v0
        v_lshlrev_b32 v253, {Cfg.FS}, v253
        s_mov_b64 s[58:59], 7
        ''')
    if Cfg.xh:
        p(f's_lshl_b32 s46, s3, 12\ns_add_u32 s46, s46, {XL}\nv_add_u32 v8, s46, v1\ns_barrier')
        stamp(p, 3)
        for k in range(4): p(f'ds_read_b128 {v(SR + 4 * k, 4)}, v8 offset:{16384 + 1024 * k}\nds_read_b128 {v(XP + 4 * k, 4)}, v8 offset:{1024 * k}')
    normalize(p)
    w1flags()
    p('s_mov_b32 s49, s56')
    conv2(p, dma(g1, 0, 10, 's[8:11]') + dma(g1, 40, 15, 's[8:11]'))
    stamp(p, 6)
    p('''
    v_or3_b32 v240, v240, v241, v242
    v_or_b32 v240, v240, v243
    v_cmp_ne_u32 vcc, 0, v240
    s_cbranch_vccz join1
    s_branch slow1
    ''')
    p('role_b:')
    p('s_sub_u32 s21, s2, 192\ns_cmp_lt_u32 s2, 192\ns_cbranch_scc1 rl_c')
    ln_stats(p, 21, 0)
    ln_stats(p, 21, 1)
    stamp(p, 1)
    p('s_cmp_lt_u32 s2, 234\ns_cbranch_scc1 rl_a\ns_waitcnt vmcnt(0)\ns_barrier')
    flag_store(p, 'pbq', [('s2', F1)])
    p('s_branch rl_end\nrl_c:')
    p(TAG)
    p('rl_a:' + UNIT)
    assert Cfg.hld
    flag_store(p, 'pbt', [('s2', F1)])
    def pre():
        ids(); w1flags()
        p('v_mov_b32 v240, s60\nv_mov_b32 v241, 45072\ns_cmp_lg_u32 s3, 0\ns_cbranch_scc1 rl_tg\nds_write_b32 v241, v240\ns_waitcnt lgkmcnt(0)\nrl_tg:')
    def mid(): p(f'ds_read_b32 v240, v241\nbuffer_load_dword v253, v253, s[4:7], s56 offen{SC}\nv_readfirstlane_b32 s60, v240')
    def post():
        p(f'''
        v_cmp_ne_u32 vcc, s60, v253
        s_or_b32 s57, vcc_lo, vcc_hi
        v_mov_b32 v241, s57
        s_lshl_b32 s57, s3, 2
        s_add_u32 s57, s57, 45056
        v_mov_b32 v242, s57
        v_mov_b32 v243, 45056
        ds_write_b32 v242, v241
        s_waitcnt lgkmcnt(0)
        s_barrier
        ds_read_b128 v[240:243], v243
        s_add_u32 s21, s20, 1
        v_or3_b32 v240, v240, v241, v242
        v_or_b32 v240, v240, v243
        v_cmp_ne_u32 vcc, 0, v240
        s_cbranch_vccnz rl_late
        s_barrier
        ''')
        emit(p, W1DMA)
        p('s_waitcnt vmcnt(25)\ns_barrier')
        flag_store(p, 'pbs', [('s20', F0), ('s21', F0)])
        p('s_branch rl_f1\nrl_late:')
    relayout2(p, 'rl', 1, pre, mid, post)
    p('s_waitcnt vmcnt(0)\ns_barrier')
    flag_store(p, 'pbr', [('s20', F0), ('s21', F0)])
    p('rl_end:')
    ids()
    stamp(p, 3)
    p('slow1:')
    w1flags()
    spin(p, 'pb', 1, 254)
    emit(p, W1DMA)
    p('rl_f1:')
    stamp(p, 4)
    p(f'v_lshlrev_b32 v253, {Cfg.FS}, v0\ns_lshl_b32 s56, s3, {6 + Cfg.FS}\ns_add_u32 s56, s56, {F1}\ns_mov_b64 s[58:59], -1')
    spin(p, 'pf1', 1, 254)
    p('s_barrier')
    p(f'join1:\ns_mov_b32 s61, {Cfg.spin}')
    mj = p.mark()
    stamp(p, 7)
    A0, A1, SUM, GR, ONES, WB, X, CS, HP, HX = 16, 36, 56, 64, 72, 76, 136, 228, 216, 228
    def ldsbases(kh):
        if kh: p('s_mul_i32 s28, s51, 5120\nv_add_u32 v2, s28, v1\nv_add_u32 v3, 65536, v2\nv_add_u32 v15, 131072, v2')
        else: p('v_add_u32 v3, 65536, v1\nv_add_u32 v15, 131072, v1')
    def wreads(g, WB_, per, b0):
        def f(i):
            out = []
            for t in range(g.NT):
                o = ((g.base + per * i) % 160 + t) * 1024
                out.append(f'ds_read_b128 {v(WB_ + 4 * g.NT * (i % 3) + 4 * t, 4)}, v{(b0, 3, 15)[o >> 16]} offset:{o & 65535}')
            return out
        return f
    def exaddr(vw, vr, EXB):
        p(f'''
        s_mul_i32 s28, s3, 5120
        s_xor_b32 s29, s3, 1
        s_mul_i32 s29, s29, 5120
        s_add_u32 s28, s28, {EXB}
        s_add_u32 s29, s29, {EXB}
        v_add_u32 v{vw}, s28, v1
        v_add_u32 v{vr}, s29, v1
        ''')
    ldsbases(True)
    class g5: NT = 5
    kern.cs_loads(p, g5, CS, CS1, 29)
    EXS = 20480
    exaddr(5, 6, 0)
    p(f'''
    s_lshl_b32 s28, s51, 3
    v_add_u32 v4, s28, v1
    s_lshl_b32 s28, s3, 11
    s_add_u32 s28, s28, {EXS}
    v_add_u32 v7, s28, v1
    s_lshl_b32 s28, s3, 9
    s_add_u32 s28, s28, {EXS + 8192}
    v_lshl_add_u32 v8, v0, 2, s28
    s_and_b32 s29, s3, 2
    s_lshl_b32 s28, s29, 9
    s_lshl_b32 s30, s51, 8
    s_add_u32 s28, s28, s30
    s_add_u32 s28, s28, {EXS + 8192}
    v_lshl_add_u32 v9, v0, 2, s28
    s_lshl_b32 s28, s29, 11
    s_lshl_b32 s30, s51, 10
    s_add_u32 s28, s28, s30
    s_add_u32 s28, s28, {EXS}
    v_bfe_u32 v10, v0, 2, 2
    v_lshlrev_b32 v10, 8, v10
    v_and_b32 v11, 15, v0
    v_lshl_add_u32 v10, v11, 4, v10
    v_and_b32 v11, 3, v0
    v_lshl_add_u32 v10, v11, 2, v10
    v_add_u32 v10, s28, v10
    s_lshr_b32 s30, s24, 1
    s_mul_i32 s30, s30, 40960
    s_add_u32 s30, s30, {HQ}
    s_mul_i32 s31, s25, 5120
    s_add_u32 s31, s31, s30
    s_add_u32 s32, s31, 4096
    s_lshl_b32 s28, s51, 11
    s_add_u32 s30, s30, s28
    ''')
    for k in range(4): p(f'v_mov_b32 v{ONES + k}, 0x3f803f80')
    for l in range(15): assert (l * 86) >> 8 == l // 3
    p(f'''
    v_min_u32 v11, 14, v0
    v_mul_u32_u24 v12, 86, v11
    v_lshrrev_b32 v12, 8, v12
    v_mul_u32_u24 v13, 17, v12
    s_mul_i32 s28, s25, 5
    s_lshr_b32 s28, s28, 1
    s_add_u32 s29, s28, 48
    v_add3_u32 v13, v13, v11, s29
    s_add_u32 s28, s28, 20
    v_add_u32 v14, s28, v11
    v_cmp_eq_u32 vcc, 0, v12
    v_cndmask_b32 v13, v13, v14, vcc
    s_mul_i32 s28, s53, 3
    s_add_u32 s28, s28, 37
    v_add_u32 v14, s28, v11
    v_cmp_eq_u32 vcc, 1, v12
    v_cndmask_b32 v13, v13, v14, vcc
    v_lshlrev_b32 v14, {Cfg.FS}, v13
    s_mov_b32 s33, {F0}
    ''')
    WFL = f'buffer_load_dword v13, v14, s[4:7], s33 offen{SC}'
    STUBS.extend('@' + t for t in ['wfs:', 's_cmp_eq_u32 s61, 0', 's_cbranch_scc1 wfs_b', 's_sub_u32 s61, s61, 1', WFL, 's_waitcnt vmcnt(0)',
                                   'v_cmp_ne_u32 vcc, s60, v13', 's_cbranch_vccnz wfs', 's_branch wfs_b'])
    xs1 = XS('x1_', lambda i: X + 8 * i, lambda i: [(1, 30, 4096 * i + 1024 * h_) for h_ in range(2)], {30: 34})
    def mf1(i):
        c = lambda r: v(r, 4) if i else '0'
        M = []
        for t in range(5):
            for sl in range(2):
                r = (A0, A1)[sl] + 4 * t
                M.append(f'{MF} {v(r, 4)}, {v(WB + 20 * (i % 3) + 4 * t, 4)}, {v(X + 8 * i + 4 * sl, 4)}, {c(r)}')
            if t < 2:
                x = v(X + 8 * i + 4 * t, 4)
                M.append(f'{MF} {v(SUM + 4 * t, 4)}, {v(ONES, 4)}, {x}, {c(SUM + 4 * t)}')
                M.append(f'{MF} {v(GR + 4 * t, 4)}, {x}, {x}, {c(GR + 4 * t)}')
        return M
    def epoch():
        p(f'''
        s_or_b32 s29, s2, s3
        s_cmp_lg_u32 s29, 0
        s_cbranch_scc1 noep
        v_mov_b32 v252, s60
        v_mov_b32 v253, 0
        s_mov_b32 s56, {EPW}
        s_mov_b64 exec, 1
        buffer_store_dword v252, v253, s[4:7], s56 offen sc1
        s_mov_b64 exec, -1
        noep:
        ''')
    HPL = [f'buffer_load_dwordx2 {v(HP + 2 * t, 2)}, v4, s[4:7], s{31 if t < 4 else 32} offen offset:{1024 * (t & 3)}{SC}' for t in range(5)]
    ex = spread(dma(g2, 0, 15), range(10 - Cfg.U1, 10))
    k0 = 10 - Cfg.U1
    ex[k0] = ['v_cmp_ne_u32 vcc, s60, v13', '@s_cbranch_vccnz wfs\n@wfs_b:'] + ex[k0]
    ex[max(0, k0 - Cfg.wfd)] = [WFL]
    def bar1():
        stamp(p, 8)
    mainloop(p, 10, 5, mf1, wreads(g1, WB, 10, 2), xs1, Cfg.U1, bar1, ex,
             lambda i: [f'v_swap_b32 v{X + 8 * i + 2 + k}, v{X + 8 * i + 4 + k}' for k in range(2)])
    stamp(p, 9)
    TX = WB
    p('s_barrier')
    emit(p, HPL)
    emit(p, dma(g2, 60, 10))
    p(f'''
    ds_write_b128 v7, {v(GR, 4)}
    ds_write_b128 v7, {v(GR + 4, 4)} offset:1024
    ds_write2st64_b32 v8, v{SUM}, v{SUM + 4} offset0:0 offset1:1
    s_cmp_lg_u32 s51, 0
    s_cbranch_scc1 x1_odd
    ''')
    xr = [f'ds_read2st64_b32 v[8:9], v9 offset0:0 offset1:2', f'ds_read2st64_b32 v[10:11], v10 offset0:0 offset1:8'] + \
         [f'ds_read_b128 {v(TX + 4 * t, 4)}, v6 offset:{1024 * t}' for t in range(5)]
    for t in range(5): p(f'ds_write_b128 v5, {v(A1 + 4 * t, 4)} offset:{1024 * t}')
    p('s_waitcnt lgkmcnt(0)\ns_barrier'); emit(p, xr)
    for k in range(10): p(f'v_pk_add_f32 {v(A0 + 2 * k, 2)}, {v(A0 + 2 * k, 2)}, {v(TX + 2 * k, 2)}')
    p('s_branch x1_join\nx1_odd:')
    for t in range(5): p(f'ds_write_b128 v5, {v(A0 + 4 * t, 4)} offset:{1024 * t}')
    p('s_waitcnt lgkmcnt(0)\ns_barrier'); emit(p, xr)
    for k in range(10): p(f'v_pk_add_f32 {v(A0 + 2 * k, 2)}, {v(A1 + 2 * k, 2)}, {v(TX + 2 * k, 2)}')
    p('x1_join:')
    K, ONE, O, T = 56, 58, 60, 136
    code = [f'v_mov_b32 v{K}, {f2u(C0)}', f'v_mov_b32 v{K + 1}, {f2u(C1)}', f'v_mov_b32 v{ONE}, 1.0',
            'v_add_f32 v8, v8, v9', 'v_add_f32 v10, v10, v11',
            f'v_mul_f32 v8, {f2u(1 / 640)}, v8', 'v_mul_f32 v9, v8, v8', f'v_mov_b32 v13, {f2u(1 / 640)}',
            'v_fma_f32 v10, v10, v13, -v9', 'v_max_f32 v10, 0, v10', f'v_add_f32 v11, {f2u(EPS)}, v10', 'v_rsq_f32 v12, v11',
            'v_mul_f32 v11, v12, v12', f'v_mov_b32 v13, {f2u(EPS)}', 'v_fma_f32 v11, v11, v10, v13', 'v_rsq_f32 v11, v11',
            'v_mul_f32 v13, -v8, v12', 'v_mul_f32 v10, v12, v11', 'v_mul_f32 v11, v13, v11']
    for k in range(10):
        A = A0 + 2 * k; t = T + 2 * k
        code += [f'v_pk_mul_f32 {v(CS + 2 * k, 2)}, {v(CS + 2 * k, 2)}, v[10:11] op_sel:[0,1] op_sel_hi:[1,1]',
                 f'v_pk_fma_f32 {v(A, 2)}, {v(A, 2)}, v[10:11], {v(CS + 2 * k, 2)} op_sel_hi:[1,0,1]']
        code += gelu_code(A, t, K, ONE, O + k)
    emit(p, sched(code))
    mS = [p.mark()]
    FS1 = SC if Cfg.fast1 is None else Cfg.fast1
    kern.SC = FS1
    frag_store80(p, O, H1F)
    kern.SC = SC
    stamp(p, 10)
    epoch()
    p('''
    v_and_b32 v9, 15, v0
    v_lshlrev_b32 v9, 1, v9
    v_and_b32 v10, 48, v0
    v_lshlrev_b32 v10, 4, v10
    s_movk_i32 s32, 0x800
    v_bfrev_b32 v56, 1
    s_mov_b32 s33, 0xffff0000
    s_lshr_b32 s29, s24, 1
    s_lshl_b32 s29, s29, 5
    s_lshl_b32 s30, s51, 1
    ''')
    for ds_, sl, expr in ((0, 0, 's_sub_u32 s28, s29, 1'), (0, 1, 's_sub_u32 s28, s29, s30'),
                          (1, 0, 's_add_u32 s28, s29, s30\ns_add_u32 s28, s28, 1'), (1, 1, 's_add_u32 s28, s29, 2')):
        p(expr)
        p(f'''
        v_add_u32 v11, s28, v9
        v_cmp_gt_u32 vcc, s32, v11
        v_lshrrev_b32 v57, 5, v11
        v_and_b32 v58, 1, v11
        v_lshl_add_u32 v57, v57, 1, v58
        v_mul_u32_u24 v57, 20480, v57
        v_bfe_u32 v11, v11, 1, 4
        v_lshl_add_u32 v57, v11, 4, v57
        v_add_u32 v57, v57, v10
        v_cndmask_b32 v{5 + 2 * ds_ + sl}, v56, v57, vcc
        ''')
    for k in range(10):
        emit(p, unpack(HX + 2 * k, HP + k, 33))
        p(f'v_pk_fma_f32 {v(A0 + 2 * k, 2)}, {v(HX + 2 * k, 2)}, v[12:13], v[12:13] op_sel:[0,0,1] op_sel_hi:[1,0,1]')
    exaddr(9, 10, 120 * 1024)
    p(f'''
    s_lshl_b32 s30, s51, 13
    s_add_u32 s30, s30, {H1F}
    s_lshl_b32 s31, s51, 11
    s_add_u32 s31, s31, {H1F + 16384}
    ''')
    def hop(k, i, sidx, F, su):
        if k not in Cfg.daf:
            publish(p, sidx, F, f'pb{k}x'); stamp(p, i)
            poll(p, f'p{k}', su, False, 's95'); stamp(p, i + 1)
            p(f's_mov_b32 s61, {Cfg.spin}')
            return None
        ack = Cfg.ack4 if k == 4 else Cfg.ack
        if ack: p('s_waitcnt vmcnt(0)')
        stamp(p, i)
        m = p.mark() if ack else mS[0]
        def f():
            p.wait_vm(m); p('s_barrier'); stamp(p, i + 1)
        return f
    def su3():
        p(f'''
        s_and_b32 s56, s62, 0xf8
        s_sub_u32 s56, s56, 8
        v_add_u32 v253, s56, v0
        s_movk_i32 s57, 0x100
        v_cmp_gt_u32 vcc, s57, v253
        v_lshlrev_b32 v253, {Cfg.FS}, v253
        s_and_b32 s58, vcc_lo, 0xffffff
        s_mov_b32 s59, 0
        s_sub_u32 s95, s62, s56
        s_mov_b32 s56, {F2}
        ''')
    def su4():
        p(f'''
        s_and_b32 s56, s63, 0xf0
        s_sub_u32 s95, s62, s56
        s_lshl_b32 s56, s56, {Cfg.FS}
        s_add_u32 s56, s56, {F3}
        v_lshlrev_b32 v253, {Cfg.FS}, v0
        s_mov_b64 s[58:59], 0xffff
        ''')
    def su5():
        p(f'''
        s_and_b32 s56, s62, 0xf0
        s_sub_u32 s95, s63, s56
        s_lshl_b32 s56, s56, {Cfg.FS}
        s_add_u32 s56, s56, {F4}
        v_lshlrev_b32 v253, {Cfg.FS}, v0
        s_mov_b64 s[58:59], 0xffff
        ''')
    def xa2(i):
        ds_ = (i >> 2) if i < 8 else i - 8
        so, off = (30, 1024 * i) if i < 8 else (31, 1024 * (i - 8))
        return [(5 + 2 * ds_ + sl, so, off) for sl in range(2)]
    xs2 = XS('x2_', lambda i: X + 8 * i, xa2, {30: 34, 31: 35})
    def mfk(AS, WB_, xs):
        def f(i):
            M = []
            for t in range(5):
                for sl in range(2):
                    r = AS[sl] + 4 * t
                    M.append(f'{MF} {v(r, 4)}, {v(WB_ + 20 * (i % 3) + 4 * t, 4)}, {v(xs.reg(i) + 4 * sl, 4)}, {v(r, 4) if (i or not sl) else 0}')
            return M
        return f
    ex = spread(dma(g3, 0, 15), range(10 - Cfg.U2, 10))
    bf = hop(2, 11, 's62', F2, su3)
    mainloop(p, 10, 5, mfk((A0, A1), WB, xs2), wreads(g2, WB, 10, 2), xs2, Cfg.U2, bf, ex)
    stamp(p, 13)
    def exch(vw, vr, Akeep, Agive, fill=[]):
        p('s_barrier')
        for t in range(5): p(f'ds_write_b128 v{vw}, {v(Agive + 4 * t, 4)} offset:{1024 * t}')
        emit(p, fill)
        p('s_waitcnt lgkmcnt(0)\ns_barrier')
        for t in range(5): p(f'ds_read_b128 {v(TX + 4 * t, 4)}, v{vr} offset:{1024 * t}')
        return [f'v_pk_add_f32 {v(Akeep + 2 * k, 2)}, {v(Akeep + 2 * k, 2)}, {v(TX + 2 * k, 2)}' for k in range(10)]
    code = exch(9, 10, A0, A1, dma(g3, 60, 15) if Cfg.early else [])
    O = 60
    code += ['v_mov_b32 v8, 0', 'v_mov_b32 v9, 0', 'v_mov_b32 v10, 0', 'v_mov_b32 v11, 0', 'v_lshlrev_b32 v4, 3, v0']
    for k in range(10):
        A = A0 + 2 * k
        code += [f'v_cvt_pk_bf16_f32 v{O + k}, v{A}, v{A + 1}',
                 f'v_dot2c_f32_bf16 v{8 + 2 * (k & 1)}, v{O + k}, v{ONES}', f'v_dot2c_f32_bf16 v{9 + 2 * (k & 1)}, v{O + k}, v{O + k}']
    code += ['v_pk_add_f32 v[8:9], v[8:9], v[10:11]'] + qreduce(8, 10) + qreduce(9, 11)
    emit(p, sched(code))
    mS[0] = p.mark()
    FS_ = SC if Cfg.fast is None else Cfg.fast
    kern.SC = FS_
    frag_store80(p, O, X1F)
    kern.SC = SC
    p(f'''
    s_lshl_b32 s29, s24, 3
    s_add_u32 s29, s29, s25
    s_lshl_b32 s29, s29, 7
    s_add_u32 s29, s29, {PS2}
    s_mov_b64 exec, 0xffff
    buffer_store_dwordx2 v[8:9], v4, s[4:7], s29 offen{FS_}
    s_mov_b64 exec, -1
    ''')
    HA = [f'v_pk_add_f32 {v(HX + 2 * k, 2)}, {v(HX + 2 * k, 2)}, {v(A0 + 2 * k, 2)}' for k in range(10)]
    emit(p, HA)
    stamp(p, 14)
    R3 = Cfg.U3 + 1
    PS = X + 8 * R3; WB3 = 64
    CS = X + 8 * ((20 - R3) % R3)
    assert PS + 8 <= 228 and (20 - R3) % R3 + 3 <= R3
    ldsbases(False)
    p(f'''
    v_and_b32 v6, 15, v0
    v_and_b32 v7, 48, v0
    v_lshlrev_b32 v7, 4, v7
    v_lshl_add_u32 v7, v6, 3, v7
    s_lshl_b32 s29, s52, 10
    s_add_u32 s29, s29, {PS2}
    s_mul_i32 s30, s52, 20480
    s_add_u32 s30, s30, {X1F}
    s_add_u32 s31, s30, 20480
    v_and_b32 v4, 48, v0
    s_mul_i32 s32, s53, 384
    s_add_u32 s32, s32, {CS3}
    ''')
    acc3 = lambda mt, t: 16 + 24 * mt + 4 * t
    PSL = [f'buffer_load_dwordx2 {v(PS + 4 * mt + 2 * i, 2)}, v7, s[4:7], s29 offen offset:{1024 * mt + 128 * i}{SC}' for mt in range(2) for i in range(2)]
    C3L = [f'buffer_load_dwordx4 {v(CS + 4 * t, 4)}, v4, s[4:7], s32 offen offset:{64 * t}{SC}' for t in range(6)]
    xs3 = XS('x3_', lambda i: X + 8 * (i % R3), lambda i: [(1, 30 + mt, 1024 * i) for mt in range(2)], {30: 34, 31: 35}, R3)
    def mf3(i):
        return [f'{MF} {v(acc3(mt, t), 4)}, {v(WB3 + 24 * (i % 3) + 4 * t, 4)}, {v(xs3.reg(i) + 4 * mt, 4)}, {v(acc3(mt, t), 4) if i else 0}'
                for t in range(6) for mt in range(2)]
    code = [f'v_mov_b32 v13, {f2u(1 / 640)}']
    for mt in range(2):
        r = PS + 4 * mt
        code += [f'v_add_f32 v{r}, v{r}, v{r + 2}', f'v_add_f32 v{r + 1}, v{r + 1}, v{r + 3}'] + qreduce(r, r + 2) + qreduce(r + 1, r + 3) + [
            f'v_mul_f32 v{r}, v13, -v{r}', f'v_mul_f32 v{r + 2}, v{r}, v{r}', f'v_fma_f32 v{r + 1}, v{r + 1}, v13, -v{r + 2}',
            f'v_max_f32 v{r + 1}, 0, v{r + 1}', f'v_add_f32 v{r + 1}, {f2u(EPS)}, v{r + 1}', f'v_rsq_f32 v{r + 1}, v{r + 1}',
            f'v_mul_f32 v{r}, v{r}, v{r + 1}']
    n3 = 20 - Cfg.U3
    D4 = dma(g4, 0, 10) + (dma(g4, 40, Cfg.m3) if Cfg.m3 else [])
    ex = spread(D4, range(max(n3, 10) if Cfg.m3 else n3, 20))
    ex[4] = PSL
    if 3 in Cfg.daf: ex[10] = chk(PS) + stub('ps3', [(PS, PSL)]) + ex.get(10, [])
    for k_, L in spread(sched(code), range(11, 17)).items(): ex[k_] = ex.get(k_, []) + L
    c0 = 20 - R3 + 3
    for k_, L in spread(C3L, range(c0, c0 + 2)).items(): ex[k_] = L + ex.get(k_, [])
    bf = hop(3, 15, 's62', F3, su4)
    mainloop(p, 20, 6, mf3, wreads(g3, WB3, 6, 1), xs3, Cfg.U3, bf, ex, None, {10: lambda: p('s_barrier')} if Cfg.m3 else {}, Cfg.st3)
    stamp(p, 17)
    p('s_barrier')
    K, ONE, O, T = 8, 10, 64, 88
    p(f'''
    v_mov_b32 v{K}, {f2u(C0)}
    v_mov_b32 v{K + 1}, {f2u(C1)}
    v_mov_b32 v{ONE}, 1.0
    s_mul_i32 s30, s52, 49152
    s_mul_i32 s31, s53, 3072
    s_add_u32 s30, s30, s31
    s_add_u32 s30, s30, {H3F}
    s_add_u32 s31, s30, 49152
    s_mul_i32 s28, s51, 3072
    s_add_u32 s28, s28, {H3F}
    s_mul_i32 s36, s24, 49152
    s_add_u32 s36, s36, s28
    s_xor_b32 s37, s24, 1
    s_mul_i32 s37, s37, 49152
    s_add_u32 s37, s37, s28
    ''')
    R4 = Cfg.R4; XB4 = 104
    xs4 = XS('x4_', lambda i: XB4 + 8 * (i % R4), lambda i: [(1, 36 + sl, 1024 * (6 * (i & 7) + (i >> 3))) for sl in range(2)], {36: 34, 37: 35}, R4)
    assert XB4 + 8 * R4 <= 228 and XB4 + 8 * Cfg.n4 <= CS and Cfg.ko4
    code = []
    for grp in ([[(mt, k) for mt in range(2) for k in range(4 * pc, 4 * pc + 4)] for pc in range(3)] if Cfg.ko4 else [[(mt, k) for k in range(12)] for mt in range(2)]):
        c2 = []
        for mt, k in grp:
            A = acc3(mt, 0) + 2 * k; t = T + 2 * (k & 3) + 8 * mt; r = PS + 4 * mt
            c2 += [f'v_pk_mul_f32 {v(t, 2)}, {v(CS + 2 * k, 2)}, {v(r, 2)} op_sel_hi:[1,0]',
                   f'v_pk_fma_f32 {v(A, 2)}, {v(A, 2)}, {v(r, 2)}, {v(t, 2)} op_sel:[0,1,0] op_sel_hi:[1,1,1]']
            c2 += gelu_code(A, t, K, ONE, O + 12 * mt + k)
            if k % 4 == 3:
                c2.append(f'buffer_store_dwordx4 {v(O + 12 * mt + k - 3, 4)}, v1, s[4:7], s{30 + mt} offen offset:{1024 * (k // 4)}{FS_}')
        code += sched(c2)
    e3 = min(Cfg.e3, 30 - Cfg.m3)
    assert e3 + Cfg.m3 == 30
    code = weave(code, dma(g4, 40 + 4 * Cfg.m3, e3), 0.0, Cfg.w3)
    kl = max(k for k, t in enumerate(code) if ' lds' in t)
    emit(p, code[:kl + 1]); mS[0] = p.mark()
    code = code[kl + 1:]
    if Cfg.n4:
        E = xs4.init()
        for j in range(Cfg.n4): E += xitems(p, xs4, j)
        code = weave(code, E, Cfg.e4a, Cfg.e4b)
    emitx(p, code)
    stamp(p, 18)
    srd(p, 8, 'out', 2048 * 1280)
    ldsbases(True)
    exaddr(9, 10, 0)
    p(f'''
    v_and_b32 v5, 15, v0
    v_mul_u32_u24 v5, 2560, v5
    v_lshrrev_b32 v7, 4, v0
    v_lshl_add_u32 v6, v7, 3, v5
    v_and_b32 v8, 1, v7
    v_lshl_add_u32 v5, v8, 5, v5
    v_lshrrev_b32 v7, 1, v7
    v_lshl_add_u32 v5, v7, 4, v5
    s_lshr_b32 s32, s24, 1
    s_lshl_b32 s32, s32, 5
    s_add_u32 s32, s32, s51
    s_mul_i32 s32, s32, 1280
    s_mul_i32 s33, s25, 160
    s_add_u32 s32, s32, s33
    ''')
    mk = {}
    def setmk(k): return lambda: mk.__setitem__(k, p.mark())
    U4 = Cfg.U4
    X_ = lambda a_, b_: [(max(0, j - R4 + 1), j) for j in range(a_, b_)]
    D_ = lambda f, av, k: [(av, t) for t in dma(g4, f, 10) + [setmk(k)]]
    seq = X_(U4, Cfg.xa4) + D_(160, 3, 0) + X_(max(U4, Cfg.xa4), Cfg.xb4) + D_(200, 7, 1) + X_(Cfg.xb4, 24)
    plan4 = edf(seq, Cfg.r4, 24)
    if Cfg.show: print({k: [t if isinstance(t, int) else 'd' for t in L if isinstance(t, int) or (isinstance(t, str) and t.startswith('buffer'))] for k, L in plan4.items()})
    ex = {}
    def wb(k):
        def f(): p.wait_vm(mk[k]); p('s_barrier')
        return f
    bar = lambda: p('s_barrier')
    WB4 = 36; TX = 104
    bf = hop(4, 19, 's63', F4, su5)
    mainloop(p, 24, 5, mfk((HX, 16), WB4, xs4), wreads(g4, WB4, 10, 2), xs4, Cfg.U4, bf, ex, None, {3: bar, 7: bar, 14: wb(0), 18: wb(1)}, Cfg.st4, plan4)
    stamp(p, 21)
    emit(p, exch(9, 10, HX, 16))
    O = 128
    for pr in range(2):
        o = O + 4 * pr
        for h_ in range(2):
            A = HX + 4 * (2 * pr + h_)
            p(f'v_cvt_pk_bf16_f32 v{o + 2 * h_}, v{A}, v{A + 1}\nv_cvt_pk_bf16_f32 v{o + 2 * h_ + 1}, v{A + 2}, v{A + 3}')
        p(f'v_permlane16_swap_b32 v{o}, v{o + 2}\nv_permlane16_swap_b32 v{o + 1}, v{o + 3}')
        p(f'buffer_store_dwordx4 {v(o, 4)}, v5, s[8:11], s32 offen offset:{64 * pr}{Cfg.osc}')
    A = HX + 16
    p(f'v_cvt_pk_bf16_f32 v{O + 8}, v{A}, v{A + 1}\nv_cvt_pk_bf16_f32 v{O + 9}, v{A + 2}, v{A + 3}')
    p(f'buffer_store_dwordx2 {v(O + 8, 2)}, v6, s[8:11], s32 offen offset:128{Cfg.osc}')
    if dbg:
        p('s_waitcnt vmcnt(0)')
        p(f's_sub_u32 s61, {Cfg.spin}, s61\nv_writelane_b32 v255, s61, 28')
        stamp(p, 22)
        p('s_memtime s[98:99]\ns_waitcnt lgkmcnt(0)\nv_writelane_b32 v255, s98, 31')
        p(f'''
        s_lshl_b32 s29, s2, 2
        s_add_u32 s29, s29, s3
        s_lshl_b32 s29, s29, 7
        s_add_u32 s29, s29, {DBGW}
        v_lshlrev_b32 v2, 2, v0
        s_mov_b32 exec_hi, 0
        buffer_store_dword v255, v2, s[4:7], s29 offen
        ''')
    p('k_end:\ns_endpgm')
    helper(p)
    emit(p, STUBS)
    p('@code_end:')
    return p

if __name__ == '__main__':
    import sys
    from build import HDR
    out = sys.argv[1]; dbg = 'dbg' in sys.argv[2:]
    for a_ in sys.argv[2:]:
        if '=' in a_:
            k_, v_ = a_.split('='); setattr(Cfg, k_, eval(v_))
    name = 'pers_kernel' if 'list' in sys.argv[2:] else NAME
    Cfg.kname = name
    open(out, 'w').write(file_text([(name, build(dbg), 256, 320, LDSZ)], HDR))
```

```python
import kern
from kern import *
kern.SC = ' sc1'
SC = ' sc1'
LDSZ = 163840
F0, F1, F2, F3, F4, EPW = [FLG + 65536 * k for k in range(6)]
NAME = 'sequential_preLN__ssm_conv_s4d__mixer_s_mlp__prompt_kernel'
FB, UC, RC = 0, 69632, 103040
CHY = 8512
XP, SR = 208, 224
XL = 122880
MF = 'v_mfma_f32_16x16x32_bf16'

TAG = 's_mul_i32 s60, s60, 0x9e3779b1\ns_add_u32 s60, s60, 0x7f4a7c15'
class Cfg:
    stamp = False
    spin = 0x10000
    inj = 0.72
    U1 = 6; U2 = 7; U3 = 8; U4 = 10
    pf = False
    warm = False
    FS = 7
    pw = 1
    own = True
    jc = 4
    m3 = 15
    slp = 0
    early = True
    w3 = 0.3
    fast = None
    fast1 = None
    osc = ''
    st3 = {}; st4 = {}
    R4 = 14; n4 = 0; e4a = 0.6; e4b = 0.95; xa4 = 14; xb4 = 18; r4 = 2.8; show = False
    h3c = 1
    ko4 = True
    ack4 = False
    daf = (1, 2, 3)
    cq0 = True; pb64 = True
    wfd = 3
    ipf = True; xdef = True; xh = True; pfw = 2; ob = True; pf3 = False; pf34 = 32; jl = 3; bw1 = True; hld = True; hx2 = 64; hq0 = 0; hb2 = 0; nopois = False; xrot = True; kname = NAME
    cf0 = 24
    hx = 16; hdl = 0
    c0 = 52; i2a = 0.1; i2b = 0.8
    ack = True
    sslp = 0
    jf = 7
    e3 = 15

def stamp(p, i):
    if Cfg.stamp:
        p(f's_memrealtime s[98:99]\ns_waitcnt lgkmcnt(0)\nv_writelane_b32 v255, s98, {i}')

def flag_store(p, lab, pairs, R=252, sc=' sc1'):
    p(f's_cmp_lg_u32 s3, 0\ns_cbranch_scc1 {lab}_np\nv_mov_b32 v{R}, s60\nv_mov_b32 v{R + 1}, 0\ns_mov_b64 exec, 1')
    for sidx, base in pairs:
        p(f's_lshl_b32 s56, {sidx}, {Cfg.FS}\ns_add_u32 s56, s56, {base}\nbuffer_store_dword v{R}, v{R + 1}, s[4:7], s56 offen{sc}')
    p(f's_mov_b64 exec, -1\n{lab}_np:')

def publish(p, sidx, base, lab, m=None, pf=None, sc=' sc1'):
    if m is None: p('s_waitcnt vmcnt(0)')
    else: p.wait_vm(m)
    if pf and Cfg.pf: p(pf)
    p('s_barrier')
    flag_store(p, lab, [(sidx, base)], 252, sc)

def spin(p, lab, width, R):
    sfx = {1: 'dword', 2: 'dwordx2', 4: 'dwordx4'}[width]
    p(f's_mov_b64 exec, s[58:59]\ns_mov_b32 s61, {Cfg.spin}\n{lab}_loop:')
    p(f'buffer_load_{sfx} {v(R, width)}, v253, s[4:7], s56 offen sc1\ns_waitcnt vmcnt(0)')
    for k in range(width): p(f'v_xor_b32 v{R + k}, s60, v{R + k}')
    if width == 2: p(f'v_or_b32 v{R}, v{R}, v{R + 1}')
    if width == 4: p(f'v_or3_b32 v{R}, v{R}, v{R + 1}, v{R + 2}\nv_or_b32 v{R}, v{R}, v{R + 3}')
    p(f'''
    v_cmp_ne_u32 vcc, 0, v{R}
    s_sub_u32 s61, s61, 1
    s_cbranch_scc1 {lab}_out
    s_cbranch_vccz {lab}_out
    {f's_sleep {Cfg.slp}' if Cfg.slp else ''}
    s_branch {lab}_loop
    {lab}_out:
    s_mov_b64 exec, -1
    ''')

def poll(p, lab, setup, every=False, own=None):
    if not every: p(f's_cmp_lg_u32 s3, {Cfg.pw}\ns_cbranch_scc1 {lab}_skip')
    setup()
    if own and Cfg.own:
        p(f's_cmp_lt_u32 {own}, 64\ns_cselect_b32 s57, 1, 0\ns_mov_b32 s61, 0\ns_and_b32 {own}, {own}, 63\ns_mov_b32 s96, s57\ns_mov_b32 s97, 0\ns_lshl_b64 s[96:97], s[96:97], {own}\ns_andn2_b64 s[58:59], s[58:59], s[96:97]')
    spin(p, lab, 1, 254)
    p(f'{lab}_skip:\ns_waitcnt vmcnt(0)\ns_barrier')

class PG:
    def __init__(self, NT, NS, WF, sJ, base):
        self.NT, self.NS, self.WF, self.sJ, self.base = NT, NS, WF, sJ, base

def dma(g, first, n, sr='s[4:7]'):
    slot = (g.base + first) % 160
    assert slot + 4 * n <= 160
    L = [f's_mul_i32 s54, s{g.sJ}, {g.NS * g.NT}', f's_mul_i32 s55, s3, {n}', 's_add_u32 s54, s54, s55', f's_add_u32 s55, s55, {slot}',
         's_lshl_b32 s54, s54, 10', 's_lshl_b32 m0, s55, 10', f's_add_u32 s54, s54, {g.WF + first * 1024}']
    for k in range(n):
        if k and k % 4 == 0: L += ['s_add_u32 m0, m0, 4096', 's_add_u32 s54, s54, 4096']
        L.append(f'buffer_load_dwordx4 v1, {sr}, s54 offen offset:{1024 * (k & 3)}{SC} lds')
    return L

def emit(p, L):
    for t in L: p(t)

def spread(L, steps):
    d = {}
    for k, s_ in enumerate(steps):
        d[s_] = L[len(L) * k // len(steps): len(L) * (k + 1) // len(steps)]
    return d

def weave(code, fill, lo=0.0, hi=1.0):
    n = len(code); a_, b_ = int(n * lo), int(n * hi); out = list(code[:a_]); k = 0
    for i in range(a_, b_):
        out.append(code[i])
        e = len(fill) * (i - a_ + 1) // (b_ - a_)
        out += fill[k:e]; k = e
    return out + list(code[b_:])

STUBS = []
CT = 250
class XS:
    def __init__(self, lab, reg, addr, run, R=99):
        self.lab, self.reg, self.addr, self.run, self.R = lab, reg, addr, run, R
        self.issued = []; self.marks = {}
        self.cur = {b: 0 for b in run}
    def init(self): return [f's_mov_b32 s{r}, s{b}' for b, r in self.run.items()]
    def main(self, i):
        L = []; Q = []
        for h, (vo, b, off) in enumerate(self.addr(i)):
            k = off >> 12
            if k != self.cur[b]:
                L.append(f's_add_u32 s{self.run[b]}, s{b}, {4096 * k}'); self.cur[b] = k
            Q.append(f'buffer_load_dwordx4 {v(self.reg(i) + 4 * h, 4)}, v{vo}, s[4:7], s{self.run[b]} offen offset:{off & 4095}{SC}')
        return L + Q
    def abs(self, i):
        L = []
        for h, (vo, b, off) in enumerate(self.addr(i)):
            L += [f's_add_u32 s57, s{b}, {off & ~4095}',
                  f'buffer_load_dwordx4 {v(self.reg(i) + 4 * h, 4)}, v{vo}, s[4:7], s57 offen offset:{off & 4095}{SC}']
        return L

def chk(x):
    return [f'v_max3_u32 v{CT}, v{x}, v{x + 1}, v{x + 2}', f'v_max3_u32 v{CT + 1}, v{x + 3}, v{x + 4}, v{x + 5}',
            f'v_max3_u32 v{CT}, v{CT}, v{x + 6}, v{x + 7}', f'v_max_u32 v{CT}, v{CT}, v{CT + 1}', f'v_cmp_eq_u32 vcc, -1, v{CT}']

def stub(lab, ents):
    L = [f'{lab}:', 's_waitcnt vmcnt(0)', 's_cmp_eq_u32 s61, 0', f's_cbranch_scc1 {lab}_b', 's_sub_u32 s61, s61, 1']
    if Cfg.sslp: L.append(f's_sleep {Cfg.sslp}')
    L += ents[0][1]
    for k, (x, rl) in enumerate(ents[1:]):
        L += chk(x) + [f's_cbranch_vccz {lab}_s{k}'] + rl + [f'{lab}_s{k}:']
    L += ['s_waitcnt vmcnt(0)'] + chk(ents[0][0]) + [f's_cbranch_vccnz {lab}', f's_branch {lab}_b']
    STUBS.extend('@' + t for t in L)
    return [f'@s_cbranch_vccnz {lab}\n@{lab}_b:']

def xitems(p, xs, j):
    x = xs.main(j); xs.issued.append(j)
    def last():
        p(x[-1]); xs.marks[j] = p.mark()
    last.t = x[-1]
    return x[:-1] + [last]

def emitx(p, L):
    for t in L:
        if callable(t): t()
        else: p(t)

def edf(seq, rate, n):
    plan = {i: [] for i in range(n)}; i = 0; credit = rate
    for av, it in seq:
        c = 2 if isinstance(it, int) else (1 if isinstance(it, str) and it.startswith('buffer') else 0)
        while i < n - 1 and (av > i or credit < c - 0.999):
            i += 1; credit = min(credit, 1) + rate
        plan[i].append(it); credit -= c
    return plan

def mainloop(p, n, NT, mf, wr, xs, U, bar, extra={}, pre=None, sync={}, st={}, plan=None):
    marks = xs.marks
    ck = bar is not None
    if plan is None: plan = {i: [i + U] for i in range(n - U)}
    if not ck: emit(p, wr(0) + wr(1))
    if not xs.issued: emit(p, xs.init())
    for i in range(len(xs.issued), min(U, n)): emitx(p, xitems(p, xs, i))
    if ck:
        bar()
        emit(p, wr(0) + wr(1))
    win = lambda i: stub(f'{xs.lab}{i}', [(xs.reg(j), xs.abs(j)) for j in xs.issued if j >= i])
    if ck: p.wait_vm(marks[0]); emit(p, chk(xs.reg(0)) + win(0))
    if pre: emit(p, pre(0))
    for i in range(n):
        if ck: p(f's_waitcnt lgkmcnt({NT if i + 1 < n else 0})')
        else: p.wait_vm(marks[i], NT if i + 1 < n else 0)
        if i in sync: sync[i]()
        if i in st: stamp(p, st[i])
        fill = list(wr(i + 2) if i + 2 < n else [])
        for it in plan.get(i, []):
            if isinstance(it, int):
                assert it - xs.R < i, (it, i)
                fill += xitems(p, xs, it)
            else: fill.append(it)
        fill += extra.get(i, [])
        M = mf(i); G_ = len(M) - (5 if pre else 4) if (ck and i + 1 < n) else len(M); k = 0
        c = chk(xs.reg(i + 1)) if i + 1 < n else []
        for gi, m_ in enumerate(M):
            p(m_)
            if gi < G_:
                e = -(-len(fill) * (gi + 1) // G_)
                emitx(p, fill[k:e]); k = e
            elif gi == G_: p.wait_vm(marks[i + 1]); emit(p, c[0:2])
            elif gi == G_ + 1: emit(p, c[2:4])
            elif gi == G_ + 2: emit(p, c[4:])
            elif gi == G_ + 3:
                emit(p, win(i + 1))
                if pre: emit(p, pre(i + 1))

UNIT = """
s_sub_u32 s20, s2, 180
s_and_b32 s21, s20, 7
s_mul_i32 s21, s21, 3
s_lshr_b32 s22, s20, 3
s_add_u32 s21, s21, s22
s_cmp_lt_u32 s20, 24
s_cselect_b32 s20, s21, s20
s_add_u32 s20, s20, 20
s_lshl_b32 s20, s20, 1
s_mov_b32 s22, 0
"""
def helper(p):
    assert Cfg.daf == (1, 2, 3)
    tot = (H3F - H1F) // 1024; x = Cfg.hx2
    y = -(-(tot - 22 * x) // 160)
    assert H1F + (160 * y + 22 * x) * 1024 <= W1F
    p('helper:')
    if Cfg.ipf:
        p(f'''
        @s_getpc_b64 s[30:31]
        @hlp_pc:
        s_sub_u32 s30, s30, hlp_pc-{Cfg.kname}
        s_subb_u32 s31, s31, 0
        s_lshr_b32 s28, s2, 3
        s_lshl_b32 s28, s28, 11
        v_lshl_add_u32 v8, v0, 4, s28
        v_add_u32 v9, 1024, v8
        v_min_u32 v8, code_end-{Cfg.kname}-16, v8
        v_min_u32 v9, code_end-{Cfg.kname}-16, v9
        @s_nop 0
        @global_load_dwordx4 v[12:15], v8, s[30:31]
        @global_load_dwordx4 v[16:19], v9, s[30:31]
        ''')
    for k in range(4): p(f'v_mov_b32 v{4 + k}, -1')
    p(f'''
    v_lshlrev_b32 v1, 4, v0
    s_cmp_ge_u32 s2, 160
    s_cbranch_scc1 hlp_b
    s_add_u32 s56, s92, {EPW}
    s_addc_u32 s57, s93, 0
    s_load_dword s60, s[56:57], 0
    s_and_b32 s50, s2, 7
    s_mul_i32 s50, s50, 20
    s_lshr_b32 s51, s2, 3
    s_add_u32 s50, s50, s51
    v_lshrrev_b32 v3, 4, v0
    v_mul_u32_u24 v3, 40960, v3
    v_and_b32 v2, 15, v0
    v_lshl_add_u32 v3, v2, 4, v3
    s_lshl_b32 s28, s50, 8
    s_add_u32 s28, s28, {HQ}
    ''')
    HS = [f'buffer_store_dwordx4 v[4:7], v3, s[4:7], s28 offen{SC}\ns_add_u32 s28, s28, {4 * 40960}' for k in range(16)]
    emit(p, HS[:Cfg.hq0])
    if Cfg.ob: p('s_barrier')
    if Cfg.hdl: p(f's_sleep {Cfg.hdl}')
    srd(p, 44, 'x', 2048 * 1280)
    p('v_mul_u32_u24 v2, 2560, v0\ns_lshl_b32 s42, s50, 3')
    p('''
    s_sub_u32 s36, s50, s51
    s_and_b32 s37, s50, 0xf0
    s_max_u32 s38, s36, s37
    s_add_u32 s36, s36, 20
    s_add_u32 s37, s37, 16
    s_min_u32 s36, s36, s37
    s_sub_u32 s36, s36, s38
    s_sub_u32 s51, s50, s38
    s_cmp_eq_u32 s36, 12
    s_cselect_b32 s37, 43, 32
    s_cmp_eq_u32 s36, 8
    s_cselect_b32 s37, 64, s37
    s_cmp_eq_u32 s36, 4
    s_cselect_b32 s37, 128, s37
    s_mul_i32 s51, s51, s37
    s_lshr_b32 s51, s51, 5
    ''')
    for k in range(16):
        p(f's_add_u32 s43, s51, {k}\ns_and_b32 s43, s43, 15\ns_mul_i32 s43, s43, {128 * 1280}\ns_add_u32 s43, s43, s42')
        p(f'buffer_load_dwordx2 {v(32 + 4 * k, 2)}, v2, s[44:47], s43 offen')
        p(f'buffer_load_dwordx2 {v(32 + 4 * k + 2, 2)}, v2, s[44:47], s43 offen offset:1280')
    SL = []
    for k in range(16):
        if k % 4 == 0: SL.append(f's_mov_b32 s42, {STAT + 1024 * k}')
        SL.append(f'buffer_load_dwordx4 {v(96 + 4 * k, 4)}, v1, s[4:7], s42 offen offset:{1024 * (k & 3)}{SC}')
    p('s_waitcnt lgkmcnt(0)')
    p(TAG)
    emit(p, SL)
    for k in range(16):
        p(f's_add_u32 s43, s51, {k}\ns_and_b32 s43, s43, 15\ns_lshl_b32 s43, s43, 10\ns_add_u32 s43, s43, {XL}\nv_add_u32 v{8 + (k & 3)}, s43, v1')
        p(f'ds_write_b128 v{8 + (k & 3)}, {v(32 + 4 * k, 4)}')
    if Cfg.stamp: p('s_memrealtime s[96:97]')
    p(f's_mov_b32 s61, {Cfg.spin}\nv_add_u32 v8, {XL + 16384}, v1\nsa_loop:\nv_mov_b32 v9, 0')
    for k in range(16):
        p(f'v_xor_b32 v{97 + 4 * k}, s60, v{97 + 4 * k}\nv_xor_b32 v{99 + 4 * k}, s60, v{99 + 4 * k}\nv_or3_b32 v9, v9, v{97 + 4 * k}, v{99 + 4 * k}')
        p(f'ds_write_b128 v8, {v(96 + 4 * k, 4)} offset:{1024 * k}')
    p(f'''
    v_cmp_ne_u32 vcc, 0, v9
    s_cbranch_vccz sa_out
    s_sub_u32 s61, s61, 1
    s_cbranch_scc1 sa_out
    s_waitcnt lgkmcnt(0)
    ''')
    emit(p, SL)
    p('s_branch sa_loop\nsa_out:\ns_waitcnt lgkmcnt(0)\ns_barrier')
    emit(p, HS[Cfg.hq0:])
    p(f's_mul_i32 s28, s2, {y * 1024}\ns_add_u32 s28, s28, {H1F}')
    for k in range(y):
        if k and k % 4 == 0: p('s_add_u32 s28, s28, 4096')
        p(f'buffer_store_dwordx4 v[4:7], v1, s[4:7], s28 offen offset:{1024 * (k & 3)}{SC}')
        if k == y - 1 - Cfg.hb2: p('s_barrier')
    p(f'''
    s_lshl_b32 s56, s2, {Cfg.FS}
    s_add_u32 s56, s56, {F1}
    v_mov_b32 v8, s60
    v_mov_b32 v9, 0
    s_mov_b64 exec, 1
    s_waitcnt vmcnt(0)
    buffer_store_dword v8, v9, s[4:7], s56 offen{SC}
    s_mov_b64 exec, -1
    s_branch hlp_end
    hlp_b:
    s_cmp_ge_u32 s2, 234
    s_cbranch_scc1 hlp_end
    s_cmp_lt_u32 s2, 192
    s_cbranch_scc1 hlp_l
    {'s_barrier' if Cfg.ob else ''}
    ''')
    if Cfg.hld:
        p('hlp_l:' + UNIT + 's_mov_b32 s3, 0\nhlp_lw:')
        relayout2(p, 'la', 0)
        p('s_add_u32 s3, s3, 1\ns_cmp_lt_u32 s3, 4\ns_cbranch_scc1 hlp_lw')
    p('hlp_end:\ns_waitcnt vmcnt(0)')
    if Cfg.stamp:
        p(f's_memrealtime s[98:99]\ns_lshl_b32 s28, s2, 2\ns_add_u32 s28, s28, {DBGW + 0x20000}\nv_mov_b32 v2, 0\ns_waitcnt lgkmcnt(0)\nv_mov_b32 v3, s98\nbuffer_store_dword v3, v2, s[4:7], s28 offen\nv_mov_b32 v3, s96\nbuffer_store_dword v3, v2, s[4:7], s28 offen offset:1024')
    p('s_endpgm')

F1L = ['v_lshlrev_b32 v244, %d, v0' % Cfg.FS, f's_lshl_b32 s57, s3, {6 + Cfg.FS}', f's_add_u32 s57, s57, {F1}',
       f'buffer_load_dword v240, v244, s[4:7], s57 offen{SC}']
CW = 65536

def kgen2(p, inject, inject2):
    ACC = 24; FR = 40; Lr = 104; T = 136
    p(f'''
    s_mul_i32 s26, s3, 17408
    s_mov_b32 m0, s26
    v_and_b32 v3, 31, v0
    v_mul_u32_u24 v3, 272, v3
    v_lshrrev_b32 v4, 5, v0
    v_lshl_add_u32 v3, v4, 4, v3
    v_add_u32 v3, s26, v3
    v_mov_b32 v4, 0x3f80
    ds_write_addtid_b32 v4
    s_mul_i32 s27, s3, 4608
    s_add_u32 s27, s27, {RC}
    v_lshlrev_b32 v5, 3, v0
    v_add_u32 v5, s27, v5
    v_mov_b32 v6, 0
    v_mov_b32 v7, 0
    ds_write_b64 v5, v[6:7]
    s_mov_b32 s36, {f2u(LOG2E)}
    s_mov_b32 s37, {f2u(1 / (2 * math.pi))}
    s_mov_b32 s38, 0x41000000
    s_mov_b32 s39, 0x43800000
    v_mul_f32 v20, s36, v20
    v_exp_f32 v20, v20
    v_cvt_pk_bf16_f32 v20, v20, v20
    v_lshlrev_b32 v20, 16, v20
    v_add_f32 v22, v20, v20
    v_cmp_eq_u32 vcc, 0, v0
    v_cndmask_b32 v21, 0, v21, vcc
    ''')
    code = []; tp = [T]
    def new(n=2):
        r = tp[0]; tp[0] += n; return r
    cv = [0]; CV = 240
    def put(val, rows, neg):
        r = CV + (cv[0] % 12); cv[0] += 1
        code.append(f'v_cvt_pk_bf16_f32 v{r}, v{val}, {"-" if neg else ""}v{val + 1}')
        for row in rows: code.append(f'ds_write_addtid_b32 v{r} offset:{272 * row}')
    for st in range(3):
        tp[0] = T
        la, ai, cr, ci = [8 + 4 * st + k for k in range(4)]
        E1, E256, G0 = new(), new(), new()
        E8 = Lr
        t = new(10)
        code += [f'v_mul_f32 v{la}, s36, v{la}', f'v_exp_f32 v{la}, v{la}', f'v_cvt_pk_bf16_f32 v{la}, v{la}, v{la}',
                 f'v_lshlrev_b32 v{la}, 16, v{la}', f'v_mul_f32 v{la}, v{la}, v20', f'v_mul_f32 v{la}, -v{la}, s36',
                 f'v_mul_f32 v{ai}, v{ai}, v20', f'v_mul_f32 v{ai}, s37, v{ai}',
                 f'v_mul_f32 v{G0}, v{cr}, v22', f'v_mul_f32 v{G0 + 1}, v{ci}, v22']
        for k, (E, sc) in enumerate(((E8, 's38'), (E1, None), (E256, 's39'))):
            m_, a_ = t + 3 * k, t + 3 * k + 1
            if sc:
                code += [f'v_mul_f32 v{m_}, {sc}, v{la}', f'v_mul_f32 v{a_}, {sc}, v{ai}', f'v_exp_f32 v{m_}, v{m_}', f'v_fract_f32 v{a_}, v{a_}']
            else:
                code += [f'v_exp_f32 v{m_}, v{la}', f'v_fract_f32 v{a_}, v{ai}']
            code += [f'v_cos_f32 v{E}, v{a_}', f'v_sin_f32 v{E + 1}, v{a_}',
                     f'v_mul_f32 v{E}, v{E}, v{m_}', f'v_mul_f32 v{E + 1}, v{E + 1}, v{m_}']
        Lx = lambda j: Lr + 2 * (j - 1)
        put(E8, [1], False)
        put(G0, [32 + r for r in HROW[0]], True)
        tmp = [new() for _ in range(6)]; ti = [0]
        def nt():
            r = tmp[ti[0] % len(tmp)]; ti[0] += 1; return r
        E2, E4 = new(), new()
        G = {0: G0}
        hi = [(E2, E1, E1, None), (E4, E2, E2, None)]
        HL = ((1, 0, E1), (2, 0, E2), (3, 1, E2), (4, 0, E4), (5, 1, E4), (6, 2, E4), (7, 3, E4), (8, 0, E8),
              (256, 0, E256), (264, 8, E256), (258, 2, E256), (260, 4, E256), (262, 6, E256),
              (512, 256, E256), (520, 264, E256), (516, 260, E256), (768, 512, E256), (776, 520, E256), (772, 516, E256),
              (1024, 768, E256), (1032, 776, E256), (1280, 1024, E256), (1288, 1032, E256),
              (1536, 1280, E256), (1544, 1288, E256), (1792, 1536, E256), (1800, 1544, E256))
        used = {a_ for _, a_, _ in HL}
        for h_, a_, b_ in HL:
            G[h_] = new() if h_ in used else None
            hi.append((G[h_], G[a_], b_, h_))
        lo = []
        for j in range(2, 32):
            pw = 1 << (j.bit_length() - 1)
            a_, b_ = (pw // 2, pw // 2) if j == pw else (j - pw, pw)
            lo.append((Lx(j) if j <= 16 else None, Lx(a_), Lx(b_), j))
        for k in range(max(len(lo), len(hi))):
            if k < len(lo):
                D_, X_, Y_, j = lo[k]; D_ = nt() if D_ is None else D_
                code += cmul(D_, X_, Y_); put(D_, [j], False)
            if k < len(hi):
                D_, X_, Y_, h_ = hi[k]; D_ = nt() if D_ is None else D_
                code += cmul(D_, X_, Y_)
                if h_ in HROW: put(D_, [32 + r for r in HROW[h_]], True)
        assert tp[0] <= XP, tp[0]
        for m in range(8):
            code.append(f'ds_read_b128 {v(FR + 4 * m, 4)}, v3 offset:{32 * 272 + 32 * m}')
            code.append(f'ds_read_b128 {v(FR + 32 + 4 * m, 4)}, v3 offset:{32 * m}')
        for m in range(8):
            c = '0' if (st == 0 and m == 0) else v(ACC, 16)
            code.append(f'v_mfma_f32_32x32x16_bf16 {v(ACC, 16)}, {v(FR + 4 * m, 4)}, {v(FR + 32 + 4 * m, 4)}, {c}')
    S = sched(code)
    k = int(len(S) * Cfg.inj)
    W_ = weave(S[:k], inject2, Cfg.i2a, Cfg.i2b)
    if Cfg.stamp:
        emit(p, W_[:12]); stamp(p, 25); emit(p, W_[12:len(W_) // 2]); stamp(p, 26); W_ = W_[len(W_) // 2:]
    emit(p, W_ + inject + S[k:])
    q = lambda i: f'v{ACC + i}'
    O = FR
    p(f'''
    v_lshlrev_b32 v5, 4, v0
    v_add_u32 v5, s27, v5
    v_lshrrev_b32 v6, 5, v0
    v_lshl_add_u32 v6, v6, 9, v5
    s_mov_b32 s40, 0xaaaaaaaa
    s_mov_b32 s41, 0xaaaaaaaa
    v_add_f32 {q(0)}, {q(0)}, v21
    v_cvt_pk_bf16_f32 v{O}, {q(7)}, {q(6)}
    v_cvt_pk_bf16_f32 v{O + 1}, {q(5)}, {q(4)}
    v_cvt_pk_bf16_f32 v{O + 2}, {q(3)}, {q(2)}
    v_cvt_pk_bf16_f32 v{O + 3}, {q(1)}, {q(0)}
    ds_write_b128 v5, {v(O, 4)} offset:512
    v_cvt_pk_bf16_f32 v{O + 4}, {q(14)}, {q(14)}
    v_cvt_pk_bf16_f32 v{O + 5}, {q(13)}, {q(13)}
    v_cvt_pk_bf16_f32 v{O + 6}, {q(13)}, {q(12)}
    v_cvt_pk_bf16_f32 v{O + 7}, {q(12)}, {q(12)}
    ds_write_b128 v5, {v(O + 4, 4)} offset:{96 * 16}
    ''')
    for k in range(2):
        a_, b_ = q(8 + 2 * k), q(9 + 2 * k); o = O + 8 + 4 * k
        p(f'''
        v_cndmask_b32 v7, {a_}, {b_}, s[40:41]
        v_cvt_pk_bf16_f32 v{o}, {b_}, {b_}
        v_cvt_pk_bf16_f32 v{o + 1}, {b_}, v7
        v_cvt_pk_bf16_f32 v{o + 2}, {a_}, {a_}
        v_mov_b32 v{o + 3}, v{o + 2}
        ds_write_b128 v6, {v(o, 4)} offset:{160 * 16 + 512 * k}
        ''')

def normalize(p):
    M0 = 40960
    p(f'''
    s_lshl_b32 s46, s3, 10
    s_add_u32 m0, s46, {M0}
    s_add_u32 s46, s46, {UC + 4160 + 30}
    v_lshl_add_u32 v8, v0, 2, s46
    s_mov_b32 s48, 0xffff0000
    ''')
    code = []
    for k in range(4):
        B = 64 + 32 * (k & 1)
        for pp in range(2):
            ms = SR + 4 * k + 2 * pp; rn = B + 16 + 2 * pp; F = B + 4 * pp; x = XP + 4 * k + 2 * pp
            code += [f'v_and_b32 v{rn}, s48, v{ms}', f'v_rcp_f32 v{rn}, v{rn}', f'v_lshlrev_b32 v{ms}, 16, v{ms}',
                     f'v_mul_f32 v{rn + 1}, -v{ms}, v{rn}'] + unpack(F, x, 48) + unpack(F + 2, x + 1, 48)
            for h_ in range(2):
                code.append(f'v_pk_fma_f32 {v(F + 2 * h_, 2)}, {v(F + 2 * h_, 2)}, {v(rn, 2)}, {v(rn, 2)} op_sel:[0,0,1] op_sel_hi:[1,0,1]')
        for c in range(4):
            E = B + 8 + c
            code += [f'v_cvt_pk_bf16_f32 v{E}, v{B + c}, v{B + 4 + c}',
                     f'ds_write_addtid_b32 v{E} offset:{UC + 32 - M0 + c * CHS + 256 * k}',
                     f'ds_write_b16 v8, v{E} offset:{c * CHS + 256 * k}',
                     f'ds_write_b16_d16_hi v8, v{E} offset:{c * CHS + 256 * k + 2}']
    emit(p, sched(code))

def conv2(p, fill):
    ACC = 24; KF = [56, 88]; UF = [120, 152]
    p(f'''
    v_and_b32 v8, 15, v0
    v_lshrrev_b32 v9, 4, v0
    v_and_b32 v10, 1, v0
    v_mul_u32_u24 v10, 4158, v10
    v_lshlrev_b32 v11, 1, v8
    v_sub_u32 v11, v11, v10
    v_lshl_add_u32 v11, v9, 4, v11
    s_mul_i32 s46, s3, {CHS}
    s_add_u32 s47, s46, {UC + 4160}
    v_add_u32 v11, s47, v11
    v_add_u32 v12, 1024, v11
    v_add_u32 v13, 2048, v11
    v_add_u32 v14, 3072, v11
    v_lshlrev_b32 v15, 5, v8
    v_lshlrev_b32 v16, 4, v9
    v_sub_u32 v15, v15, v16
    s_mul_i32 s47, s3, 4608
    s_add_u32 s47, s47, {RC + 16 + 512 - 448}
    v_add_u32 v15, s47, v15
    s_waitcnt lgkmcnt(0)
    s_barrier
    ''')
    if not Cfg.xh: flag_store(p, 'pba', [('s2', F1)], 245)
    stamp(p, 4)
    def loads(j0):
        b = j0 & 1; out = []
        kf = lambda d: f'ds_read_b128 {v(KF[b] + 4 * d, 4)}, v15 offset:{512 * d - 64 * j0 + 448}'
        out.append(kf(0))
        for jp in range(8):
            o = 128 * (jp & 1) + 16 * j0
            out.append(f'ds_read2_b32 {v(UF[b] + 4 * jp, 2)}, v{11 + (jp >> 1)} offset0:{o} offset1:{o + 1}')
            out.append(f'ds_read2_b32 {v(UF[b] + 4 * jp + 2, 2)}, v{11 + (jp >> 1)} offset0:{o + 2} offset1:{o + 3}')
        out += [kf(d) for d in range(1, 8)]
        return out
    emit(p, loads(0))
    p(f'''
    v_lshlrev_b32 v16, 2, v9
    v_lshl_add_u32 v16, v8, 4, v16
    s_mul_i32 s47, s3, {CHY}
    s_add_u32 s47, s47, {UC}
    v_add_u32 v16, s47, v16
    v_bfe_u32 v17, v0, 2, 2
    v_mul_u32_u24 v17, {CHY}, v17
    v_and_b32 v18, 3, v0
    v_lshl_add_u32 v17, v18, 3, v17
    v_lshl_add_u32 v17, v9, 5, v17
    s_lshl_b32 s47, s3, 10
    s_add_u32 s47, s47, {UC}
    v_add_u32 v17, s47, v17
    v_mul_u32_u24 v18, 40960, v9
    v_lshl_add_u32 v18, v8, 4, v18
    s_mul_i32 s44, s3, {16 * 40960}
    s_lshl_b32 s45, s50, 8
    s_add_u32 s44, s44, s45
    s_add_u32 s44, s44, {HQ}
    ''')
    order = []
    for d in range(8):
        Is = list(range(d, 8))
        if d == 5: Is = [7, 5, 6]
        if d == 6: Is = [7, 6]
        order += [(I, d) for I in Is]
    F = spread(fill, range(Cfg.jc, 8))
    for j0 in range(8):
        b = j0 & 1
        nx = loads(j0 + 1) if j0 < 7 else []
        if j0: p('s_waitcnt lgkmcnt(0)')
        if j0 == Cfg.jc:
            p('''
            v_cmp_ne_u32 vcc, s60, v253
            s_mov_b32 s8, s4
            s_mov_b32 s9, s5
            s_mov_b32 s11, s7
            s_cmp_eq_u64 vcc, 0
            s_cselect_b32 s10, s6, 0
            ''')
        fl = (F1L if j0 == Cfg.jf else []) + F.get(j0, []); k0 = 0
        if j0 == Cfg.jl: p(f'buffer_load_dword v253, v253, s[4:7], s49 offen{SC}')
        for k, (I, d) in enumerate(order):
            c = v(ACC + 4 * I, 4)
            src = '0' if (j0 == 0 and d == 0) else c
            p(f'{MF} {c}, {v(UF[b] + 4 * (I - d), 4)}, {v(KF[b] + 4 * d, 4)}, {src}')
            if k < len(nx): p(nx[k])
            if k >= Cfg.cf0:
                e = len(fl) * (k - Cfg.cf0 + 1) // (36 - Cfg.cf0)
                emit(p, fl[k0:e]); k0 = e
    stamp(p, 5)
    for I in (0, 1, 2, 3, 4, 5, 6, 7):
        o = 56 + 2 * I
        p(f'v_cvt_pk_bf16_f32 v{o}, v{ACC + 4 * I}, v{ACC + 4 * I + 2}')
        p(f'v_cvt_pk_bf16_f32 v{o + 1}, v{ACC + 4 * I + 1}, v{ACC + 4 * I + 3}')
        p(f'ds_write2st64_b32 v16, v{o}, v{o + 1} offset0:{2 * I} offset1:{2 * I + 1}')
    U_ = 128
    for r in range(16): emit(p, unpack(U_ + 2 * r, XP + r, 48))
    p(f'''
    s_lshl_b32 s57, s3, 2
    s_add_u32 s57, s57, {CW}
    v_mov_b32 v242, s57
    v_mov_b32 v243, {CW}
    v_cmp_ne_u32 vcc, s60, v240
    s_cmp_eq_u32 s10, 0
    s_cselect_b32 s57, 1, vcc_lo
    s_or_b32 s57, s57, vcc_hi
    v_mov_b32 v241, s57
    ds_write_b32 v242, v241
    s_waitcnt lgkmcnt(0)
    s_barrier
    ds_read_b128 v[240:243], v243
    ''')
    Y = 72
    for k in range(4):
        for pp in range(2):
            p(f'ds_read_b64_tr_b16 {v(Y + 4 * k + 2 * pp, 2)}, v17 offset:{512 * (k >> 1) + 256 * pp + 128 * (k & 1)}')
    code = []
    for k in range(4):
        for r in range(4 * k, 4 * k + 4):
            t = 96 + 2 * r
            code += unpack(t, Y + r, 48) + [f'v_pk_add_f32 {v(t, 2)}, {v(t, 2)}, {v(U_ + 2 * r, 2)}', f'v_cvt_pk_bf16_f32 v{Y + r}, v{t}, v{t + 1}']
        code.append(f'buffer_store_dwordx4 {v(Y + 4 * k, 4)}, v18, s[4:7], s44 offen{SC}')
        if k < 3: code.append(f's_add_u32 s44, s44, {4 * 40960}')
    emit(p, code)

def ln_stats(p, sl, part):
    XS = [8, 100]; F = 32
    p(f'''
    v_lshrrev_b32 v1, 4, v0
    v_and_b32 v2, 15, v0
    s_lshl_b32 s24, s{sl}, 2
    s_add_u32 s24, s24, s3
    ''')
    if part == 0:
        srd(p, 8, 'x', 2048 * 1280)
        p(f'''
        v_mul_u32_u24 v3, 1280, v1
        v_lshl_add_u32 v3, v2, 4, v3
        s_mul_i32 s24, s24, {8 * 1280}
        ''')
        for n in range(2):
            if n: p('s_add_u32 s24, s24, 5120')
            for i in range(5):
                p(f'buffer_load_dwordx4 {v(XS[n] + 4 * i, 4)}, v3, s[8:11], s24 offen offset:{256 * i}')
        return
    p(f'''
    s_lshl_b32 s25, s24, 6
    s_add_u32 s25, s25, {STAT}
    v_lshl_add_u32 v4, v2, 2, v1
    v_lshlrev_b32 v4, 3, v4
    s_mov_b32 s28, 0xffff0000
    ''')
    for n in range(2):
        X = XS[n]
        for i in range(5):
            for d in range(4):
                k = 4 * i + d
                emit(p, unpack(F + 2 * k, X + k, 28))
            if i == 0:
                p(f'v_pk_add_f32 v[72:73], {v(F, 2)}, {v(F + 2, 2)}')
                p(f'v_pk_add_f32 v[74:75], {v(F + 4, 2)}, {v(F + 6, 2)}')
            else:
                for d in range(4):
                    a_ = 72 + 2 * (d & 1)
                    p(f'v_pk_add_f32 {v(a_, 2)}, {v(a_, 2)}, {v(F + 8 * i + 2 * d, 2)}')
        p('v_pk_add_f32 v[72:73], v[72:73], v[74:75]')
        p('v_add_f32 v72, v72, v73')
        row16_reduce(p, 72)
        p(f'v_mul_f32 v72, {f2u(1 / 640)}, v72')
        for k in range(20):
            p(f'v_pk_add_f32 {v(F + 2 * k, 2)}, {v(F + 2 * k, 2)}, v[72:73] op_sel_hi:[1,0] neg_lo:[0,1] neg_hi:[0,1]')
        for k in range(20):
            a_ = 74 + 2 * (k & 1)
            if k < 2: p(f'v_pk_mul_f32 {v(a_, 2)}, {v(F + 2 * k, 2)}, {v(F + 2 * k, 2)}')
            else: p(f'v_pk_fma_f32 {v(a_, 2)}, {v(F + 2 * k, 2)}, {v(F + 2 * k, 2)}, {v(a_, 2)}')
        p('v_pk_add_f32 v[74:75], v[74:75], v[76:77]')
        p('v_add_f32 v74, v74, v75')
        row16_reduce(p, 74)
        p(f'''
        v_mul_f32 v74, {f2u(1 / 640)}, v74
        v_cvt_pk_bf16_f32 v74, v74, v74
        v_lshlrev_b32 v74, 16, v74
        v_add_f32 v74, {f2u(EPS)}, v74
        v_cvt_pk_bf16_f32 v74, v74, v74
        v_lshlrev_b32 v74, 16, v74
        v_sqrt_f32 v74, v74
        v_cvt_pk_bf16_f32 v{78 + n}, v72, v74
        ''')
    p(TAG)
    p(f'''
    v_cmp_eq_u32 vcc, 0, v2
    v_cndmask_b32 v78, v79, v78, vcc
    v_mov_b32 v79, s60
    s_mov_b32 s30, 0x00030003
    s_mov_b32 s31, 0x00030003
    s_mov_b64 exec, s[30:31]
    buffer_store_dwordx2 v[78:79], v4, s[4:7], s25 offen{SC}
    s_mov_b64 exec, -1
    ''')

def relayout2(p, lab, part, *a):
    p(f'''
    s_cmp_lt_u32 s20, 20
    s_cbranch_scc1 {lab}_w1
    s_cmp_lt_u32 s20, 40
    s_cbranch_scc1 {lab}_w2
    s_cmp_lt_u32 s20, 88
    s_cbranch_scc1 {lab}_w3
    ''')
    def params(name, rs, nrows, u0, dest, nt, ns, sp, cs):
        srd(p, 8, name, nrows * rs)
        if name == 'w4':
            p(f'''
            s_sub_u32 s24, s20, 88
            s_mul_i32 s35, s24, 205
            s_lshr_b32 s35, s35, 12
            s_mul_i32 s25, s35, 20
            s_sub_u32 s24, s24, s25
            s_lshl_b32 s35, s35, 4
            s_add_u32 s35, s35, s3
            s_lshl_b32 s25, s35, 5
            s_mov_b32 s38, 4
            ''')
        else:
            p(f's_sub_u32 s24, s20, {u0}\ns_mov_b32 s35, s3\ns_mov_b32 s38, 5')
            if sp: p('s_lshr_b32 s25, s3, 1\ns_mul_i32 s25, s25, 80\ns_and_b32 s26, s3, 1\ns_lshl_b32 s26, s26, 5\ns_add_u32 s25, s25, s26')
            else: p('s_lshl_b32 s25, s3, 5')
        p(f's_mul_i32 s25, s25, {rs}\ns_mov_b32 s26, {(160 if sp else 128) * rs}')
        if sp: p(f's_mul_i32 s27, s3, {160 * rs}\ns_add_u32 s27, s27, {64 * rs}')
        else: p(f's_add_u32 s27, s25, {512 * rs}')
        P = nt * 1024
        if name == 'w2':
            p(f'''
            s_lshl_b32 s35, s3, 1
            s_mov_b32 s39, {8 * P}
            s_mov_b32 s40, {(-7 * P) & 0xffffffff}
            s_and_b32 s41, s3, 1
            s_lshl_b32 s41, s41, 1
            s_lshr_b32 s43, s3, 1
            s_add_u32 s41, s41, s43
            s_add_u32 s41, s41, 7
            s_sub_u32 s41, s41, s35
            s_mul_i32 s41, s41, {P}
            ''')
        else:
            p(f's_mov_b32 s39, {4 * P}\ns_mov_b32 s40, {4 * P}\ns_mov_b32 s41, {4 * P}')
        p('s_mov_b32 s23, s39')
        if name == 'w4' and Cfg.ko4:
            for g_ in range(48): assert (g_ * 86) >> 8 == g_ // 3
            p(f'''
            s_mul_i32 s41, s35, 86
            s_lshr_b32 s41, s41, 8
            s_mul_i32 s43, s41, 3
            s_sub_u32 s43, s35, s43
            s_lshl_b32 s35, s43, 4
            s_add_u32 s35, s35, s41
            s_mov_b32 s41, {17 * P}
            s_cmp_eq_u32 s43, 2
            s_cselect_b32 s39, {(-30 * P) & 0xffffffff}, s41
            s_cmp_eq_u32 s43, 1
            s_cselect_b32 s40, {(-30 * P) & 0xffffffff}, s41
            s_cmp_eq_u32 s43, 0
            s_cselect_b32 s23, {(-30 * P) & 0xffffffff}, s41
            ''')
        p(f'''
        s_mov_b32 s28, {(8 if sp else 16) * rs}
        s_mov_b32 s29, {(80 if sp else 8) * rs}
        s_mov_b32 s31, {rs}
        s_mov_b32 s32, {dest}
        s_mov_b32 s33, {nt}
        s_mov_b32 s34, {ns * nt}
        s_mov_b32 s36, {cs}
        s_mov_b32 s37, {205 if nt == 5 else 171}
        ''')
    for g in range(40): assert (g * 205) >> 10 == g // 5
    for g in range(96): assert (g * 171) >> 10 == g // 6
    for g in range(60): assert (g * 205) >> 12 == g // 20
    params('w4', 1280, 1536, 88, W4F, 5, 48, False, 0); p(f's_branch {lab}_go')
    p(f'{lab}_w1:'); params('w1', 1280, 640, 0, W1F, 5, 20, False, CS1); p(f's_branch {lab}_go')
    p(f'{lab}_w2:'); params('w2', 1280, 640, 20, W2F, 5, 20, True, 0); p(f's_branch {lab}_go')
    p(f'{lab}_w3:'); params('w3', 3072, 640, 40, W3F, 6, 20, True, CS3)
    p(f'{lab}_go:')
    if part == 0: rl_load(p, lab)
    else: rl_store(p, lab, *a)

def rl_load(p, lab):
    p(f'''
    v_lshrrev_b32 v3, 1, v0
    v_lshrrev_b32 v4, 4, v0
    v_xor_b32 v3, v3, v4
    v_and_b32 v3, 1, v3
    v_and_b32 v4, 1, v0
    v_lshl_add_u32 v3, v3, 1, v4
    s_lshl_b32 s42, s24, 6
    v_lshl_add_u32 v3, v3, 4, s42
    v_lshrrev_b32 v1, 2, v0
    v_mul_lo_u32 v1, v1, s31
    v_add_u32 v1, v1, v3
    v_bfe_u32 v2, v0, 2, 3
    v_mul_lo_u32 v2, v2, s31
    v_lshrrev_b32 v4, 5, v0
    v_mul_lo_u32 v4, v4, s29
    v_add3_u32 v2, v2, v4, v3
    s_mul_i32 s42, s3, 10240
    s_add_u32 m0, s42, s22
    s_lshl_b32 s43, s31, 4
    ''')
    def ld(va, so):
        return f'''
        buffer_load_dwordx4 {va}, s[8:11], {so} offen lds
        s_add_u32 m0, m0, {49152 - 64}
        buffer_load_dwordx4 {va}, s[8:11], {so} offen offset:64 lds
        s_sub_u32 m0, m0, {49152 - 64 - 1024}
        '''
    for i in range(5):
        if i == 4:
            p(f's_cmp_eq_u32 s38, 4\ns_cbranch_scc1 {lab}_ld_done')
            p(ld('v2', 's27')); p('s_add_u32 s27, s27, s28'); p(ld('v2', 's27'))
        else:
            p(ld('v1', 's25')); p('s_add_u32 s30, s25, s43'); p(ld('v1', 's30')); p('s_add_u32 s25, s25, s26')
    p(f'{lab}_ld_done:')

def rl_store(p, lab, pre=None, mid=None, post=None):
    p(f'''
    s_mul_i32 s42, s3, 10240
    v_lshrrev_b32 v2, 2, v0
    v_bfe_u32 v3, v0, 4, 1
    v_and_b32 v9, 3, v0
    v_lshlrev_b32 v9, 3, v9
    v_lshl_add_u32 v9, v2, 6, v9
    v_add_u32 v9, s42, v9
    v_lshlrev_b32 v8, 4, v0
    v_mov_b32 v10, 0x3f803f80
    v_mov_b32 v11, 0x3f803f80
    v_mov_b32 v12, 0x3f803f80
    v_mov_b32 v13, 0x3f803f80
    s_mul_i32 s43, s35, s33
    ''')
    for t in range(4):
        if t < 2: p(f'v_xor_b32 v{4 + t}, {t}, v3\nv_lshl_add_u32 v{4 + t}, v{4 + t}, 5, v9')
        p(f'''
        s_lshl_b32 s48, s24, 1
        s_add_u32 s48, s48, {t}
        s_mul_i32 s49, s48, s37
        s_lshr_b32 s49, s49, 10
        s_mul_i32 s46, s49, s33
        s_sub_u32 s48, s48, s46
        s_mul_i32 s49, s49, s34
        s_add_u32 s48, s48, s49
        s_add_u32 s48, s48, s43
        s_lshl_b32 s48, s48, 10
        s_add_u32 s{12 + t}, s48, s32
        ''')
    CSL = 40960
    p(f'''
    s_lshl_b32 s48, s3, 8
    s_add_u32 s48, s48, {CSL}
    v_and_b32 v2, 48, v0
    v_add_u32 v2, s48, v2
    s_mov_b32 s46, 0x00010001
    s_mov_b32 s47, 0x00010001
    v_lshlrev_b32 v6, 2, v0
    v_add_u32 v7, {CSL}, v6
    s_lshl_b32 s48, s24, 7
    s_add_u32 s48, s48, s36
    ''')
    if pre: pre()
    p('s_barrier')
    stamp(p, 27)
    if mid: mid()
    def rd(i):
        R = 32 + 16 * i
        for t in range(4):
            p(f'ds_read_b64_tr_b16 {v(R + 4 * t, 2)}, v{4 + (t & 1)} offset:{2048 * i + 49152 * (t >> 1)}')
            p(f'ds_read_b64_tr_b16 {v(R + 4 * t + 2, 2)}, v{4 + (t & 1)} offset:{2048 * i + 1024 + 49152 * (t >> 1)}')
    for i in range(5): rd(i)
    for i in range(5):
        if i == 4: p(f's_cmp_eq_u32 s38, 4\ns_cbranch_scc1 {lab}_st_done')
        R = 32 + 16 * i
        for t in range(4):
            p(f'buffer_store_dwordx4 {v(R + 4 * t, 4)}, v8, s[4:7], s{12 + t} offen{SC}')
            if i < 4: p(f's_add_u32 s{12 + t}, s{12 + t}, s{(39, 40, 23, 41)[i]}')
            p(f'{MF} {v(16 + 4 * t, 4)}, {v(R + 4 * t, 4)}, v[10:13], {v(16 + 4 * t, 4) if i else 0}')
    p(f'{lab}_st_done:')
    stamp(p, 24)
    p(f'''
    s_cmp_eq_u32 s36, 0
    s_cbranch_scc1 {lab}_done
    s_mov_b64 exec, s[46:47]
    ds_write_b128 v2, v[16:19]
    ds_write_b128 v2, v[20:23] offset:64
    ds_write_b128 v2, v[24:27] offset:128
    ds_write_b128 v2, v[28:31] offset:192
    s_mov_b64 exec, -1
    s_waitcnt lgkmcnt(0)
    s_barrier
    s_cmp_lg_u32 s3, 0
    s_cbranch_scc1 {lab}_done
    ds_read_b32 v4, v7
    ds_read_b32 v5, v7 offset:256
    ds_read_b32 v8, v7 offset:512
    ds_read_b32 v9, v7 offset:768
    v_add_f32 v4, v4, v5
    v_add_f32 v8, v8, v9
    v_add_f32 v4, v4, v8
    buffer_store_dword v4, v6, s[4:7], s48 offen{SC}
    {lab}_done:
    ''')
    if post: post()

def build(dbg=False):
    Cfg.stamp = dbg
    p = Prog()
    g1 = PG(5, 20, W1F, 25, 120); g2 = PG(5, 20, W2F, 25, 60); g3 = PG(6, 20, W3F, 53, 0); g4 = PG(5, 48, W4F, 25, 120)
    prologue(p, 256, 'k')
    p('s_cmp_eq_u32 s3, 4\ns_cbranch_scc1 helper')
    if dbg: p('v_mov_b32 v255, 0')
    stamp(p, 0)
    if dbg: p('s_memtime s[98:99]\ns_waitcnt lgkmcnt(0)\nv_writelane_b32 v255, s98, 30')
    p(f'''
    s_add_u32 s56, s92, {EPW}
    s_addc_u32 s57, s93, 0
    s_load_dword s60, s[56:57], 0
    s_cmp_ge_u32 s2, 160
    s_cbranch_scc1 role_b
    ''')
    def ids():
        p('''
        s_lshr_b32 s28, s2, 3
        s_and_b32 s29, s2, 7
        s_and_b32 s25, s28, 7
        s_lshr_b32 s24, s28, 3
        s_lshl_b32 s30, s29, 2
        s_add_u32 s24, s24, s30
        s_lshl_b32 s62, s24, 3
        s_add_u32 s62, s62, s25
        s_lshl_b32 s24, s24, 2
        s_add_u32 s24, s24, s3
        s_and_b32 s53, s28, 15
        s_lshr_b32 s52, s28, 4
        s_lshl_b32 s30, s29, 1
        s_add_u32 s52, s52, s30
        s_lshl_b32 s63, s52, 4
        s_add_u32 s63, s63, s53
        s_lshl_b32 s52, s52, 2
        s_add_u32 s52, s52, s3
        s_lshl_b32 s52, s52, 1
        s_and_b32 s51, s3, 1
        v_lshlrev_b32 v1, 4, v0
        ''')
    W1DMA = dma(g1, 0, 10) + dma(g1, 40, 15)
    p('s_and_b32 s50, s2, 7\ns_mul_i32 s50, s50, 20\ns_lshr_b32 s51, s2, 3\ns_add_u32 s50, s50, s51')
    emit_kgen_loads(p, 50)
    if Cfg.pfw:
        p(f'''
        s_cmp_ge_u32 s3, {Cfg.pfw}
        s_cbranch_scc1 pfw_end
        s_cmp_eq_u32 s3, 1
        s_cselect_b64 s[44:45], s[82:83], s[80:81]
        s_cmp_eq_u32 s3, 2
        s_cselect_b64 s[44:45], s[84:85], s[44:45]
        s_cmp_eq_u32 s3, 3
        s_cselect_b64 s[44:45], s[86:87], s[44:45]
        s_cmp_lt_u32 s3, 2
        s_cselect_b32 s43, 39, {Cfg.pf34 - 1}
        s_mov_b32 s47, 0x20000
        s_add_u32 s42, s43, 1
        s_mul_i32 s46, s42, 20480
        s_mul_i32 s42, s42, s2
        s_lshl_b32 s42, s42, 7
        v_min_u32 v252, s43, v0
        v_lshlrev_b32 v252, 7, v252
        buffer_load_dword v254, v252, s[44:47], s42 offen
        pfw_end:
        ''')
    if Cfg.ob: p('s_barrier')
    p(f'''
    s_cmp_lg_u32 s3, 0
    s_cbranch_scc1 nozero
    v_lshrrev_b32 v5, 4, v0
    v_mul_u32_u24 v5, {CHS}, v5
    v_bfe_u32 v6, v0, 3, 1
    v_mul_u32_u24 v6, 4160, v6
    v_and_b32 v7, 7, v0
    v_lshl_add_u32 v5, v7, 2, v5
    v_add3_u32 v5, v5, v6, v2
    v_add_u32 v5, {UC}, v5
    ds_write_b32 v5, v2
    nozero:
    ''')
    stamp(p, 1)
    assert Cfg.xh
    kgen2(p, [], [])
    p(TAG)
    stamp(p, 2)
    ids()
    def w1flags():
        p(f'''
        s_mul_i32 s56, s25, 5
        s_lshr_b32 s56, s56, 1
        s_lshl_b32 s56, s56, {Cfg.FS}
        s_add_u32 s56, s56, {F0}
        v_min_u32 v253, 2, v0
        v_lshlrev_b32 v253, {Cfg.FS}, v253
        s_mov_b64 s[58:59], 7
        ''')
    if Cfg.xh:
        p(f's_lshl_b32 s46, s3, 12\ns_add_u32 s46, s46, {XL}\nv_add_u32 v8, s46, v1\ns_barrier')
        stamp(p, 3)
        for k in range(4): p(f'ds_read_b128 {v(SR + 4 * k, 4)}, v8 offset:{16384 + 1024 * k}\nds_read_b128 {v(XP + 4 * k, 4)}, v8 offset:{1024 * k}')
    normalize(p)
    w1flags()
    p('s_mov_b32 s49, s56')
    conv2(p, dma(g1, 0, 10, 's[8:11]') + dma(g1, 40, 15, 's[8:11]'))
    stamp(p, 6)
    p('''
    v_or3_b32 v240, v240, v241, v242
    v_or_b32 v240, v240, v243
    v_cmp_ne_u32 vcc, 0, v240
    s_cbranch_vccz join1
    s_branch slow1
    ''')
    p('role_b:')
    p('s_sub_u32 s21, s2, 192\ns_cmp_lt_u32 s2, 192\ns_cbranch_scc1 rl_c')
    ln_stats(p, 21, 0)
    if Cfg.ob: p('s_barrier')
    ln_stats(p, 21, 1)
    stamp(p, 1)
    p('s_cmp_lt_u32 s2, 234\ns_cbranch_scc1 rl_a')
    if Cfg.pf3:
        srd(p, 8, 'w3', 640 * 3072)
        p('s_sub_u32 s20, s2, 234\ns_lshl_b32 s20, s20, 2\ns_add_u32 s20, s20, s3\ns_mul_i32 s20, s20, 192 * 128\nv_lshlrev_b32 v1, 7, v0')
        for k in range(3): p(f'buffer_load_dword v{8 + k}, v1, s[8:11], s20 offen\ns_add_u32 s20, s20, 8192')
    x_ = Cfg.hx2; y_ = -(-((H3F - H1F) // 1024 - 22 * x_) // 160)
    p(f's_lshl_b32 s28, s2, 2\ns_add_u32 s28, s28, s3\ns_mul_i32 s28, s28, {x_ * 256}\ns_add_u32 s28, s28, {H1F + (160 * y_ - 234 * x_) * 1024}\nv_lshlrev_b32 v1, 4, v0')
    for k in range(4): p(f'v_mov_b32 v{4 + k}, -1')
    for k in range(x_ // 4):
        if k and k % 4 == 0: p('s_add_u32 s28, s28, 4096')
        p(f'buffer_store_dwordx4 v[4:7], v1, s[4:7], s28 offen offset:{1024 * (k & 3)}{SC}')
    p('s_waitcnt vmcnt(0)\ns_barrier')
    flag_store(p, 'pbq', [('s2', F1)])
    p('s_branch rl_end\nrl_c:')
    p(TAG)
    p('rl_a:' + UNIT)
    assert Cfg.hld
    flag_store(p, 'pbt', [('s2', F1)])
    def pre():
        ids(); w1flags()
        p('v_mov_b32 v240, s60\nv_mov_b32 v241, 45072\ns_cmp_lg_u32 s3, 0\ns_cbranch_scc1 rl_tg\nds_write_b32 v241, v240\ns_waitcnt lgkmcnt(0)\nrl_tg:')
    def mid(): p(f'ds_read_b32 v240, v241\nbuffer_load_dword v253, v253, s[4:7], s56 offen{SC}\nv_readfirstlane_b32 s60, v240')
    def post():
        p(f'''
        v_cmp_ne_u32 vcc, s60, v253
        s_or_b32 s57, vcc_lo, vcc_hi
        v_mov_b32 v241, s57
        s_lshl_b32 s57, s3, 2
        s_add_u32 s57, s57, 45056
        v_mov_b32 v242, s57
        v_mov_b32 v243, 45056
        ds_write_b32 v242, v241
        s_waitcnt lgkmcnt(0)
        s_barrier
        ds_read_b128 v[240:243], v243
        s_add_u32 s21, s20, 1
        v_or3_b32 v240, v240, v241, v242
        v_or_b32 v240, v240, v243
        v_cmp_ne_u32 vcc, 0, v240
        s_cbranch_vccnz rl_late
        s_barrier
        ''')
        emit(p, W1DMA)
        p('s_waitcnt vmcnt(25)\ns_barrier')
        flag_store(p, 'pbs', [('s20', F0), ('s21', F0)])
        p('s_branch rl_f1\nrl_late:')
    relayout2(p, 'rl', 1, pre, mid, post)
    p('s_waitcnt vmcnt(0)\ns_barrier')
    flag_store(p, 'pbr', [('s20', F0), ('s21', F0)])
    p('rl_end:')
    ids()
    stamp(p, 3)
    p('slow1:')
    w1flags()
    spin(p, 'pb', 1, 254)
    emit(p, W1DMA)
    p('rl_f1:')
    stamp(p, 4)
    p(f'v_lshlrev_b32 v253, {Cfg.FS}, v0\ns_lshl_b32 s56, s3, {6 + Cfg.FS}\ns_add_u32 s56, s56, {F1}\ns_mov_b64 s[58:59], -1')
    spin(p, 'pf1', 1, 254)
    p('s_barrier')
    p(f'join1:\ns_mov_b32 s61, {Cfg.spin}')
    mj = p.mark()
    stamp(p, 7)
    A0, A1, SUM, GR, ONES, WB, X, CS, HP, HX = 16, 36, 56, 64, 72, 76, 136, 228, 216, 228
    def ldsbases(kh):
        if kh: p('s_mul_i32 s28, s51, 5120\nv_add_u32 v2, s28, v1\nv_add_u32 v3, 65536, v2\nv_add_u32 v15, 131072, v2')
        else: p('v_add_u32 v3, 65536, v1\nv_add_u32 v15, 131072, v1')
    def wreads(g, WB_, per, b0):
        def f(i):
            out = []
            for t in range(g.NT):
                o = ((g.base + per * i) % 160 + t) * 1024
                out.append(f'ds_read_b128 {v(WB_ + 4 * g.NT * (i % 3) + 4 * t, 4)}, v{(b0, 3, 15)[o >> 16]} offset:{o & 65535}')
            return out
        return f
    def exaddr(vw, vr, EXB):
        p(f'''
        s_mul_i32 s28, s3, 5120
        s_xor_b32 s29, s3, 1
        s_mul_i32 s29, s29, 5120
        s_add_u32 s28, s28, {EXB}
        s_add_u32 s29, s29, {EXB}
        v_add_u32 v{vw}, s28, v1
        v_add_u32 v{vr}, s29, v1
        ''')
    ldsbases(True)
    class g5: NT = 5
    kern.cs_loads(p, g5, CS, CS1, 29)
    EXS = 20480
    exaddr(5, 6, 0)
    p(f'''
    s_lshl_b32 s28, s51, 3
    v_add_u32 v4, s28, v1
    s_lshl_b32 s28, s3, 11
    s_add_u32 s28, s28, {EXS}
    v_add_u32 v7, s28, v1
    s_lshl_b32 s28, s3, 9
    s_add_u32 s28, s28, {EXS + 8192}
    v_lshl_add_u32 v8, v0, 2, s28
    s_and_b32 s29, s3, 2
    s_lshl_b32 s28, s29, 9
    s_lshl_b32 s30, s51, 8
    s_add_u32 s28, s28, s30
    s_add_u32 s28, s28, {EXS + 8192}
    v_lshl_add_u32 v9, v0, 2, s28
    s_lshl_b32 s28, s29, 11
    s_lshl_b32 s30, s51, 10
    s_add_u32 s28, s28, s30
    s_add_u32 s28, s28, {EXS}
    v_bfe_u32 v10, v0, 2, 2
    v_lshlrev_b32 v10, 8, v10
    v_and_b32 v11, 15, v0
    v_lshl_add_u32 v10, v11, 4, v10
    v_and_b32 v11, 3, v0
    v_lshl_add_u32 v10, v11, 2, v10
    v_add_u32 v10, s28, v10
    s_lshr_b32 s30, s24, 1
    s_mul_i32 s30, s30, 40960
    s_add_u32 s30, s30, {HQ}
    s_mul_i32 s31, s25, 5120
    s_add_u32 s31, s31, s30
    s_add_u32 s32, s31, 4096
    s_lshl_b32 s28, s51, 11
    s_add_u32 s30, s30, s28
    ''')
    for k in range(4): p(f'v_mov_b32 v{ONES + k}, 0x3f803f80')
    for l in range(15): assert (l * 86) >> 8 == l // 3
    p(f'''
    v_min_u32 v11, 14, v0
    v_mul_u32_u24 v12, 86, v11
    v_lshrrev_b32 v12, 8, v12
    v_mul_u32_u24 v13, 17, v12
    s_mul_i32 s28, s25, 5
    s_lshr_b32 s28, s28, 1
    s_add_u32 s29, s28, 48
    v_add3_u32 v13, v13, v11, s29
    s_add_u32 s28, s28, 20
    v_add_u32 v14, s28, v11
    v_cmp_eq_u32 vcc, 0, v12
    v_cndmask_b32 v13, v13, v14, vcc
    s_mul_i32 s28, s53, 3
    s_add_u32 s28, s28, 37
    v_add_u32 v14, s28, v11
    v_cmp_eq_u32 vcc, 1, v12
    v_cndmask_b32 v13, v13, v14, vcc
    v_lshlrev_b32 v14, {Cfg.FS}, v13
    s_mov_b32 s33, {F0}
    ''')
    WFL = f'buffer_load_dword v13, v14, s[4:7], s33 offen{SC}'
    STUBS.extend('@' + t for t in ['wfs:', 's_cmp_eq_u32 s61, 0', 's_cbranch_scc1 wfs_b', 's_sub_u32 s61, s61, 1', WFL, 's_waitcnt vmcnt(0)',
                                   'v_cmp_ne_u32 vcc, s60, v13', 's_cbranch_vccnz wfs', 's_branch wfs_b'])
    xs1 = XS('x1_', lambda i: X + 8 * i, lambda i: [(1, 30, 4096 * i + 1024 * h_) for h_ in range(2)], {30: 34})
    def mf1(i):
        c = lambda r: v(r, 4) if i else '0'
        M = []
        for t in range(5):
            for sl in range(2):
                r = (A0, A1)[sl] + 4 * t
                M.append(f'{MF} {v(r, 4)}, {v(WB + 20 * (i % 3) + 4 * t, 4)}, {v(X + 8 * i + 4 * sl, 4)}, {c(r)}')
            if t < 2:
                x = v(X + 8 * i + 4 * t, 4)
                M.append(f'{MF} {v(SUM + 4 * t, 4)}, {v(ONES, 4)}, {x}, {c(SUM + 4 * t)}')
                M.append(f'{MF} {v(GR + 4 * t, 4)}, {x}, {x}, {c(GR + 4 * t)}')
        return M
    def epoch():
        p(f'''
        s_or_b32 s29, s2, s3
        s_cmp_lg_u32 s29, 0
        s_cbranch_scc1 noep
        v_mov_b32 v252, s60
        v_mov_b32 v253, 0
        s_mov_b32 s56, {EPW}
        s_mov_b64 exec, 1
        buffer_store_dword v252, v253, s[4:7], s56 offen sc1
        s_mov_b64 exec, -1
        noep:
        ''')
    HPL = [f'buffer_load_dwordx2 {v(HP + 2 * t, 2)}, v4, s[4:7], s{31 if t < 4 else 32} offen offset:{1024 * (t & 3)}{SC}' for t in range(5)]
    ex = spread(dma(g2, 0, 15), range(10 - Cfg.U1, 10))
    k0 = 10 - Cfg.U1
    ex[k0] = ['v_cmp_ne_u32 vcc, s60, v13', '@s_cbranch_vccnz wfs\n@wfs_b:'] + ex[k0]
    ex[max(0, k0 - Cfg.wfd)] = [WFL]
    def bar1():
        p(f's_waitcnt vmcnt({p.vm_since(mj) + 4})\ns_barrier')
        stamp(p, 8)
    mainloop(p, 10, 5, mf1, wreads(g1, WB, 10, 2), xs1, Cfg.U1, bar1, ex,
             lambda i: [f'v_swap_b32 v{X + 8 * i + 2 + k}, v{X + 8 * i + 4 + k}' for k in range(2)])
    stamp(p, 9)
    TX = WB
    p('s_barrier')
    emit(p, HPL)
    emit(p, dma(g2, 60, 10))
    p(f'''
    ds_write_b128 v7, {v(GR, 4)}
    ds_write_b128 v7, {v(GR + 4, 4)} offset:1024
    ds_write2st64_b32 v8, v{SUM}, v{SUM + 4} offset0:0 offset1:1
    s_cmp_lg_u32 s51, 0
    s_cbranch_scc1 x1_odd
    ''')
    xr = [f'ds_read2st64_b32 v[8:9], v9 offset0:0 offset1:2', f'ds_read2st64_b32 v[10:11], v10 offset0:0 offset1:8'] + \
         [f'ds_read_b128 {v(TX + 4 * t, 4)}, v6 offset:{1024 * t}' for t in range(5)]
    for t in range(5): p(f'ds_write_b128 v5, {v(A1 + 4 * t, 4)} offset:{1024 * t}')
    p('s_waitcnt lgkmcnt(0)\ns_barrier'); emit(p, xr)
    for k in range(10): p(f'v_pk_add_f32 {v(A0 + 2 * k, 2)}, {v(A0 + 2 * k, 2)}, {v(TX + 2 * k, 2)}')
    p('s_branch x1_join\nx1_odd:')
    for t in range(5): p(f'ds_write_b128 v5, {v(A0 + 4 * t, 4)} offset:{1024 * t}')
    p('s_waitcnt lgkmcnt(0)\ns_barrier'); emit(p, xr)
    for k in range(10): p(f'v_pk_add_f32 {v(A0 + 2 * k, 2)}, {v(A1 + 2 * k, 2)}, {v(TX + 2 * k, 2)}')
    p('x1_join:')
    K, ONE, O, T = 56, 58, 60, 136
    code = [f'v_mov_b32 v{K}, {f2u(C0)}', f'v_mov_b32 v{K + 1}, {f2u(C1)}', f'v_mov_b32 v{ONE}, 1.0',
            'v_add_f32 v8, v8, v9', 'v_add_f32 v10, v10, v11',
            f'v_mul_f32 v8, {f2u(1 / 640)}, v8', 'v_mul_f32 v9, v8, v8', f'v_mov_b32 v13, {f2u(1 / 640)}',
            'v_fma_f32 v10, v10, v13, -v9', 'v_max_f32 v10, 0, v10', f'v_add_f32 v11, {f2u(EPS)}, v10', 'v_rsq_f32 v12, v11',
            'v_mul_f32 v11, v12, v12', f'v_mov_b32 v13, {f2u(EPS)}', 'v_fma_f32 v11, v11, v10, v13', 'v_rsq_f32 v11, v11',
            'v_mul_f32 v13, -v8, v12', 'v_mul_f32 v10, v12, v11', 'v_mul_f32 v11, v13, v11']
    for k in range(10):
        A = A0 + 2 * k; t = T + 2 * k
        code += [f'v_pk_mul_f32 {v(CS + 2 * k, 2)}, {v(CS + 2 * k, 2)}, v[10:11] op_sel:[0,1] op_sel_hi:[1,1]',
                 f'v_pk_fma_f32 {v(A, 2)}, {v(A, 2)}, v[10:11], {v(CS + 2 * k, 2)} op_sel_hi:[1,0,1]']
        code += gelu_code(A, t, K, ONE, O + k)
    emit(p, sched(code))
    mS = [p.mark()]
    FS1 = SC if Cfg.fast1 is None else Cfg.fast1
    kern.SC = FS1
    frag_store80(p, O, H1F)
    kern.SC = SC
    stamp(p, 10)
    epoch()
    p('''
    v_and_b32 v9, 15, v0
    v_lshlrev_b32 v9, 1, v9
    v_and_b32 v10, 48, v0
    v_lshlrev_b32 v10, 4, v10
    s_movk_i32 s32, 0x800
    v_bfrev_b32 v56, 1
    s_mov_b32 s33, 0xffff0000
    s_lshr_b32 s29, s24, 1
    s_lshl_b32 s29, s29, 5
    s_lshl_b32 s30, s51, 1
    ''')
    for ds_, sl, expr in ((0, 0, 's_sub_u32 s28, s29, 1'), (0, 1, 's_sub_u32 s28, s29, s30'),
                          (1, 0, 's_add_u32 s28, s29, s30\ns_add_u32 s28, s28, 1'), (1, 1, 's_add_u32 s28, s29, 2')):
        p(expr)
        p(f'''
        v_add_u32 v11, s28, v9
        v_cmp_gt_u32 vcc, s32, v11
        v_lshrrev_b32 v57, 5, v11
        v_and_b32 v58, 1, v11
        v_lshl_add_u32 v57, v57, 1, v58
        v_mul_u32_u24 v57, 20480, v57
        v_bfe_u32 v11, v11, 1, 4
        v_lshl_add_u32 v57, v11, 4, v57
        v_add_u32 v57, v57, v10
        v_cndmask_b32 v{5 + 2 * ds_ + sl}, v56, v57, vcc
        ''')
    for k in range(10):
        emit(p, unpack(HX + 2 * k, HP + k, 33))
        p(f'v_pk_fma_f32 {v(A0 + 2 * k, 2)}, {v(HX + 2 * k, 2)}, v[12:13], v[12:13] op_sel:[0,0,1] op_sel_hi:[1,0,1]')
    exaddr(9, 10, 120 * 1024)
    p(f'''
    s_lshl_b32 s30, s51, 13
    s_add_u32 s30, s30, {H1F}
    s_lshl_b32 s31, s51, 11
    s_add_u32 s31, s31, {H1F + 16384}
    ''')
    def hop(k, i, sidx, F, su):
        if k not in Cfg.daf:
            publish(p, sidx, F, f'pb{k}x'); stamp(p, i)
            poll(p, f'p{k}', su, False, 's95'); stamp(p, i + 1)
            p(f's_mov_b32 s61, {Cfg.spin}')
            return None
        ack = Cfg.ack4 if k == 4 else Cfg.ack
        if ack: p('s_waitcnt vmcnt(0)')
        stamp(p, i)
        m = p.mark() if ack else mS[0]
        def f():
            p.wait_vm(m); p('s_barrier'); stamp(p, i + 1)
        return f
    def su3():
        p(f'''
        s_and_b32 s56, s62, 0xf8
        s_sub_u32 s56, s56, 8
        v_add_u32 v253, s56, v0
        s_movk_i32 s57, 0x100
        v_cmp_gt_u32 vcc, s57, v253
        v_lshlrev_b32 v253, {Cfg.FS}, v253
        s_and_b32 s58, vcc_lo, 0xffffff
        s_mov_b32 s59, 0
        s_sub_u32 s95, s62, s56
        s_mov_b32 s56, {F2}
        ''')
    def su4():
        p(f'''
        s_and_b32 s56, s63, 0xf0
        s_sub_u32 s95, s62, s56
        s_lshl_b32 s56, s56, {Cfg.FS}
        s_add_u32 s56, s56, {F3}
        v_lshlrev_b32 v253, {Cfg.FS}, v0
        s_mov_b64 s[58:59], 0xffff
        ''')
    def su5():
        p(f'''
        s_and_b32 s56, s62, 0xf0
        s_sub_u32 s95, s63, s56
        s_lshl_b32 s56, s56, {Cfg.FS}
        s_add_u32 s56, s56, {F4}
        v_lshlrev_b32 v253, {Cfg.FS}, v0
        s_mov_b64 s[58:59], 0xffff
        ''')
    def xa2(i):
        ds_ = (i >> 2) if i < 8 else i - 8
        so, off = (30, 1024 * i) if i < 8 else (31, 1024 * (i - 8))
        return [(5 + 2 * ds_ + sl, so, off) for sl in range(2)]
    xs2 = XS('x2_', lambda i: X + 8 * i, xa2, {30: 34, 31: 35})
    def mfk(AS, WB_, xs):
        def f(i):
            M = []
            for t in range(5):
                for sl in range(2):
                    r = AS[sl] + 4 * t
                    M.append(f'{MF} {v(r, 4)}, {v(WB_ + 20 * (i % 3) + 4 * t, 4)}, {v(xs.reg(i) + 4 * sl, 4)}, {v(r, 4) if (i or not sl) else 0}')
            return M
        return f
    ex = spread(dma(g3, 0, 15), range(10 - Cfg.U2, 10))
    bf = hop(2, 11, 's62', F2, su3)
    mainloop(p, 10, 5, mfk((A0, A1), WB, xs2), wreads(g2, WB, 10, 2), xs2, Cfg.U2, bf, ex)
    stamp(p, 13)
    def exch(vw, vr, Akeep, Agive, fill=[]):
        p('s_barrier')
        for t in range(5): p(f'ds_write_b128 v{vw}, {v(Agive + 4 * t, 4)} offset:{1024 * t}')
        emit(p, fill)
        p('s_waitcnt lgkmcnt(0)\ns_barrier')
        for t in range(5): p(f'ds_read_b128 {v(TX + 4 * t, 4)}, v{vr} offset:{1024 * t}')
        return [f'v_pk_add_f32 {v(Akeep + 2 * k, 2)}, {v(Akeep + 2 * k, 2)}, {v(TX + 2 * k, 2)}' for k in range(10)]
    code = exch(9, 10, A0, A1, dma(g3, 60, 15) if Cfg.early else [])
    O = 60
    code += ['v_mov_b32 v8, 0', 'v_mov_b32 v9, 0', 'v_mov_b32 v10, 0', 'v_mov_b32 v11, 0', 'v_lshlrev_b32 v4, 3, v0']
    for k in range(10):
        A = A0 + 2 * k
        code += [f'v_cvt_pk_bf16_f32 v{O + k}, v{A}, v{A + 1}',
                 f'v_dot2c_f32_bf16 v{8 + 2 * (k & 1)}, v{O + k}, v{ONES}', f'v_dot2c_f32_bf16 v{9 + 2 * (k & 1)}, v{O + k}, v{O + k}']
    code += ['v_pk_add_f32 v[8:9], v[8:9], v[10:11]'] + qreduce(8, 10) + qreduce(9, 11)
    emit(p, sched(code))
    mS[0] = p.mark()
    FS_ = SC if Cfg.fast is None else Cfg.fast
    kern.SC = FS_
    frag_store80(p, O, X1F)
    kern.SC = SC
    p(f'''
    s_lshl_b32 s29, s24, 3
    s_add_u32 s29, s29, s25
    s_lshl_b32 s29, s29, 7
    s_add_u32 s29, s29, {PS2}
    s_mov_b64 exec, 0xffff
    buffer_store_dwordx2 v[8:9], v4, s[4:7], s29 offen{FS_}
    s_mov_b64 exec, -1
    ''')
    HA = [f'v_pk_add_f32 {v(HX + 2 * k, 2)}, {v(HX + 2 * k, 2)}, {v(A0 + 2 * k, 2)}' for k in range(10)]
    emit(p, HA)
    stamp(p, 14)
    R3 = Cfg.U3 + 1
    PS = X + 8 * R3; WB3 = 64
    CS = X + 8 * ((20 - R3) % R3)
    assert PS + 8 <= 228 and (20 - R3) % R3 + 3 <= R3
    ldsbases(False)
    p(f'''
    v_and_b32 v6, 15, v0
    v_and_b32 v7, 48, v0
    v_lshlrev_b32 v7, 4, v7
    v_lshl_add_u32 v7, v6, 3, v7
    s_lshl_b32 s29, s52, 10
    s_add_u32 s29, s29, {PS2}
    s_mul_i32 s30, s52, 20480
    s_add_u32 s30, s30, {X1F}
    s_add_u32 s31, s30, 20480
    v_and_b32 v4, 48, v0
    s_mul_i32 s32, s53, 384
    s_add_u32 s32, s32, {CS3}
    ''')
    acc3 = lambda mt, t: 16 + 24 * mt + 4 * t
    PSL = [f'buffer_load_dwordx2 {v(PS + 4 * mt + 2 * i, 2)}, v7, s[4:7], s29 offen offset:{1024 * mt + 128 * i}{SC}' for mt in range(2) for i in range(2)]
    C3L = [f'buffer_load_dwordx4 {v(CS + 4 * t, 4)}, v4, s[4:7], s32 offen offset:{64 * t}{SC}' for t in range(6)]
    xs3 = XS('x3_', lambda i: X + 8 * (i % R3), lambda i: [(1, 30 + mt, 1024 * i) for mt in range(2)], {30: 34, 31: 35}, R3)
    def mf3(i):
        return [f'{MF} {v(acc3(mt, t), 4)}, {v(WB3 + 24 * (i % 3) + 4 * t, 4)}, {v(xs3.reg(i) + 4 * mt, 4)}, {v(acc3(mt, t), 4) if i else 0}'
                for t in range(6) for mt in range(2)]
    code = [f'v_mov_b32 v13, {f2u(1 / 640)}']
    for mt in range(2):
        r = PS + 4 * mt
        code += [f'v_add_f32 v{r}, v{r}, v{r + 2}', f'v_add_f32 v{r + 1}, v{r + 1}, v{r + 3}'] + qreduce(r, r + 2) + qreduce(r + 1, r + 3) + [
            f'v_mul_f32 v{r}, v13, -v{r}', f'v_mul_f32 v{r + 2}, v{r}, v{r}', f'v_fma_f32 v{r + 1}, v{r + 1}, v13, -v{r + 2}',
            f'v_max_f32 v{r + 1}, 0, v{r + 1}', f'v_add_f32 v{r + 1}, {f2u(EPS)}, v{r + 1}', f'v_rsq_f32 v{r + 1}, v{r + 1}',
            f'v_mul_f32 v{r}, v{r}, v{r + 1}']
    n3 = 20 - Cfg.U3
    D4 = dma(g4, 0, 10) + (dma(g4, 40, Cfg.m3) if Cfg.m3 else [])
    ex = spread(D4, range(max(n3, 10) if Cfg.m3 else n3, 20))
    ex[4] = PSL
    if 3 in Cfg.daf: ex[10] = chk(PS) + stub('ps3', [(PS, PSL)]) + ex.get(10, [])
    for k_, L in spread(sched(code), range(11, 17)).items(): ex[k_] = ex.get(k_, []) + L
    c0 = 20 - R3 + 3
    for k_, L in spread(C3L, range(c0, c0 + 2)).items(): ex[k_] = L + ex.get(k_, [])
    bf = hop(3, 15, 's62', F3, su4)
    mainloop(p, 20, 6, mf3, wreads(g3, WB3, 6, 1), xs3, Cfg.U3, bf, ex, None, {10: lambda: p('s_barrier')} if Cfg.m3 else {}, Cfg.st3)
    stamp(p, 17)
    p('s_barrier')
    K, ONE, O, T = 8, 10, 64, 88
    p(f'''
    v_mov_b32 v{K}, {f2u(C0)}
    v_mov_b32 v{K + 1}, {f2u(C1)}
    v_mov_b32 v{ONE}, 1.0
    s_mul_i32 s30, s52, 49152
    s_mul_i32 s31, s53, 3072
    s_add_u32 s30, s30, s31
    s_add_u32 s30, s30, {H3F}
    s_add_u32 s31, s30, 49152
    s_mul_i32 s28, s51, 3072
    s_add_u32 s28, s28, {H3F}
    s_mul_i32 s36, s24, 49152
    s_add_u32 s36, s36, s28
    s_xor_b32 s37, s24, 1
    s_mul_i32 s37, s37, 49152
    s_add_u32 s37, s37, s28
    ''')
    R4 = Cfg.R4; XB4 = 104
    xs4 = XS('x4_', lambda i: XB4 + 8 * (i % R4), lambda i: [(1, 36 + sl, 1024 * (6 * (i & 7) + (i >> 3))) for sl in range(2)], {36: 34, 37: 35}, R4)
    assert XB4 + 8 * R4 <= 228 and XB4 + 8 * Cfg.n4 <= CS and Cfg.ko4
    code = []
    for grp in ([[(mt, k) for mt in range(2) for k in range(4 * pc, 4 * pc + 4)] for pc in range(3)] if Cfg.ko4 else [[(mt, k) for k in range(12)] for mt in range(2)]):
        c2 = []
        for mt, k in grp:
            A = acc3(mt, 0) + 2 * k; t = T + 2 * (k & 3) + 8 * mt; r = PS + 4 * mt
            c2 += [f'v_pk_mul_f32 {v(t, 2)}, {v(CS + 2 * k, 2)}, {v(r, 2)} op_sel_hi:[1,0]',
                   f'v_pk_fma_f32 {v(A, 2)}, {v(A, 2)}, {v(r, 2)}, {v(t, 2)} op_sel:[0,1,0] op_sel_hi:[1,1,1]']
            c2 += gelu_code(A, t, K, ONE, O + 12 * mt + k)
            if k % 4 == 3:
                c2.append(f'buffer_store_dwordx4 {v(O + 12 * mt + k - 3, 4)}, v1, s[4:7], s{30 + mt} offen offset:{1024 * (k // 4)}{FS_}')
        code += sched(c2)
    e3 = min(Cfg.e3, 30 - Cfg.m3)
    assert e3 + Cfg.m3 == 30
    code = weave(code, dma(g4, 40 + 4 * Cfg.m3, e3), 0.0, Cfg.w3)
    kl = max(k for k, t in enumerate(code) if ' lds' in t)
    emit(p, code[:kl + 1]); mS[0] = p.mark()
    code = code[kl + 1:]
    if Cfg.n4:
        E = xs4.init()
        for j in range(Cfg.n4): E += xitems(p, xs4, j)
        code = weave(code, E, Cfg.e4a, Cfg.e4b)
    emitx(p, code)
    stamp(p, 18)
    srd(p, 8, 'out', 2048 * 1280)
    ldsbases(True)
    exaddr(9, 10, 0)
    p(f'''
    v_and_b32 v5, 15, v0
    v_mul_u32_u24 v5, 2560, v5
    v_lshrrev_b32 v7, 4, v0
    v_lshl_add_u32 v6, v7, 3, v5
    v_and_b32 v8, 1, v7
    v_lshl_add_u32 v5, v8, 5, v5
    v_lshrrev_b32 v7, 1, v7
    v_lshl_add_u32 v5, v7, 4, v5
    s_lshr_b32 s32, s24, 1
    s_lshl_b32 s32, s32, 5
    s_add_u32 s32, s32, s51
    s_mul_i32 s32, s32, 1280
    s_mul_i32 s33, s25, 160
    s_add_u32 s32, s32, s33
    ''')
    mk = {}
    def setmk(k): return lambda: mk.__setitem__(k, p.mark())
    U4 = Cfg.U4
    X_ = lambda a_, b_: [(max(0, j - R4 + 1), j) for j in range(a_, b_)]
    D_ = lambda f, av, k: [(av, t) for t in dma(g4, f, 10) + [setmk(k)]]
    seq = X_(U4, Cfg.xa4) + D_(160, 3, 0) + X_(max(U4, Cfg.xa4), Cfg.xb4) + D_(200, 7, 1) + X_(Cfg.xb4, 24)
    plan4 = edf(seq, Cfg.r4, 24)
    if Cfg.show: print({k: [t if isinstance(t, int) else 'd' for t in L if isinstance(t, int) or (isinstance(t, str) and t.startswith('buffer'))] for k, L in plan4.items()})
    ex = {}
    def wb(k):
        def f(): p.wait_vm(mk[k]); p('s_barrier')
        return f
    bar = lambda: p('s_barrier')
    WB4 = 36; TX = 104
    bf = hop(4, 19, 's63', F4, su5)
    mainloop(p, 24, 5, mfk((HX, 16), WB4, xs4), wreads(g4, WB4, 10, 2), xs4, Cfg.U4, bf, ex, None, {3: bar, 7: bar, 14: wb(0), 18: wb(1)}, Cfg.st4, plan4)
    stamp(p, 21)
    emit(p, exch(9, 10, HX, 16))
    O = 128
    for pr in range(2):
        o = O + 4 * pr
        for h_ in range(2):
            A = HX + 4 * (2 * pr + h_)
            p(f'v_cvt_pk_bf16_f32 v{o + 2 * h_}, v{A}, v{A + 1}\nv_cvt_pk_bf16_f32 v{o + 2 * h_ + 1}, v{A + 2}, v{A + 3}')
        p(f'v_permlane16_swap_b32 v{o}, v{o + 2}\nv_permlane16_swap_b32 v{o + 1}, v{o + 3}')
        p(f'buffer_store_dwordx4 {v(o, 4)}, v5, s[8:11], s32 offen offset:{64 * pr}{Cfg.osc}')
    A = HX + 16
    p(f'v_cvt_pk_bf16_f32 v{O + 8}, v{A}, v{A + 1}\nv_cvt_pk_bf16_f32 v{O + 9}, v{A + 2}, v{A + 3}')
    p(f'buffer_store_dwordx2 {v(O + 8, 2)}, v6, s[8:11], s32 offen offset:128{Cfg.osc}')
    if dbg:
        p('s_waitcnt vmcnt(0)')
        p(f's_sub_u32 s61, {Cfg.spin}, s61\nv_writelane_b32 v255, s61, 28')
        stamp(p, 22)
        p('s_memtime s[98:99]\ns_waitcnt lgkmcnt(0)\nv_writelane_b32 v255, s98, 31')
        p(f'''
        s_lshl_b32 s29, s2, 2
        s_add_u32 s29, s29, s3
        s_lshl_b32 s29, s29, 7
        s_add_u32 s29, s29, {DBGW}
        v_lshlrev_b32 v2, 2, v0
        s_mov_b32 exec_hi, 0
        buffer_store_dword v255, v2, s[4:7], s29 offen
        ''')
    p('k_end:\ns_endpgm')
    helper(p)
    emit(p, STUBS)
    p('@code_end:')
    return p

if __name__ == '__main__':
    import sys
    from build import HDR
    out = sys.argv[1]; dbg = 'dbg' in sys.argv[2:]
    for a_ in sys.argv[2:]:
        if '=' in a_:
            k_, v_ = a_.split('='); setattr(Cfg, k_, eval(v_))
    name = 'pers_kernel' if 'list' in sys.argv[2:] else NAME
    Cfg.kname = name
    open(out, 'w').write(file_text([(name, build(dbg), 256, 320, LDSZ)], HDR))
```

```python
import kern
from kern import *
kern.SC = ' sc1'
SC = ' sc1'
LDSZ = 163840
F0, F1, F2, F3, F4, EPW = [FLG + 65536 * k for k in range(6)]
NAME = 'sequential_preLN__ssm_conv_s4d__mixer_s_mlp__prompt_kernel'
FB, UC, RC = 0, 69632, 103040
CHY = 8512
XP, SR = 208, 224
XL = 122880
MF = 'v_mfma_f32_16x16x32_bf16'

TAG = 's_mul_i32 s60, s60, 0x9e3779b1\ns_add_u32 s60, s60, 0x7f4a7c15'
class Cfg:
    stamp = False
    spin = 0x10000
    inj = 0.72
    U1 = 6; U2 = 7; U3 = 8; U4 = 10
    pf = False
    warm = False
    FS = 7
    pw = 1
    own = True
    jc = 4
    m3 = 15
    slp = 0
    early = True
    w3 = 0.3
    fast = None
    fast1 = None
    osc = ''
    st3 = {}; st4 = {}
    R4 = 14; n4 = 0; e4a = 0.6; e4b = 0.95; xa4 = 14; xb4 = 18; r4 = 2.8; show = False
    h3c = 1
    ko4 = True
    ack4 = False
    daf = (1, 2, 3)
    cq0 = True; pb64 = True
    wfd = 3
    ipf = True; xdef = True; xh = True; pfw = 1; hdbg = None; hsel = None; ob = True; pf3 = False; pf34 = 32; jl = 3; bw1 = True; hld = True; hx2 = 0; hq0 = 0; hb2 = 0; nopois = False; xrot = True; kname = NAME
    cf0 = 24
    hx = 16; hdl = 0
    c0 = 52; i2a = 0.1; i2b = 0.8
    ack = True
    sslp = 0
    jf = 7
    e3 = 15

def stamp(p, i):
    if Cfg.stamp:
        p(f's_memrealtime s[98:99]\ns_waitcnt lgkmcnt(0)\nv_writelane_b32 v255, s98, {i}')

def flag_store(p, lab, pairs, R=252, sc=' sc1'):
    p(f's_cmp_lg_u32 s3, 0\ns_cbranch_scc1 {lab}_np\nv_mov_b32 v{R}, s60\nv_mov_b32 v{R + 1}, 0\ns_mov_b64 exec, 1')
    for sidx, base in pairs:
        p(f's_lshl_b32 s56, {sidx}, {Cfg.FS}\ns_add_u32 s56, s56, {base}\nbuffer_store_dword v{R}, v{R + 1}, s[4:7], s56 offen{sc}')
    p(f's_mov_b64 exec, -1\n{lab}_np:')

def publish(p, sidx, base, lab, m=None, pf=None, sc=' sc1'):
    if m is None: p('s_waitcnt vmcnt(0)')
    else: p.wait_vm(m)
    if pf and Cfg.pf: p(pf)
    p('s_barrier')
    flag_store(p, lab, [(sidx, base)], 252, sc)

def spin(p, lab, width, R):
    sfx = {1: 'dword', 2: 'dwordx2', 4: 'dwordx4'}[width]
    p(f's_mov_b64 exec, s[58:59]\ns_mov_b32 s61, {Cfg.spin}\n{lab}_loop:')
    p(f'buffer_load_{sfx} {v(R, width)}, v253, s[4:7], s56 offen sc1\ns_waitcnt vmcnt(0)')
    for k in range(width): p(f'v_xor_b32 v{R + k}, s60, v{R + k}')
    if width == 2: p(f'v_or_b32 v{R}, v{R}, v{R + 1}')
    if width == 4: p(f'v_or3_b32 v{R}, v{R}, v{R + 1}, v{R + 2}\nv_or_b32 v{R}, v{R}, v{R + 3}')
    p(f'''
    v_cmp_ne_u32 vcc, 0, v{R}
    s_sub_u32 s61, s61, 1
    s_cbranch_scc1 {lab}_out
    s_cbranch_vccz {lab}_out
    {f's_sleep {Cfg.slp}' if Cfg.slp else ''}
    s_branch {lab}_loop
    {lab}_out:
    s_mov_b64 exec, -1
    ''')

def poll(p, lab, setup, every=False, own=None):
    if not every: p(f's_cmp_lg_u32 s3, {Cfg.pw}\ns_cbranch_scc1 {lab}_skip')
    setup()
    if own and Cfg.own:
        p(f's_cmp_lt_u32 {own}, 64\ns_cselect_b32 s57, 1, 0\ns_mov_b32 s61, 0\ns_and_b32 {own}, {own}, 63\ns_mov_b32 s96, s57\ns_mov_b32 s97, 0\ns_lshl_b64 s[96:97], s[96:97], {own}\ns_andn2_b64 s[58:59], s[58:59], s[96:97]')
    spin(p, lab, 1, 254)
    p(f'{lab}_skip:\ns_waitcnt vmcnt(0)\ns_barrier')

class PG:
    def __init__(self, NT, NS, WF, sJ, base):
        self.NT, self.NS, self.WF, self.sJ, self.base = NT, NS, WF, sJ, base

def dma(g, first, n, sr='s[4:7]'):
    slot = (g.base + first) % 160
    assert slot + 4 * n <= 160
    L = [f's_mul_i32 s54, s{g.sJ}, {g.NS * g.NT}', f's_mul_i32 s55, s3, {n}', 's_add_u32 s54, s54, s55', f's_add_u32 s55, s55, {slot}',
         's_lshl_b32 s54, s54, 10', 's_lshl_b32 m0, s55, 10', f's_add_u32 s54, s54, {g.WF + first * 1024}']
    for k in range(n):
        if k and k % 4 == 0: L += ['s_add_u32 m0, m0, 4096', 's_add_u32 s54, s54, 4096']
        L.append(f'buffer_load_dwordx4 v1, {sr}, s54 offen offset:{1024 * (k & 3)}{SC} lds')
    return L

def emit(p, L):
    for t in L: p(t)

def spread(L, steps):
    d = {}
    for k, s_ in enumerate(steps):
        d[s_] = L[len(L) * k // len(steps): len(L) * (k + 1) // len(steps)]
    return d

def weave(code, fill, lo=0.0, hi=1.0):
    n = len(code); a_, b_ = int(n * lo), int(n * hi); out = list(code[:a_]); k = 0
    for i in range(a_, b_):
        out.append(code[i])
        e = len(fill) * (i - a_ + 1) // (b_ - a_)
        out += fill[k:e]; k = e
    return out + list(code[b_:])

STUBS = []
CT = 250
class XS:
    def __init__(self, lab, reg, addr, run, R=99):
        self.lab, self.reg, self.addr, self.run, self.R = lab, reg, addr, run, R
        self.issued = []; self.marks = {}
        self.cur = {b: 0 for b in run}
    def init(self): return [f's_mov_b32 s{r}, s{b}' for b, r in self.run.items()]
    def main(self, i):
        L = []; Q = []
        for h, (vo, b, off) in enumerate(self.addr(i)):
            k = off >> 12
            if k != self.cur[b]:
                L.append(f's_add_u32 s{self.run[b]}, s{b}, {4096 * k}'); self.cur[b] = k
            Q.append(f'buffer_load_dwordx4 {v(self.reg(i) + 4 * h, 4)}, v{vo}, s[4:7], s{self.run[b]} offen offset:{off & 4095}{SC}')
        return L + Q
    def abs(self, i):
        L = []
        for h, (vo, b, off) in enumerate(self.addr(i)):
            L += [f's_add_u32 s57, s{b}, {off & ~4095}',
                  f'buffer_load_dwordx4 {v(self.reg(i) + 4 * h, 4)}, v{vo}, s[4:7], s57 offen offset:{off & 4095}{SC}']
        return L

def chk(x):
    return [f'v_max3_u32 v{CT}, v{x}, v{x + 1}, v{x + 2}', f'v_max3_u32 v{CT + 1}, v{x + 3}, v{x + 4}, v{x + 5}',
            f'v_max3_u32 v{CT}, v{CT}, v{x + 6}, v{x + 7}', f'v_max_u32 v{CT}, v{CT}, v{CT + 1}', f'v_cmp_eq_u32 vcc, -1, v{CT}']

def stub(lab, ents):
    L = [f'{lab}:', 's_waitcnt vmcnt(0)', 's_cmp_eq_u32 s61, 0', f's_cbranch_scc1 {lab}_b', 's_sub_u32 s61, s61, 1']
    if Cfg.sslp: L.append(f's_sleep {Cfg.sslp}')
    L += ents[0][1]
    for k, (x, rl) in enumerate(ents[1:]):
        L += chk(x) + [f's_cbranch_vccz {lab}_s{k}'] + rl + [f'{lab}_s{k}:']
    L += ['s_waitcnt vmcnt(0)'] + chk(ents[0][0]) + [f's_cbranch_vccnz {lab}', f's_branch {lab}_b']
    STUBS.extend('@' + t for t in L)
    return [f'@s_cbranch_vccnz {lab}\n@{lab}_b:']

def xitems(p, xs, j):
    x = xs.main(j); xs.issued.append(j)
    def last():
        p(x[-1]); xs.marks[j] = p.mark()
    last.t = x[-1]
    return x[:-1] + [last]

def emitx(p, L):
    for t in L:
        if callable(t): t()
        else: p(t)

def edf(seq, rate, n):
    plan = {i: [] for i in range(n)}; i = 0; credit = rate
    for av, it in seq:
        c = 2 if isinstance(it, int) else (1 if isinstance(it, str) and it.startswith('buffer') else 0)
        while i < n - 1 and (av > i or credit < c - 0.999):
            i += 1; credit = min(credit, 1) + rate
        plan[i].append(it); credit -= c
    return plan

def mainloop(p, n, NT, mf, wr, xs, U, bar, extra={}, pre=None, sync={}, st={}, plan=None):
    marks = xs.marks
    ck = bar is not None
    if plan is None: plan = {i: [i + U] for i in range(n - U)}
    if not ck: emit(p, wr(0) + wr(1))
    if not xs.issued: emit(p, xs.init())
    for i in range(len(xs.issued), min(U, n)): emitx(p, xitems(p, xs, i))
    if ck:
        bar()
        emit(p, wr(0) + wr(1))
    win = lambda i: stub(f'{xs.lab}{i}', [(xs.reg(j), xs.abs(j)) for j in xs.issued if j >= i])
    if ck: p.wait_vm(marks[0]); emit(p, chk(xs.reg(0)) + win(0))
    if pre: emit(p, pre(0))
    for i in range(n):
        if ck: p(f's_waitcnt lgkmcnt({NT if i + 1 < n else 0})')
        else: p.wait_vm(marks[i], NT if i + 1 < n else 0)
        if i in sync: sync[i]()
        if i in st: stamp(p, st[i])
        fill = list(wr(i + 2) if i + 2 < n else [])
        for it in plan.get(i, []):
            if isinstance(it, int):
                assert it - xs.R < i, (it, i)
                fill += xitems(p, xs, it)
            else: fill.append(it)
        fill += extra.get(i, [])
        M = mf(i); G_ = len(M) - (5 if pre else 4) if (ck and i + 1 < n) else len(M); k = 0
        c = chk(xs.reg(i + 1)) if i + 1 < n else []
        for gi, m_ in enumerate(M):
            p(m_)
            if gi < G_:
                e = -(-len(fill) * (gi + 1) // G_)
                emitx(p, fill[k:e]); k = e
            elif gi == G_: p.wait_vm(marks[i + 1]); emit(p, c[0:2])
            elif gi == G_ + 1: emit(p, c[2:4])
            elif gi == G_ + 2: emit(p, c[4:])
            elif gi == G_ + 3:
                emit(p, win(i + 1))
                if pre: emit(p, pre(i + 1))

UNIT = """
s_sub_u32 s20, s2, 180
s_and_b32 s21, s20, 7
s_mul_i32 s21, s21, 3
s_lshr_b32 s22, s20, 3
s_add_u32 s21, s21, s22
s_cmp_lt_u32 s20, 24
s_cselect_b32 s20, s21, s20
s_add_u32 s20, s20, 20
s_lshl_b32 s20, s20, 1
s_mov_b32 s22, 0
"""
def helper(p):
    assert Cfg.daf == (1, 2, 3)
    tot = (H3F - H1F) // 1024; x = Cfg.hx2
    y = -(-(tot - 22 * x) // 160)
    assert H1F + (160 * y + 22 * x) * 1024 <= W1F
    p('helper:')
    if Cfg.ipf:
        p(f'''
        @s_getpc_b64 s[30:31]
        @hlp_pc:
        s_sub_u32 s30, s30, hlp_pc-{Cfg.kname}
        s_subb_u32 s31, s31, 0
        s_lshr_b32 s28, s2, 3
        s_lshl_b32 s28, s28, 11
        v_lshl_add_u32 v8, v0, 4, s28
        v_add_u32 v9, 1024, v8
        v_min_u32 v8, code_end-{Cfg.kname}-16, v8
        v_min_u32 v9, code_end-{Cfg.kname}-16, v9
        @s_nop 0
        @global_load_dwordx4 v[12:15], v8, s[30:31]
        @global_load_dwordx4 v[16:19], v9, s[30:31]
        ''')
    for k in range(4): p(f'v_mov_b32 v{4 + k}, -1')
    p(f'''
    v_lshlrev_b32 v1, 4, v0
    s_cmp_ge_u32 s2, 160
    s_cbranch_scc1 hlp_b
    s_add_u32 s56, s92, {EPW}
    s_addc_u32 s57, s93, 0
    s_load_dword s60, s[56:57], 0
    s_and_b32 s50, s2, 7
    s_mul_i32 s50, s50, 20
    s_lshr_b32 s51, s2, 3
    s_add_u32 s50, s50, s51
    v_lshrrev_b32 v3, 4, v0
    v_mul_u32_u24 v3, 40960, v3
    v_and_b32 v2, 15, v0
    v_lshl_add_u32 v3, v2, 4, v3
    s_lshl_b32 s28, s50, 8
    s_add_u32 s28, s28, {HQ}
    ''')
    HS = [f'buffer_store_dwordx4 v[4:7], v3, s[4:7], s28 offen{SC}\ns_add_u32 s28, s28, {4 * 40960}' for k in range(16)]
    emit(p, HS[:Cfg.hq0])
    if Cfg.ob: p('s_barrier')
    if Cfg.hdl: p(f's_sleep {Cfg.hdl}')
    srd(p, 44, 'x', 2048 * 1280)
    p('v_mul_u32_u24 v2, 2560, v0\ns_lshl_b32 s42, s50, 3')
    p('''
    s_sub_u32 s36, s50, s51
    s_and_b32 s37, s50, 0xf0
    s_max_u32 s38, s36, s37
    s_add_u32 s36, s36, 20
    s_add_u32 s37, s37, 16
    s_min_u32 s36, s36, s37
    s_sub_u32 s36, s36, s38
    s_sub_u32 s51, s50, s38
    s_cmp_eq_u32 s36, 12
    s_cselect_b32 s37, 43, 32
    s_cmp_eq_u32 s36, 8
    s_cselect_b32 s37, 64, s37
    s_cmp_eq_u32 s36, 4
    s_cselect_b32 s37, 128, s37
    s_mul_i32 s51, s51, s37
    s_lshr_b32 s51, s51, 5
    ''')
    for k in range(16):
        p(f's_add_u32 s43, s51, {k}\ns_and_b32 s43, s43, 15\ns_mul_i32 s43, s43, {128 * 1280}\ns_add_u32 s43, s43, s42')
        p(f'buffer_load_dwordx2 {v(32 + 4 * k, 2)}, v2, s[44:47], s43 offen')
        p(f'buffer_load_dwordx2 {v(32 + 4 * k + 2, 2)}, v2, s[44:47], s43 offen offset:1280')
    SL = []
    for k in range(16):
        if k % 4 == 0: SL.append(f's_mov_b32 s42, {STAT + 1024 * k}')
        SL.append(f'buffer_load_dwordx4 {v(96 + 4 * k, 4)}, v1, s[4:7], s42 offen offset:{1024 * (k & 3)}{SC}')
    p('s_waitcnt lgkmcnt(0)')
    p(TAG)
    emit(p, SL)
    for k in range(16):
        p(f's_add_u32 s43, s51, {k}\ns_and_b32 s43, s43, 15\ns_lshl_b32 s43, s43, 10\ns_add_u32 s43, s43, {XL}\nv_add_u32 v{8 + (k & 3)}, s43, v1')
        p(f'ds_write_b128 v{8 + (k & 3)}, {v(32 + 4 * k, 4)}')
    if Cfg.stamp: p('s_memrealtime s[96:97]')
    p(f's_mov_b32 s61, {Cfg.spin}\nv_add_u32 v8, {XL + 16384}, v1\nsa_loop:\nv_mov_b32 v9, 0')
    for k in range(16):
        p(f'v_xor_b32 v{97 + 4 * k}, s60, v{97 + 4 * k}\nv_xor_b32 v{99 + 4 * k}, s60, v{99 + 4 * k}\nv_or3_b32 v9, v9, v{97 + 4 * k}, v{99 + 4 * k}')
        p(f'ds_write_b128 v8, {v(96 + 4 * k, 4)} offset:{1024 * k}')
    p(f'''
    v_cmp_ne_u32 vcc, 0, v9
    s_cbranch_vccz sa_out
    s_sub_u32 s61, s61, 1
    s_cbranch_scc1 sa_out
    s_waitcnt lgkmcnt(0)
    ''')
    emit(p, SL)
    p('s_branch sa_loop\nsa_out:\ns_waitcnt lgkmcnt(0)\ns_barrier')
    emit(p, HS[Cfg.hq0:])
    p(f's_mul_i32 s28, s2, {y * 1024}\ns_add_u32 s28, s28, {H1F}')
    for k in range(y):
        if k and k % 4 == 0: p('s_add_u32 s28, s28, 4096')
        p(f'buffer_store_dwordx4 v[4:7], v1, s[4:7], s28 offen offset:{1024 * (k & 3)}{SC}')
        if k == y - 1 - Cfg.hb2: p('s_barrier')
    p(f'''
    s_lshl_b32 s56, s2, {Cfg.FS}
    s_add_u32 s56, s56, {F1}
    v_mov_b32 v8, s60
    v_mov_b32 v9, 0
    s_mov_b64 exec, 1
    s_waitcnt vmcnt(0)
    buffer_store_dword v8, v9, s[4:7], s56 offen{SC}
    s_mov_b64 exec, -1
    s_branch hlp_end
    hlp_b:
    s_cmp_ge_u32 s2, 234
    s_cbranch_scc1 hlp_end
    s_cmp_lt_u32 s2, 192
    s_cbranch_scc1 hlp_l
    {'s_barrier' if Cfg.ob else ''}
    ''')
    if Cfg.hld:
        p('hlp_l:' + UNIT + 's_mov_b32 s3, 0\nhlp_lw:')
        relayout2(p, 'la', 0)
        p('s_add_u32 s3, s3, 1\ns_cmp_lt_u32 s3, 4\ns_cbranch_scc1 hlp_lw')
    p('hlp_end:\ns_waitcnt vmcnt(0)')
    if Cfg.stamp:
        p(f's_memrealtime s[98:99]\ns_lshl_b32 s28, s2, 2\ns_add_u32 s28, s28, {DBGW + 0x20000}\nv_mov_b32 v2, 0\ns_waitcnt lgkmcnt(0)\nv_mov_b32 v3, s98\nbuffer_store_dword v3, v2, s[4:7], s28 offen\nv_mov_b32 v3, s96\nbuffer_store_dword v3, v2, s[4:7], s28 offen offset:1024')
    p('s_endpgm')

F1L = ['v_lshlrev_b32 v244, %d, v0' % Cfg.FS, f's_lshl_b32 s57, s3, {6 + Cfg.FS}', f's_add_u32 s57, s57, {F1}',
       f'buffer_load_dword v240, v244, s[4:7], s57 offen{SC}']
CW = 65536

def kgen2(p, inject, inject2):
    ACC = 24; FR = 40; Lr = 104; T = 136
    p(f'''
    s_mul_i32 s26, s3, 17408
    s_mov_b32 m0, s26
    v_and_b32 v3, 31, v0
    v_mul_u32_u24 v3, 272, v3
    v_lshrrev_b32 v4, 5, v0
    v_lshl_add_u32 v3, v4, 4, v3
    v_add_u32 v3, s26, v3
    v_mov_b32 v4, 0x3f80
    ds_write_addtid_b32 v4
    s_mul_i32 s27, s3, 4608
    s_add_u32 s27, s27, {RC}
    v_lshlrev_b32 v5, 3, v0
    v_add_u32 v5, s27, v5
    v_mov_b32 v6, 0
    v_mov_b32 v7, 0
    ds_write_b64 v5, v[6:7]
    s_mov_b32 s36, {f2u(LOG2E)}
    s_mov_b32 s37, {f2u(1 / (2 * math.pi))}
    s_mov_b32 s38, 0x41000000
    s_mov_b32 s39, 0x43800000
    v_mul_f32 v20, s36, v20
    v_exp_f32 v20, v20
    v_cvt_pk_bf16_f32 v20, v20, v20
    v_lshlrev_b32 v20, 16, v20
    v_add_f32 v22, v20, v20
    v_cmp_eq_u32 vcc, 0, v0
    v_cndmask_b32 v21, 0, v21, vcc
    ''')
    code = []; tp = [T]
    def new(n=2):
        r = tp[0]; tp[0] += n; return r
    cv = [0]; CV = 240
    def put(val, rows, neg):
        r = CV + (cv[0] % 12); cv[0] += 1
        code.append(f'v_cvt_pk_bf16_f32 v{r}, v{val}, {"-" if neg else ""}v{val + 1}')
        for row in rows: code.append(f'ds_write_addtid_b32 v{r} offset:{272 * row}')
    for st in range(3):
        tp[0] = T
        la, ai, cr, ci = [8 + 4 * st + k for k in range(4)]
        E1, E256, G0 = new(), new(), new()
        E8 = Lr
        t = new(10)
        code += [f'v_mul_f32 v{la}, s36, v{la}', f'v_exp_f32 v{la}, v{la}', f'v_cvt_pk_bf16_f32 v{la}, v{la}, v{la}',
                 f'v_lshlrev_b32 v{la}, 16, v{la}', f'v_mul_f32 v{la}, v{la}, v20', f'v_mul_f32 v{la}, -v{la}, s36',
                 f'v_mul_f32 v{ai}, v{ai}, v20', f'v_mul_f32 v{ai}, s37, v{ai}',
                 f'v_mul_f32 v{G0}, v{cr}, v22', f'v_mul_f32 v{G0 + 1}, v{ci}, v22']
        for k, (E, sc) in enumerate(((E8, 's38'), (E1, None), (E256, 's39'))):
            m_, a_ = t + 3 * k, t + 3 * k + 1
            if sc:
                code += [f'v_mul_f32 v{m_}, {sc}, v{la}', f'v_mul_f32 v{a_}, {sc}, v{ai}', f'v_exp_f32 v{m_}, v{m_}', f'v_fract_f32 v{a_}, v{a_}']
            else:
                code += [f'v_exp_f32 v{m_}, v{la}', f'v_fract_f32 v{a_}, v{ai}']
            code += [f'v_cos_f32 v{E}, v{a_}', f'v_sin_f32 v{E + 1}, v{a_}',
                     f'v_mul_f32 v{E}, v{E}, v{m_}', f'v_mul_f32 v{E + 1}, v{E + 1}, v{m_}']
        Lx = lambda j: Lr + 2 * (j - 1)
        put(E8, [1], False)
        put(G0, [32 + r for r in HROW[0]], True)
        tmp = [new() for _ in range(6)]; ti = [0]
        def nt():
            r = tmp[ti[0] % len(tmp)]; ti[0] += 1; return r
        E2, E4 = new(), new()
        G = {0: G0}
        hi = [(E2, E1, E1, None), (E4, E2, E2, None)]
        HL = ((1, 0, E1), (2, 0, E2), (3, 1, E2), (4, 0, E4), (5, 1, E4), (6, 2, E4), (7, 3, E4), (8, 0, E8),
              (256, 0, E256), (264, 8, E256), (258, 2, E256), (260, 4, E256), (262, 6, E256),
              (512, 256, E256), (520, 264, E256), (516, 260, E256), (768, 512, E256), (776, 520, E256), (772, 516, E256),
              (1024, 768, E256), (1032, 776, E256), (1280, 1024, E256), (1288, 1032, E256),
              (1536, 1280, E256), (1544, 1288, E256), (1792, 1536, E256), (1800, 1544, E256))
        used = {a_ for _, a_, _ in HL}
        for h_, a_, b_ in HL:
            G[h_] = new() if h_ in used else None
            hi.append((G[h_], G[a_], b_, h_))
        lo = []
        for j in range(2, 32):
            pw = 1 << (j.bit_length() - 1)
            a_, b_ = (pw // 2, pw // 2) if j == pw else (j - pw, pw)
            lo.append((Lx(j) if j <= 16 else None, Lx(a_), Lx(b_), j))
        for k in range(max(len(lo), len(hi))):
            if k < len(lo):
                D_, X_, Y_, j = lo[k]; D_ = nt() if D_ is None else D_
                code += cmul(D_, X_, Y_); put(D_, [j], False)
            if k < len(hi):
                D_, X_, Y_, h_ = hi[k]; D_ = nt() if D_ is None else D_
                code += cmul(D_, X_, Y_)
                if h_ in HROW: put(D_, [32 + r for r in HROW[h_]], True)
        assert tp[0] <= XP, tp[0]
        for m in range(8):
            code.append(f'ds_read_b128 {v(FR + 4 * m, 4)}, v3 offset:{32 * 272 + 32 * m}')
            code.append(f'ds_read_b128 {v(FR + 32 + 4 * m, 4)}, v3 offset:{32 * m}')
        for m in range(8):
            c = '0' if (st == 0 and m == 0) else v(ACC, 16)
            code.append(f'v_mfma_f32_32x32x16_bf16 {v(ACC, 16)}, {v(FR + 4 * m, 4)}, {v(FR + 32 + 4 * m, 4)}, {c}')
    S = sched(code)
    k = int(len(S) * Cfg.inj)
    W_ = weave(S[:k], inject2, Cfg.i2a, Cfg.i2b)
    if Cfg.stamp:
        emit(p, W_[:12]); stamp(p, 25); emit(p, W_[12:len(W_) // 2]); stamp(p, 26); W_ = W_[len(W_) // 2:]
    emit(p, W_ + inject + S[k:])
    q = lambda i: f'v{ACC + i}'
    O = FR
    p(f'''
    v_lshlrev_b32 v5, 4, v0
    v_add_u32 v5, s27, v5
    v_lshrrev_b32 v6, 5, v0
    v_lshl_add_u32 v6, v6, 9, v5
    s_mov_b32 s40, 0xaaaaaaaa
    s_mov_b32 s41, 0xaaaaaaaa
    v_add_f32 {q(0)}, {q(0)}, v21
    v_cvt_pk_bf16_f32 v{O}, {q(7)}, {q(6)}
    v_cvt_pk_bf16_f32 v{O + 1}, {q(5)}, {q(4)}
    v_cvt_pk_bf16_f32 v{O + 2}, {q(3)}, {q(2)}
    v_cvt_pk_bf16_f32 v{O + 3}, {q(1)}, {q(0)}
    ds_write_b128 v5, {v(O, 4)} offset:512
    v_cvt_pk_bf16_f32 v{O + 4}, {q(14)}, {q(14)}
    v_cvt_pk_bf16_f32 v{O + 5}, {q(13)}, {q(13)}
    v_cvt_pk_bf16_f32 v{O + 6}, {q(13)}, {q(12)}
    v_cvt_pk_bf16_f32 v{O + 7}, {q(12)}, {q(12)}
    ds_write_b128 v5, {v(O + 4, 4)} offset:{96 * 16}
    ''')
    for k in range(2):
        a_, b_ = q(8 + 2 * k), q(9 + 2 * k); o = O + 8 + 4 * k
        p(f'''
        v_cndmask_b32 v7, {a_}, {b_}, s[40:41]
        v_cvt_pk_bf16_f32 v{o}, {b_}, {b_}
        v_cvt_pk_bf16_f32 v{o + 1}, {b_}, v7
        v_cvt_pk_bf16_f32 v{o + 2}, {a_}, {a_}
        v_mov_b32 v{o + 3}, v{o + 2}
        ds_write_b128 v6, {v(o, 4)} offset:{160 * 16 + 512 * k}
        ''')

def normalize(p):
    M0 = 40960
    p(f'''
    s_lshl_b32 s46, s3, 10
    s_add_u32 m0, s46, {M0}
    s_add_u32 s46, s46, {UC + 4160 + 30}
    v_lshl_add_u32 v8, v0, 2, s46
    s_mov_b32 s48, 0xffff0000
    ''')
    code = []
    for k in range(4):
        B = 64 + 32 * (k & 1)
        for pp in range(2):
            ms = SR + 4 * k + 2 * pp; rn = B + 16 + 2 * pp; F = B + 4 * pp; x = XP + 4 * k + 2 * pp
            code += [f'v_and_b32 v{rn}, s48, v{ms}', f'v_rcp_f32 v{rn}, v{rn}', f'v_lshlrev_b32 v{ms}, 16, v{ms}',
                     f'v_mul_f32 v{rn + 1}, -v{ms}, v{rn}'] + unpack(F, x, 48) + unpack(F + 2, x + 1, 48)
            for h_ in range(2):
                code.append(f'v_pk_fma_f32 {v(F + 2 * h_, 2)}, {v(F + 2 * h_, 2)}, {v(rn, 2)}, {v(rn, 2)} op_sel:[0,0,1] op_sel_hi:[1,0,1]')
        for c in range(4):
            E = B + 8 + c
            code += [f'v_cvt_pk_bf16_f32 v{E}, v{B + c}, v{B + 4 + c}',
                     f'ds_write_addtid_b32 v{E} offset:{UC + 32 - M0 + c * CHS + 256 * k}',
                     f'ds_write_b16 v8, v{E} offset:{c * CHS + 256 * k}',
                     f'ds_write_b16_d16_hi v8, v{E} offset:{c * CHS + 256 * k + 2}']
    emit(p, sched(code))

def conv2(p, fill):
    ACC = 24; KF = [56, 88]; UF = [120, 152]
    p(f'''
    v_and_b32 v8, 15, v0
    v_lshrrev_b32 v9, 4, v0
    v_and_b32 v10, 1, v0
    v_mul_u32_u24 v10, 4158, v10
    v_lshlrev_b32 v11, 1, v8
    v_sub_u32 v11, v11, v10
    v_lshl_add_u32 v11, v9, 4, v11
    s_mul_i32 s46, s3, {CHS}
    s_add_u32 s47, s46, {UC + 4160}
    v_add_u32 v11, s47, v11
    v_add_u32 v12, 1024, v11
    v_add_u32 v13, 2048, v11
    v_add_u32 v14, 3072, v11
    v_lshlrev_b32 v15, 5, v8
    v_lshlrev_b32 v16, 4, v9
    v_sub_u32 v15, v15, v16
    s_mul_i32 s47, s3, 4608
    s_add_u32 s47, s47, {RC + 16 + 512 - 448}
    v_add_u32 v15, s47, v15
    s_waitcnt lgkmcnt(0)
    s_barrier
    ''')
    if not Cfg.xh: flag_store(p, 'pba', [('s2', F1)], 245)
    stamp(p, 4)
    def loads(j0):
        b = j0 & 1; out = []
        kf = lambda d: f'ds_read_b128 {v(KF[b] + 4 * d, 4)}, v15 offset:{512 * d - 64 * j0 + 448}'
        out.append(kf(0))
        for jp in range(8):
            o = 128 * (jp & 1) + 16 * j0
            out.append(f'ds_read2_b32 {v(UF[b] + 4 * jp, 2)}, v{11 + (jp >> 1)} offset0:{o} offset1:{o + 1}')
            out.append(f'ds_read2_b32 {v(UF[b] + 4 * jp + 2, 2)}, v{11 + (jp >> 1)} offset0:{o + 2} offset1:{o + 3}')
        out += [kf(d) for d in range(1, 8)]
        return out
    emit(p, loads(0))
    p(f'''
    v_lshlrev_b32 v16, 2, v9
    v_lshl_add_u32 v16, v8, 4, v16
    s_mul_i32 s47, s3, {CHY}
    s_add_u32 s47, s47, {UC}
    v_add_u32 v16, s47, v16
    v_bfe_u32 v17, v0, 2, 2
    v_mul_u32_u24 v17, {CHY}, v17
    v_and_b32 v18, 3, v0
    v_lshl_add_u32 v17, v18, 3, v17
    v_lshl_add_u32 v17, v9, 5, v17
    s_lshl_b32 s47, s3, 10
    s_add_u32 s47, s47, {UC}
    v_add_u32 v17, s47, v17
    v_mul_u32_u24 v18, 40960, v9
    v_lshl_add_u32 v18, v8, 4, v18
    s_mul_i32 s44, s3, {16 * 40960}
    s_lshl_b32 s45, s50, 8
    s_add_u32 s44, s44, s45
    s_add_u32 s44, s44, {HQ}
    ''')
    order = []
    for d in range(8):
        Is = list(range(d, 8))
        if d == 5: Is = [7, 5, 6]
        if d == 6: Is = [7, 6]
        order += [(I, d) for I in Is]
    F = spread(fill, range(Cfg.jc, 8))
    for j0 in range(8):
        b = j0 & 1
        nx = loads(j0 + 1) if j0 < 7 else []
        if j0: p('s_waitcnt lgkmcnt(0)')
        if j0 == Cfg.jc:
            p('''
            v_cmp_ne_u32 vcc, s60, v253
            s_mov_b32 s8, s4
            s_mov_b32 s9, s5
            s_mov_b32 s11, s7
            s_cmp_eq_u64 vcc, 0
            s_cselect_b32 s10, s6, 0
            ''')
        fl = (F1L if j0 == Cfg.jf else []) + F.get(j0, []); k0 = 0
        if j0 == Cfg.jl: p(f'buffer_load_dword v253, v253, s[4:7], s49 offen{SC}')
        for k, (I, d) in enumerate(order):
            c = v(ACC + 4 * I, 4)
            src = '0' if (j0 == 0 and d == 0) else c
            p(f'{MF} {c}, {v(UF[b] + 4 * (I - d), 4)}, {v(KF[b] + 4 * d, 4)}, {src}')
            if k < len(nx): p(nx[k])
            if k >= Cfg.cf0:
                e = len(fl) * (k - Cfg.cf0 + 1) // (36 - Cfg.cf0)
                emit(p, fl[k0:e]); k0 = e
    stamp(p, 5)
    for I in (0, 1, 2, 3, 4, 5, 6, 7):
        o = 56 + 2 * I
        p(f'v_cvt_pk_bf16_f32 v{o}, v{ACC + 4 * I}, v{ACC + 4 * I + 2}')
        p(f'v_cvt_pk_bf16_f32 v{o + 1}, v{ACC + 4 * I + 1}, v{ACC + 4 * I + 3}')
        p(f'ds_write2st64_b32 v16, v{o}, v{o + 1} offset0:{2 * I} offset1:{2 * I + 1}')
    U_ = 128
    for r in range(16): emit(p, unpack(U_ + 2 * r, XP + r, 48))
    p(f'''
    s_lshl_b32 s57, s3, 2
    s_add_u32 s57, s57, {CW}
    v_mov_b32 v242, s57
    v_mov_b32 v243, {CW}
    v_cmp_ne_u32 vcc, s60, v240
    s_cmp_eq_u32 s10, 0
    s_cselect_b32 s57, 1, vcc_lo
    s_or_b32 s57, s57, vcc_hi
    v_mov_b32 v241, s57
    ds_write_b32 v242, v241
    s_waitcnt lgkmcnt(0)
    s_barrier
    ds_read_b128 v[240:243], v243
    ''')
    Y = 72
    for k in range(4):
        for pp in range(2):
            p(f'ds_read_b64_tr_b16 {v(Y + 4 * k + 2 * pp, 2)}, v17 offset:{512 * (k >> 1) + 256 * pp + 128 * (k & 1)}')
    code = []
    for k in range(4):
        for r in range(4 * k, 4 * k + 4):
            t = 96 + 2 * r
            code += unpack(t, Y + r, 48) + [f'v_pk_add_f32 {v(t, 2)}, {v(t, 2)}, {v(U_ + 2 * r, 2)}', f'v_cvt_pk_bf16_f32 v{Y + r}, v{t}, v{t + 1}']
        code.append(f'buffer_store_dwordx4 {v(Y + 4 * k, 4)}, v18, s[4:7], s44 offen{SC}')
        if k < 3: code.append(f's_add_u32 s44, s44, {4 * 40960}')
    emit(p, code)

def ln_stats(p, sl, part):
    XS = [8, 100]; F = 32
    p(f'''
    v_lshrrev_b32 v1, 4, v0
    v_and_b32 v2, 15, v0
    s_lshl_b32 s24, s{sl}, 2
    s_add_u32 s24, s24, s3
    ''')
    if part == 0:
        srd(p, 8, 'x', 2048 * 1280)
        p(f'''
        v_mul_u32_u24 v3, 1280, v1
        v_lshl_add_u32 v3, v2, 4, v3
        s_mul_i32 s24, s24, {8 * 1280}
        ''')
        for n in range(2):
            if n: p('s_add_u32 s24, s24, 5120')
            for i in range(5):
                p(f'buffer_load_dwordx4 {v(XS[n] + 4 * i, 4)}, v3, s[8:11], s24 offen offset:{256 * i}')
        return
    p(f'''
    s_lshl_b32 s25, s24, 6
    s_add_u32 s25, s25, {STAT}
    v_lshl_add_u32 v4, v2, 2, v1
    v_lshlrev_b32 v4, 3, v4
    s_mov_b32 s28, 0xffff0000
    ''')
    for n in range(2):
        X = XS[n]
        for i in range(5):
            for d in range(4):
                k = 4 * i + d
                emit(p, unpack(F + 2 * k, X + k, 28))
            if i == 0:
                p(f'v_pk_add_f32 v[72:73], {v(F, 2)}, {v(F + 2, 2)}')
                p(f'v_pk_add_f32 v[74:75], {v(F + 4, 2)}, {v(F + 6, 2)}')
            else:
                for d in range(4):
                    a_ = 72 + 2 * (d & 1)
                    p(f'v_pk_add_f32 {v(a_, 2)}, {v(a_, 2)}, {v(F + 8 * i + 2 * d, 2)}')
        p('v_pk_add_f32 v[72:73], v[72:73], v[74:75]')
        p('v_add_f32 v72, v72, v73')
        row16_reduce(p, 72)
        p(f'v_mul_f32 v72, {f2u(1 / 640)}, v72')
        for k in range(20):
            p(f'v_pk_add_f32 {v(F + 2 * k, 2)}, {v(F + 2 * k, 2)}, v[72:73] op_sel_hi:[1,0] neg_lo:[0,1] neg_hi:[0,1]')
        for k in range(20):
            a_ = 74 + 2 * (k & 1)
            if k < 2: p(f'v_pk_mul_f32 {v(a_, 2)}, {v(F + 2 * k, 2)}, {v(F + 2 * k, 2)}')
            else: p(f'v_pk_fma_f32 {v(a_, 2)}, {v(F + 2 * k, 2)}, {v(F + 2 * k, 2)}, {v(a_, 2)}')
        p('v_pk_add_f32 v[74:75], v[74:75], v[76:77]')
        p('v_add_f32 v74, v74, v75')
        row16_reduce(p, 74)
        p(f'''
        v_mul_f32 v74, {f2u(1 / 640)}, v74
        v_cvt_pk_bf16_f32 v74, v74, v74
        v_lshlrev_b32 v74, 16, v74
        v_add_f32 v74, {f2u(EPS)}, v74
        v_cvt_pk_bf16_f32 v74, v74, v74
        v_lshlrev_b32 v74, 16, v74
        v_sqrt_f32 v74, v74
        v_cvt_pk_bf16_f32 v{78 + n}, v72, v74
        ''')
    p(TAG)
    p(f'''
    v_cmp_eq_u32 vcc, 0, v2
    v_cndmask_b32 v78, v79, v78, vcc
    v_mov_b32 v79, s60
    s_mov_b32 s30, 0x00030003
    s_mov_b32 s31, 0x00030003
    s_mov_b64 exec, s[30:31]
    buffer_store_dwordx2 v[78:79], v4, s[4:7], s25 offen{SC}
    s_mov_b64 exec, -1
    ''')

def relayout2(p, lab, part, *a):
    p(f'''
    s_cmp_lt_u32 s20, 20
    s_cbranch_scc1 {lab}_w1
    s_cmp_lt_u32 s20, 40
    s_cbranch_scc1 {lab}_w2
    s_cmp_lt_u32 s20, 88
    s_cbranch_scc1 {lab}_w3
    ''')
    def params(name, rs, nrows, u0, dest, nt, ns, sp, cs):
        srd(p, 8, name, nrows * rs)
        if name == 'w4':
            p(f'''
            s_sub_u32 s24, s20, 88
            s_mul_i32 s35, s24, 205
            s_lshr_b32 s35, s35, 12
            s_mul_i32 s25, s35, 20
            s_sub_u32 s24, s24, s25
            s_lshl_b32 s35, s35, 4
            s_add_u32 s35, s35, s3
            s_lshl_b32 s25, s35, 5
            s_mov_b32 s38, 4
            ''')
        else:
            p(f's_sub_u32 s24, s20, {u0}\ns_mov_b32 s35, s3\ns_mov_b32 s38, 5')
            if sp: p('s_lshr_b32 s25, s3, 1\ns_mul_i32 s25, s25, 80\ns_and_b32 s26, s3, 1\ns_lshl_b32 s26, s26, 5\ns_add_u32 s25, s25, s26')
            else: p('s_lshl_b32 s25, s3, 5')
        p(f's_mul_i32 s25, s25, {rs}\ns_mov_b32 s26, {(160 if sp else 128) * rs}')
        if sp: p(f's_mul_i32 s27, s3, {160 * rs}\ns_add_u32 s27, s27, {64 * rs}')
        else: p(f's_add_u32 s27, s25, {512 * rs}')
        P = nt * 1024
        if name == 'w2':
            p(f'''
            s_lshl_b32 s35, s3, 1
            s_mov_b32 s39, {8 * P}
            s_mov_b32 s40, {(-7 * P) & 0xffffffff}
            s_and_b32 s41, s3, 1
            s_lshl_b32 s41, s41, 1
            s_lshr_b32 s43, s3, 1
            s_add_u32 s41, s41, s43
            s_add_u32 s41, s41, 7
            s_sub_u32 s41, s41, s35
            s_mul_i32 s41, s41, {P}
            ''')
        else:
            p(f's_mov_b32 s39, {4 * P}\ns_mov_b32 s40, {4 * P}\ns_mov_b32 s41, {4 * P}')
        p('s_mov_b32 s23, s39')
        if name == 'w4' and Cfg.ko4:
            for g_ in range(48): assert (g_ * 86) >> 8 == g_ // 3
            p(f'''
            s_mul_i32 s41, s35, 86
            s_lshr_b32 s41, s41, 8
            s_mul_i32 s43, s41, 3
            s_sub_u32 s43, s35, s43
            s_lshl_b32 s35, s43, 4
            s_add_u32 s35, s35, s41
            s_mov_b32 s41, {17 * P}
            s_cmp_eq_u32 s43, 2
            s_cselect_b32 s39, {(-30 * P) & 0xffffffff}, s41
            s_cmp_eq_u32 s43, 1
            s_cselect_b32 s40, {(-30 * P) & 0xffffffff}, s41
            s_cmp_eq_u32 s43, 0
            s_cselect_b32 s23, {(-30 * P) & 0xffffffff}, s41
            ''')
        p(f'''
        s_mov_b32 s28, {(8 if sp else 16) * rs}
        s_mov_b32 s29, {(80 if sp else 8) * rs}
        s_mov_b32 s31, {rs}
        s_mov_b32 s32, {dest}
        s_mov_b32 s33, {nt}
        s_mov_b32 s34, {ns * nt}
        s_mov_b32 s36, {cs}
        s_mov_b32 s37, {205 if nt == 5 else 171}
        ''')
    for g in range(40): assert (g * 205) >> 10 == g // 5
    for g in range(96): assert (g * 171) >> 10 == g // 6
    for g in range(60): assert (g * 205) >> 12 == g // 20
    params('w4', 1280, 1536, 88, W4F, 5, 48, False, 0); p(f's_branch {lab}_go')
    p(f'{lab}_w1:'); params('w1', 1280, 640, 0, W1F, 5, 20, False, CS1); p(f's_branch {lab}_go')
    p(f'{lab}_w2:'); params('w2', 1280, 640, 20, W2F, 5, 20, True, 0); p(f's_branch {lab}_go')
    p(f'{lab}_w3:'); params('w3', 3072, 640, 40, W3F, 6, 20, True, CS3)
    p(f'{lab}_go:')
    if part == 0: rl_load(p, lab)
    else: rl_store(p, lab, *a)

def rl_load(p, lab):
    p(f'''
    v_lshrrev_b32 v3, 1, v0
    v_lshrrev_b32 v4, 4, v0
    v_xor_b32 v3, v3, v4
    v_and_b32 v3, 1, v3
    v_and_b32 v4, 1, v0
    v_lshl_add_u32 v3, v3, 1, v4
    s_lshl_b32 s42, s24, 6
    v_lshl_add_u32 v3, v3, 4, s42
    v_lshrrev_b32 v1, 2, v0
    v_mul_lo_u32 v1, v1, s31
    v_add_u32 v1, v1, v3
    v_bfe_u32 v2, v0, 2, 3
    v_mul_lo_u32 v2, v2, s31
    v_lshrrev_b32 v4, 5, v0
    v_mul_lo_u32 v4, v4, s29
    v_add3_u32 v2, v2, v4, v3
    s_mul_i32 s42, s3, 10240
    s_add_u32 m0, s42, s22
    s_lshl_b32 s43, s31, 4
    ''')
    def ld(va, so):
        return f'''
        buffer_load_dwordx4 {va}, s[8:11], {so} offen lds
        s_add_u32 m0, m0, {49152 - 64}
        buffer_load_dwordx4 {va}, s[8:11], {so} offen offset:64 lds
        s_sub_u32 m0, m0, {49152 - 64 - 1024}
        '''
    for i in range(5):
        if i == 4:
            p(f's_cmp_eq_u32 s38, 4\ns_cbranch_scc1 {lab}_ld_done')
            p(ld('v2', 's27')); p('s_add_u32 s27, s27, s28'); p(ld('v2', 's27'))
        else:
            p(ld('v1', 's25')); p('s_add_u32 s30, s25, s43'); p(ld('v1', 's30')); p('s_add_u32 s25, s25, s26')
    p(f'{lab}_ld_done:')

def rl_store(p, lab, pre=None, mid=None, post=None):
    p(f'''
    s_mul_i32 s42, s3, 10240
    v_lshrrev_b32 v2, 2, v0
    v_bfe_u32 v3, v0, 4, 1
    v_and_b32 v9, 3, v0
    v_lshlrev_b32 v9, 3, v9
    v_lshl_add_u32 v9, v2, 6, v9
    v_add_u32 v9, s42, v9
    v_lshlrev_b32 v8, 4, v0
    v_mov_b32 v10, 0x3f803f80
    v_mov_b32 v11, 0x3f803f80
    v_mov_b32 v12, 0x3f803f80
    v_mov_b32 v13, 0x3f803f80
    s_mul_i32 s43, s35, s33
    ''')
    for t in range(4):
        if t < 2: p(f'v_xor_b32 v{4 + t}, {t}, v3\nv_lshl_add_u32 v{4 + t}, v{4 + t}, 5, v9')
        p(f'''
        s_lshl_b32 s48, s24, 1
        s_add_u32 s48, s48, {t}
        s_mul_i32 s49, s48, s37
        s_lshr_b32 s49, s49, 10
        s_mul_i32 s46, s49, s33
        s_sub_u32 s48, s48, s46
        s_mul_i32 s49, s49, s34
        s_add_u32 s48, s48, s49
        s_add_u32 s48, s48, s43
        s_lshl_b32 s48, s48, 10
        s_add_u32 s{12 + t}, s48, s32
        ''')
    CSL = 40960
    p(f'''
    s_lshl_b32 s48, s3, 8
    s_add_u32 s48, s48, {CSL}
    v_and_b32 v2, 48, v0
    v_add_u32 v2, s48, v2
    s_mov_b32 s46, 0x00010001
    s_mov_b32 s47, 0x00010001
    v_lshlrev_b32 v6, 2, v0
    v_add_u32 v7, {CSL}, v6
    s_lshl_b32 s48, s24, 7
    s_add_u32 s48, s48, s36
    ''')
    if pre: pre()
    p('s_barrier')
    stamp(p, 27)
    if mid: mid()
    def rd(i):
        R = 32 + 16 * i
        for t in range(4):
            p(f'ds_read_b64_tr_b16 {v(R + 4 * t, 2)}, v{4 + (t & 1)} offset:{2048 * i + 49152 * (t >> 1)}')
            p(f'ds_read_b64_tr_b16 {v(R + 4 * t + 2, 2)}, v{4 + (t & 1)} offset:{2048 * i + 1024 + 49152 * (t >> 1)}')
    for i in range(5): rd(i)
    for i in range(5):
        if i == 4: p(f's_cmp_eq_u32 s38, 4\ns_cbranch_scc1 {lab}_st_done')
        R = 32 + 16 * i
        for t in range(4):
            p(f'buffer_store_dwordx4 {v(R + 4 * t, 4)}, v8, s[4:7], s{12 + t} offen{SC}')
            if i < 4: p(f's_add_u32 s{12 + t}, s{12 + t}, s{(39, 40, 23, 41)[i]}')
            p(f'{MF} {v(16 + 4 * t, 4)}, {v(R + 4 * t, 4)}, v[10:13], {v(16 + 4 * t, 4) if i else 0}')
    p(f'{lab}_st_done:')
    stamp(p, 24)
    p(f'''
    s_cmp_eq_u32 s36, 0
    s_cbranch_scc1 {lab}_done
    s_mov_b64 exec, s[46:47]
    ds_write_b128 v2, v[16:19]
    ds_write_b128 v2, v[20:23] offset:64
    ds_write_b128 v2, v[24:27] offset:128
    ds_write_b128 v2, v[28:31] offset:192
    s_mov_b64 exec, -1
    s_waitcnt lgkmcnt(0)
    s_barrier
    s_cmp_lg_u32 s3, 0
    s_cbranch_scc1 {lab}_done
    ds_read_b32 v4, v7
    ds_read_b32 v5, v7 offset:256
    ds_read_b32 v8, v7 offset:512
    ds_read_b32 v9, v7 offset:768
    v_add_f32 v4, v4, v5
    v_add_f32 v8, v8, v9
    v_add_f32 v4, v4, v8
    buffer_store_dword v4, v6, s[4:7], s48 offen{SC}
    {lab}_done:
    ''')
    if post: post()

def build(dbg=False):
    Cfg.stamp = dbg
    p = Prog()
    g1 = PG(5, 20, W1F, 25, 120); g2 = PG(5, 20, W2F, 25, 60); g3 = PG(6, 20, W3F, 53, 0); g4 = PG(5, 48, W4F, 25, 120)
    prologue(p, 256, 'k')
    p('s_cmp_eq_u32 s3, 4\ns_cbranch_scc1 helper')
    if dbg: p('v_mov_b32 v255, 0')
    stamp(p, 0)
    if dbg: p('s_memtime s[98:99]\ns_waitcnt lgkmcnt(0)\nv_writelane_b32 v255, s98, 30')
    p(f'''
    s_add_u32 s56, s92, {EPW}
    s_addc_u32 s57, s93, 0
    s_load_dword s60, s[56:57], 0
    s_cmp_ge_u32 s2, 160
    s_cbranch_scc1 role_b
    ''')
    def ids():
        p('''
        s_lshr_b32 s28, s2, 3
        s_and_b32 s29, s2, 7
        s_and_b32 s25, s28, 7
        s_lshr_b32 s24, s28, 3
        s_lshl_b32 s30, s29, 2
        s_add_u32 s24, s24, s30
        s_lshl_b32 s62, s24, 3
        s_add_u32 s62, s62, s25
        s_lshl_b32 s24, s24, 2
        s_add_u32 s24, s24, s3
        s_and_b32 s53, s28, 15
        s_lshr_b32 s52, s28, 4
        s_lshl_b32 s30, s29, 1
        s_add_u32 s52, s52, s30
        s_lshl_b32 s63, s52, 4
        s_add_u32 s63, s63, s53
        s_lshl_b32 s52, s52, 2
        s_add_u32 s52, s52, s3
        s_lshl_b32 s52, s52, 1
        s_and_b32 s51, s3, 1
        v_lshlrev_b32 v1, 4, v0
        ''')
    W1DMA = dma(g1, 0, 10) + dma(g1, 40, 15)
    p('s_and_b32 s50, s2, 7\ns_mul_i32 s50, s50, 20\ns_lshr_b32 s51, s2, 3\ns_add_u32 s50, s50, s51')
    emit_kgen_loads(p, 50)
    if Cfg.pfw:
        p(f'''
        s_cmp_ge_u32 s3, {Cfg.pfw}
        s_cbranch_scc1 pfw_end
        s_cmp_eq_u32 s3, 1
        s_cselect_b64 s[44:45], s[82:83], s[80:81]
        s_cmp_eq_u32 s3, 2
        s_cselect_b64 s[44:45], s[84:85], s[44:45]
        s_cmp_eq_u32 s3, 3
        s_cselect_b64 s[44:45], s[86:87], s[44:45]
        s_cmp_lt_u32 s3, 2
        s_cselect_b32 s43, 39, {Cfg.pf34 - 1}
        s_mov_b32 s47, 0x20000
        s_add_u32 s42, s43, 1
        s_mul_i32 s46, s42, 20480
        s_mul_i32 s42, s42, s2
        s_lshl_b32 s42, s42, 7
        v_min_u32 v252, s43, v0
        v_lshlrev_b32 v252, 7, v252
        buffer_load_dword v254, v252, s[44:47], s42 offen
        pfw_end:
        ''')
    if Cfg.ob: p('s_barrier')
    p(f'''
    s_cmp_lg_u32 s3, 0
    s_cbranch_scc1 nozero
    v_lshrrev_b32 v5, 4, v0
    v_mul_u32_u24 v5, {CHS}, v5
    v_bfe_u32 v6, v0, 3, 1
    v_mul_u32_u24 v6, 4160, v6
    v_and_b32 v7, 7, v0
    v_lshl_add_u32 v5, v7, 2, v5
    v_add3_u32 v5, v5, v6, v2
    v_add_u32 v5, {UC}, v5
    ds_write_b32 v5, v2
    nozero:
    ''')
    stamp(p, 1)
    assert Cfg.xh
    kgen2(p, [], [])
    p(TAG)
    stamp(p, 2)
    ids()
    def w1flags():
        p(f'''
        s_mul_i32 s56, s25, 5
        s_lshr_b32 s56, s56, 1
        s_lshl_b32 s56, s56, {Cfg.FS}
        s_add_u32 s56, s56, {F0}
        v_min_u32 v253, 2, v0
        v_lshlrev_b32 v253, {Cfg.FS}, v253
        s_mov_b64 s[58:59], 7
        ''')
    if Cfg.xh:
        p(f's_lshl_b32 s46, s3, 12\ns_add_u32 s46, s46, {XL}\nv_add_u32 v8, s46, v1\ns_barrier')
        stamp(p, 3)
        for k in range(4): p(f'ds_read_b128 {v(SR + 4 * k, 4)}, v8 offset:{16384 + 1024 * k}\nds_read_b128 {v(XP + 4 * k, 4)}, v8 offset:{1024 * k}')
    normalize(p)
    w1flags()
    p('s_mov_b32 s49, s56')
    conv2(p, dma(g1, 0, 10, 's[8:11]') + dma(g1, 40, 15, 's[8:11]'))
    stamp(p, 6)
    p('''
    v_or3_b32 v240, v240, v241, v242
    v_or_b32 v240, v240, v243
    v_cmp_ne_u32 vcc, 0, v240
    s_cbranch_vccz join1
    s_branch slow1
    ''')
    p('role_b:')
    p('s_sub_u32 s21, s2, 192\ns_cmp_lt_u32 s2, 192\ns_cbranch_scc1 rl_c')
    ln_stats(p, 21, 0)
    if Cfg.ob: p('s_barrier')
    ln_stats(p, 21, 1)
    stamp(p, 1)
    p('s_cmp_lt_u32 s2, 234\ns_cbranch_scc1 rl_a')
    if Cfg.pf3:
        srd(p, 8, 'w3', 640 * 3072)
        p('s_sub_u32 s20, s2, 234\ns_lshl_b32 s20, s20, 2\ns_add_u32 s20, s20, s3\ns_mul_i32 s20, s20, 192 * 128\nv_lshlrev_b32 v1, 7, v0')
        for k in range(3): p(f'buffer_load_dword v{8 + k}, v1, s[8:11], s20 offen\ns_add_u32 s20, s20, 8192')
    x_ = Cfg.hx2; y_ = -(-((H3F - H1F) // 1024 - 22 * x_) // 160)
    p(f's_lshl_b32 s28, s2, 2\ns_add_u32 s28, s28, s3\ns_mul_i32 s28, s28, {x_ * 256}\ns_add_u32 s28, s28, {H1F + (160 * y_ - 234 * x_) * 1024}\nv_lshlrev_b32 v1, 4, v0')
    for k in range(4): p(f'v_mov_b32 v{4 + k}, -1')
    for k in range(x_ // 4):
        if k and k % 4 == 0: p('s_add_u32 s28, s28, 4096')
        p(f'buffer_store_dwordx4 v[4:7], v1, s[4:7], s28 offen offset:{1024 * (k & 3)}{SC}')
    p('s_waitcnt vmcnt(0)\ns_barrier')
    flag_store(p, 'pbq', [('s2', F1)])
    p('s_branch rl_end\nrl_c:')
    p(TAG)
    p('rl_a:' + UNIT)
    assert Cfg.hld
    flag_store(p, 'pbt', [('s2', F1)])
    def pre():
        ids(); w1flags()
        p('v_mov_b32 v240, s60\nv_mov_b32 v241, 45072\ns_cmp_lg_u32 s3, 0\ns_cbranch_scc1 rl_tg\nds_write_b32 v241, v240\ns_waitcnt lgkmcnt(0)\nrl_tg:')
    def mid(): p(f'ds_read_b32 v240, v241\nbuffer_load_dword v253, v253, s[4:7], s56 offen{SC}\nv_readfirstlane_b32 s60, v240')
    def post():
        p(f'''
        v_cmp_ne_u32 vcc, s60, v253
        s_or_b32 s57, vcc_lo, vcc_hi
        v_mov_b32 v241, s57
        s_lshl_b32 s57, s3, 2
        s_add_u32 s57, s57, 45056
        v_mov_b32 v242, s57
        v_mov_b32 v243, 45056
        ds_write_b32 v242, v241
        s_waitcnt lgkmcnt(0)
        s_barrier
        ds_read_b128 v[240:243], v243
        s_add_u32 s21, s20, 1
        v_or3_b32 v240, v240, v241, v242
        v_or_b32 v240, v240, v243
        v_cmp_ne_u32 vcc, 0, v240
        s_cbranch_vccnz rl_late
        s_barrier
        ''')
        emit(p, W1DMA)
        p('s_waitcnt vmcnt(25)\ns_barrier')
        flag_store(p, 'pbs', [('s20', F0), ('s21', F0)])
        p('s_branch rl_f1\nrl_late:')
    relayout2(p, 'rl', 1, pre, mid, post)
    p('s_waitcnt vmcnt(0)\ns_barrier')
    flag_store(p, 'pbr', [('s20', F0), ('s21', F0)])
    p('rl_end:')
    ids()
    stamp(p, 3)
    p('slow1:')
    w1flags()
    spin(p, 'pb', 1, 254)
    emit(p, W1DMA)
    p('rl_f1:')
    stamp(p, 4)
    p(f'v_lshlrev_b32 v253, {Cfg.FS}, v0\ns_lshl_b32 s56, s3, {6 + Cfg.FS}\ns_add_u32 s56, s56, {F1}\ns_mov_b64 s[58:59], -1')
    spin(p, 'pf1', 1, 254)
    p('s_barrier')
    p(f'join1:\ns_mov_b32 s61, {Cfg.spin}')
    mj = p.mark()
    stamp(p, 7)
    A0, A1, SUM, GR, ONES, WB, X, CS, HP, HX = 16, 36, 56, 64, 72, 76, 136, 228, 216, 228
    def ldsbases(kh):
        if kh: p('s_mul_i32 s28, s51, 5120\nv_add_u32 v2, s28, v1\nv_add_u32 v3, 65536, v2\nv_add_u32 v15, 131072, v2')
        else: p('v_add_u32 v3, 65536, v1\nv_add_u32 v15, 131072, v1')
    def wreads(g, WB_, per, b0):
        def f(i):
            out = []
            for t in range(g.NT):
                o = ((g.base + per * i) % 160 + t) * 1024
                out.append(f'ds_read_b128 {v(WB_ + 4 * g.NT * (i % 3) + 4 * t, 4)}, v{(b0, 3, 15)[o >> 16]} offset:{o & 65535}')
            return out
        return f
    def exaddr(vw, vr, EXB):
        p(f'''
        s_mul_i32 s28, s3, 5120
        s_xor_b32 s29, s3, 1
        s_mul_i32 s29, s29, 5120
        s_add_u32 s28, s28, {EXB}
        s_add_u32 s29, s29, {EXB}
        v_add_u32 v{vw}, s28, v1
        v_add_u32 v{vr}, s29, v1
        ''')
    ldsbases(True)
    class g5: NT = 5
    kern.cs_loads(p, g5, CS, CS1, 29)
    EXS = 20480
    exaddr(5, 6, 0)
    p(f'''
    s_lshl_b32 s28, s51, 3
    v_add_u32 v4, s28, v1
    s_lshl_b32 s28, s3, 11
    s_add_u32 s28, s28, {EXS}
    v_add_u32 v7, s28, v1
    s_lshl_b32 s28, s3, 9
    s_add_u32 s28, s28, {EXS + 8192}
    v_lshl_add_u32 v8, v0, 2, s28
    s_and_b32 s29, s3, 2
    s_lshl_b32 s28, s29, 9
    s_lshl_b32 s30, s51, 8
    s_add_u32 s28, s28, s30
    s_add_u32 s28, s28, {EXS + 8192}
    v_lshl_add_u32 v9, v0, 2, s28
    s_lshl_b32 s28, s29, 11
    s_lshl_b32 s30, s51, 10
    s_add_u32 s28, s28, s30
    s_add_u32 s28, s28, {EXS}
    v_bfe_u32 v10, v0, 2, 2
    v_lshlrev_b32 v10, 8, v10
    v_and_b32 v11, 15, v0
    v_lshl_add_u32 v10, v11, 4, v10
    v_and_b32 v11, 3, v0
    v_lshl_add_u32 v10, v11, 2, v10
    v_add_u32 v10, s28, v10
    s_lshr_b32 s30, s24, 1
    s_mul_i32 s30, s30, 40960
    s_add_u32 s30, s30, {HQ}
    s_mul_i32 s31, s25, 5120
    s_add_u32 s31, s31, s30
    s_add_u32 s32, s31, 4096
    s_lshl_b32 s28, s51, 11
    s_add_u32 s30, s30, s28
    ''')
    for k in range(4): p(f'v_mov_b32 v{ONES + k}, 0x3f803f80')
    for l in range(15): assert (l * 86) >> 8 == l // 3
    p(f'''
    v_min_u32 v11, 14, v0
    v_mul_u32_u24 v12, 86, v11
    v_lshrrev_b32 v12, 8, v12
    v_mul_u32_u24 v13, 17, v12
    s_mul_i32 s28, s25, 5
    s_lshr_b32 s28, s28, 1
    s_add_u32 s29, s28, 48
    v_add3_u32 v13, v13, v11, s29
    s_add_u32 s28, s28, 20
    v_add_u32 v14, s28, v11
    v_cmp_eq_u32 vcc, 0, v12
    v_cndmask_b32 v13, v13, v14, vcc
    s_mul_i32 s28, s53, 3
    s_add_u32 s28, s28, 37
    v_add_u32 v14, s28, v11
    v_cmp_eq_u32 vcc, 1, v12
    v_cndmask_b32 v13, v13, v14, vcc
    v_lshlrev_b32 v14, {Cfg.FS}, v13
    s_mov_b32 s33, {F0}
    ''')
    WFL = f'buffer_load_dword v13, v14, s[4:7], s33 offen{SC}'
    STUBS.extend('@' + t for t in ['wfs:', 's_cmp_eq_u32 s61, 0', 's_cbranch_scc1 wfs_b', 's_sub_u32 s61, s61, 1', WFL, 's_waitcnt vmcnt(0)',
                                   'v_cmp_ne_u32 vcc, s60, v13', 's_cbranch_vccnz wfs', 's_branch wfs_b'])
    xs1 = XS('x1_', lambda i: X + 8 * i, lambda i: [(1, 30, 4096 * i + 1024 * h_) for h_ in range(2)], {30: 34})
    def mf1(i):
        c = lambda r: v(r, 4) if i else '0'
        M = []
        for t in range(5):
            for sl in range(2):
                r = (A0, A1)[sl] + 4 * t
                M.append(f'{MF} {v(r, 4)}, {v(WB + 20 * (i % 3) + 4 * t, 4)}, {v(X + 8 * i + 4 * sl, 4)}, {c(r)}')
            if t < 2:
                x = v(X + 8 * i + 4 * t, 4)
                M.append(f'{MF} {v(SUM + 4 * t, 4)}, {v(ONES, 4)}, {x}, {c(SUM + 4 * t)}')
                M.append(f'{MF} {v(GR + 4 * t, 4)}, {x}, {x}, {c(GR + 4 * t)}')
        return M
    def epoch():
        p(f'''
        s_or_b32 s29, s2, s3
        s_cmp_lg_u32 s29, 0
        s_cbranch_scc1 noep
        v_mov_b32 v252, s60
        v_mov_b32 v253, 0
        s_mov_b32 s56, {EPW}
        s_mov_b64 exec, 1
        buffer_store_dword v252, v253, s[4:7], s56 offen sc1
        s_mov_b64 exec, -1
        noep:
        ''')
    HPL = [f'buffer_load_dwordx2 {v(HP + 2 * t, 2)}, v4, s[4:7], s{31 if t < 4 else 32} offen offset:{1024 * (t & 3)}{SC}' for t in range(5)]
    ex = spread(dma(g2, 0, 15), range(10 - Cfg.U1, 10))
    k0 = 10 - Cfg.U1
    ex[k0] = ['v_cmp_ne_u32 vcc, s60, v13', '@s_cbranch_vccnz wfs\n@wfs_b:'] + ex[k0]
    ex[max(0, k0 - Cfg.wfd)] = [WFL]
    def bar1():
        p(f's_waitcnt vmcnt({p.vm_since(mj) + 4})\ns_barrier')
        stamp(p, 8)
    mainloop(p, 10, 5, mf1, wreads(g1, WB, 10, 2), xs1, Cfg.U1, bar1, ex,
             lambda i: [f'v_swap_b32 v{X + 8 * i + 2 + k}, v{X + 8 * i + 4 + k}' for k in range(2)])
    stamp(p, 9)
    TX = WB
    p('s_barrier')
    emit(p, HPL)
    emit(p, dma(g2, 60, 10))
    p(f'''
    ds_write_b128 v7, {v(GR, 4)}
    ds_write_b128 v7, {v(GR + 4, 4)} offset:1024
    ds_write2st64_b32 v8, v{SUM}, v{SUM + 4} offset0:0 offset1:1
    s_cmp_lg_u32 s51, 0
    s_cbranch_scc1 x1_odd
    ''')
    xr = [f'ds_read2st64_b32 v[8:9], v9 offset0:0 offset1:2', f'ds_read2st64_b32 v[10:11], v10 offset0:0 offset1:8'] + \
         [f'ds_read_b128 {v(TX + 4 * t, 4)}, v6 offset:{1024 * t}' for t in range(5)]
    for t in range(5): p(f'ds_write_b128 v5, {v(A1 + 4 * t, 4)} offset:{1024 * t}')
    p('s_waitcnt lgkmcnt(0)\ns_barrier'); emit(p, xr)
    for k in range(10): p(f'v_pk_add_f32 {v(A0 + 2 * k, 2)}, {v(A0 + 2 * k, 2)}, {v(TX + 2 * k, 2)}')
    p('s_branch x1_join\nx1_odd:')
    for t in range(5): p(f'ds_write_b128 v5, {v(A0 + 4 * t, 4)} offset:{1024 * t}')
    p('s_waitcnt lgkmcnt(0)\ns_barrier'); emit(p, xr)
    for k in range(10): p(f'v_pk_add_f32 {v(A0 + 2 * k, 2)}, {v(A1 + 2 * k, 2)}, {v(TX + 2 * k, 2)}')
    p('x1_join:')
    K, ONE, O, T = 56, 58, 60, 136
    code = [f'v_mov_b32 v{K}, {f2u(C0)}', f'v_mov_b32 v{K + 1}, {f2u(C1)}', f'v_mov_b32 v{ONE}, 1.0',
            'v_add_f32 v8, v8, v9', 'v_add_f32 v10, v10, v11',
            f'v_mul_f32 v8, {f2u(1 / 640)}, v8', 'v_mul_f32 v9, v8, v8', f'v_mov_b32 v13, {f2u(1 / 640)}',
            'v_fma_f32 v10, v10, v13, -v9', 'v_max_f32 v10, 0, v10', f'v_add_f32 v11, {f2u(EPS)}, v10', 'v_rsq_f32 v12, v11',
            'v_mul_f32 v11, v12, v12', f'v_mov_b32 v13, {f2u(EPS)}', 'v_fma_f32 v11, v11, v10, v13', 'v_rsq_f32 v11, v11',
            'v_mul_f32 v13, -v8, v12', 'v_mul_f32 v10, v12, v11', 'v_mul_f32 v11, v13, v11']
    for k in range(10):
        A = A0 + 2 * k; t = T + 2 * k
        code += [f'v_pk_mul_f32 {v(CS + 2 * k, 2)}, {v(CS + 2 * k, 2)}, v[10:11] op_sel:[0,1] op_sel_hi:[1,1]',
                 f'v_pk_fma_f32 {v(A, 2)}, {v(A, 2)}, v[10:11], {v(CS + 2 * k, 2)} op_sel_hi:[1,0,1]']
        code += gelu_code(A, t, K, ONE, O + k)
    emit(p, sched(code))
    mS = [p.mark()]
    FS1 = SC if Cfg.fast1 is None else Cfg.fast1
    kern.SC = FS1
    frag_store80(p, O, H1F)
    kern.SC = SC
    stamp(p, 10)
    epoch()
    p('''
    v_and_b32 v9, 15, v0
    v_lshlrev_b32 v9, 1, v9
    v_and_b32 v10, 48, v0
    v_lshlrev_b32 v10, 4, v10
    s_movk_i32 s32, 0x800
    v_bfrev_b32 v56, 1
    s_mov_b32 s33, 0xffff0000
    s_lshr_b32 s29, s24, 1
    s_lshl_b32 s29, s29, 5
    s_lshl_b32 s30, s51, 1
    ''')
    for ds_, sl, expr in ((0, 0, 's_sub_u32 s28, s29, 1'), (0, 1, 's_sub_u32 s28, s29, s30'),
                          (1, 0, 's_add_u32 s28, s29, s30\ns_add_u32 s28, s28, 1'), (1, 1, 's_add_u32 s28, s29, 2')):
        p(expr)
        p(f'''
        v_add_u32 v11, s28, v9
        v_cmp_gt_u32 vcc, s32, v11
        v_lshrrev_b32 v57, 5, v11
        v_and_b32 v58, 1, v11
        v_lshl_add_u32 v57, v57, 1, v58
        v_mul_u32_u24 v57, 20480, v57
        v_bfe_u32 v11, v11, 1, 4
        v_lshl_add_u32 v57, v11, 4, v57
        v_add_u32 v57, v57, v10
        v_cndmask_b32 v{5 + 2 * ds_ + sl}, v56, v57, vcc
        ''')
    for k in range(10):
        emit(p, unpack(HX + 2 * k, HP + k, 33))
        p(f'v_pk_fma_f32 {v(A0 + 2 * k, 2)}, {v(HX + 2 * k, 2)}, v[12:13], v[12:13] op_sel:[0,0,1] op_sel_hi:[1,0,1]')
    exaddr(9, 10, 120 * 1024)
    p(f'''
    s_lshl_b32 s30, s51, 13
    s_add_u32 s30, s30, {H1F}
    s_lshl_b32 s31, s51, 11
    s_add_u32 s31, s31, {H1F + 16384}
    ''')
    def hop(k, i, sidx, F, su):
        if k not in Cfg.daf:
            publish(p, sidx, F, f'pb{k}x'); stamp(p, i)
            poll(p, f'p{k}', su, False, 's95'); stamp(p, i + 1)
            p(f's_mov_b32 s61, {Cfg.spin}')
            return None
        ack = Cfg.ack4 if k == 4 else Cfg.ack
        if ack: p('s_waitcnt vmcnt(0)')
        stamp(p, i)
        m = p.mark() if ack else mS[0]
        def f():
            p.wait_vm(m); p('s_barrier'); stamp(p, i + 1)
        return f
    def su3():
        p(f'''
        s_and_b32 s56, s62, 0xf8
        s_sub_u32 s56, s56, 8
        v_add_u32 v253, s56, v0
        s_movk_i32 s57, 0x100
        v_cmp_gt_u32 vcc, s57, v253
        v_lshlrev_b32 v253, {Cfg.FS}, v253
        s_and_b32 s58, vcc_lo, 0xffffff
        s_mov_b32 s59, 0
        s_sub_u32 s95, s62, s56
        s_mov_b32 s56, {F2}
        ''')
    def su4():
        p(f'''
        s_and_b32 s56, s63, 0xf0
        s_sub_u32 s95, s62, s56
        s_lshl_b32 s56, s56, {Cfg.FS}
        s_add_u32 s56, s56, {F3}
        v_lshlrev_b32 v253, {Cfg.FS}, v0
        s_mov_b64 s[58:59], 0xffff
        ''')
    def su5():
        p(f'''
        s_and_b32 s56, s62, 0xf0
        s_sub_u32 s95, s63, s56
        s_lshl_b32 s56, s56, {Cfg.FS}
        s_add_u32 s56, s56, {F4}
        v_lshlrev_b32 v253, {Cfg.FS}, v0
        s_mov_b64 s[58:59], 0xffff
        ''')
    def xa2(i):
        ds_ = (i >> 2) if i < 8 else i - 8
        so, off = (30, 1024 * i) if i < 8 else (31, 1024 * (i - 8))
        return [(5 + 2 * ds_ + sl, so, off) for sl in range(2)]
    xs2 = XS('x2_', lambda i: X + 8 * i, xa2, {30: 34, 31: 35})
    def mfk(AS, WB_, xs):
        def f(i):
            M = []
            for t in range(5):
                for sl in range(2):
                    r = AS[sl] + 4 * t
                    M.append(f'{MF} {v(r, 4)}, {v(WB_ + 20 * (i % 3) + 4 * t, 4)}, {v(xs.reg(i) + 4 * sl, 4)}, {v(r, 4) if (i or not sl) else 0}')
            return M
        return f
    ex = spread(dma(g3, 0, 15), range(10 - Cfg.U2, 10))
    bf = hop(2, 11, 's62', F2, su3)
    mainloop(p, 10, 5, mfk((A0, A1), WB, xs2), wreads(g2, WB, 10, 2), xs2, Cfg.U2, bf, ex)
    stamp(p, 13)
    def exch(vw, vr, Akeep, Agive, fill=[]):
        p('s_barrier')
        for t in range(5): p(f'ds_write_b128 v{vw}, {v(Agive + 4 * t, 4)} offset:{1024 * t}')
        emit(p, fill)
        p('s_waitcnt lgkmcnt(0)\ns_barrier')
        for t in range(5): p(f'ds_read_b128 {v(TX + 4 * t, 4)}, v{vr} offset:{1024 * t}')
        return [f'v_pk_add_f32 {v(Akeep + 2 * k, 2)}, {v(Akeep + 2 * k, 2)}, {v(TX + 2 * k, 2)}' for k in range(10)]
    code = exch(9, 10, A0, A1, dma(g3, 60, 15) if Cfg.early else [])
    O = 60
    code += ['v_mov_b32 v8, 0', 'v_mov_b32 v9, 0', 'v_mov_b32 v10, 0', 'v_mov_b32 v11, 0', 'v_lshlrev_b32 v4, 3, v0']
    for k in range(10):
        A = A0 + 2 * k
        code += [f'v_cvt_pk_bf16_f32 v{O + k}, v{A}, v{A + 1}',
                 f'v_dot2c_f32_bf16 v{8 + 2 * (k & 1)}, v{O + k}, v{ONES}', f'v_dot2c_f32_bf16 v{9 + 2 * (k & 1)}, v{O + k}, v{O + k}']
    code += ['v_pk_add_f32 v[8:9], v[8:9], v[10:11]'] + qreduce(8, 10) + qreduce(9, 11)
    emit(p, sched(code))
    mS[0] = p.mark()
    FS_ = SC if Cfg.fast is None else Cfg.fast
    kern.SC = FS_
    frag_store80(p, O, X1F)
    kern.SC = SC
    p(f'''
    s_lshl_b32 s29, s24, 3
    s_add_u32 s29, s29, s25
    s_lshl_b32 s29, s29, 7
    s_add_u32 s29, s29, {PS2}
    s_mov_b64 exec, 0xffff
    buffer_store_dwordx2 v[8:9], v4, s[4:7], s29 offen{FS_}
    s_mov_b64 exec, -1
    ''')
    HA = [f'v_pk_add_f32 {v(HX + 2 * k, 2)}, {v(HX + 2 * k, 2)}, {v(A0 + 2 * k, 2)}' for k in range(10)]
    emit(p, HA)
    stamp(p, 14)
    R3 = Cfg.U3 + 1
    PS = X + 8 * R3; WB3 = 64
    CS = X + 8 * ((20 - R3) % R3)
    assert PS + 8 <= 228 and (20 - R3) % R3 + 3 <= R3
    ldsbases(False)
    p(f'''
    v_and_b32 v6, 15, v0
    v_and_b32 v7, 48, v0
    v_lshlrev_b32 v7, 4, v7
    v_lshl_add_u32 v7, v6, 3, v7
    s_lshl_b32 s29, s52, 10
    s_add_u32 s29, s29, {PS2}
    s_mul_i32 s30, s52, 20480
    s_add_u32 s30, s30, {X1F}
    s_add_u32 s31, s30, 20480
    v_and_b32 v4, 48, v0
    s_mul_i32 s32, s53, 384
    s_add_u32 s32, s32, {CS3}
    ''')
    acc3 = lambda mt, t: 16 + 24 * mt + 4 * t
    PSL = [f'buffer_load_dwordx2 {v(PS + 4 * mt + 2 * i, 2)}, v7, s[4:7], s29 offen offset:{1024 * mt + 128 * i}{SC}' for mt in range(2) for i in range(2)]
    C3L = [f'buffer_load_dwordx4 {v(CS + 4 * t, 4)}, v4, s[4:7], s32 offen offset:{64 * t}{SC}' for t in range(6)]
    xs3 = XS('x3_', lambda i: X + 8 * (i % R3), lambda i: [(1, 30 + mt, 1024 * i) for mt in range(2)], {30: 34, 31: 35}, R3)
    def mf3(i):
        return [f'{MF} {v(acc3(mt, t), 4)}, {v(WB3 + 24 * (i % 3) + 4 * t, 4)}, {v(xs3.reg(i) + 4 * mt, 4)}, {v(acc3(mt, t), 4) if i else 0}'
                for t in range(6) for mt in range(2)]
    code = [f'v_mov_b32 v13, {f2u(1 / 640)}']
    for mt in range(2):
        r = PS + 4 * mt
        code += [f'v_add_f32 v{r}, v{r}, v{r + 2}', f'v_add_f32 v{r + 1}, v{r + 1}, v{r + 3}'] + qreduce(r, r + 2) + qreduce(r + 1, r + 3) + [
            f'v_mul_f32 v{r}, v13, -v{r}', f'v_mul_f32 v{r + 2}, v{r}, v{r}', f'v_fma_f32 v{r + 1}, v{r + 1}, v13, -v{r + 2}',
            f'v_max_f32 v{r + 1}, 0, v{r + 1}', f'v_add_f32 v{r + 1}, {f2u(EPS)}, v{r + 1}', f'v_rsq_f32 v{r + 1}, v{r + 1}',
            f'v_mul_f32 v{r}, v{r}, v{r + 1}']
    n3 = 20 - Cfg.U3
    D4 = dma(g4, 0, 10) + (dma(g4, 40, Cfg.m3) if Cfg.m3 else [])
    ex = spread(D4, range(max(n3, 10) if Cfg.m3 else n3, 20))
    ex[4] = PSL
    if 3 in Cfg.daf: ex[10] = chk(PS) + stub('ps3', [(PS, PSL)]) + ex.get(10, [])
    for k_, L in spread(sched(code), range(11, 17)).items(): ex[k_] = ex.get(k_, []) + L
    c0 = 20 - R3 + 3
    for k_, L in spread(C3L, range(c0, c0 + 2)).items(): ex[k_] = L + ex.get(k_, [])
    bf = hop(3, 15, 's62', F3, su4)
    mainloop(p, 20, 6, mf3, wreads(g3, WB3, 6, 1), xs3, Cfg.U3, bf, ex, None, {10: lambda: p('s_barrier')} if Cfg.m3 else {}, Cfg.st3)
    stamp(p, 17)
    p('s_barrier')
    K, ONE, O, T = 8, 10, 64, 88
    p(f'''
    v_mov_b32 v{K}, {f2u(C0)}
    v_mov_b32 v{K + 1}, {f2u(C1)}
    v_mov_b32 v{ONE}, 1.0
    s_mul_i32 s30, s52, 49152
    s_mul_i32 s31, s53, 3072
    s_add_u32 s30, s30, s31
    s_add_u32 s30, s30, {H3F}
    s_add_u32 s31, s30, 49152
    s_mul_i32 s28, s51, 3072
    s_add_u32 s28, s28, {H3F}
    s_mul_i32 s36, s24, 49152
    s_add_u32 s36, s36, s28
    s_xor_b32 s37, s24, 1
    s_mul_i32 s37, s37, 49152
    s_add_u32 s37, s37, s28
    ''')
    R4 = Cfg.R4; XB4 = 104
    xs4 = XS('x4_', lambda i: XB4 + 8 * (i % R4), lambda i: [(1, 36 + sl, 1024 * (6 * (i & 7) + (i >> 3))) for sl in range(2)], {36: 34, 37: 35}, R4)
    assert XB4 + 8 * R4 <= 228 and XB4 + 8 * Cfg.n4 <= CS and Cfg.ko4
    code = []
    for grp in ([[(mt, k) for mt in range(2) for k in range(4 * pc, 4 * pc + 4)] for pc in range(3)] if Cfg.ko4 else [[(mt, k) for k in range(12)] for mt in range(2)]):
        c2 = []
        for mt, k in grp:
            A = acc3(mt, 0) + 2 * k; t = T + 2 * (k & 3) + 8 * mt; r = PS + 4 * mt
            c2 += [f'v_pk_mul_f32 {v(t, 2)}, {v(CS + 2 * k, 2)}, {v(r, 2)} op_sel_hi:[1,0]',
                   f'v_pk_fma_f32 {v(A, 2)}, {v(A, 2)}, {v(r, 2)}, {v(t, 2)} op_sel:[0,1,0] op_sel_hi:[1,1,1]']
            c2 += gelu_code(A, t, K, ONE, O + 12 * mt + k)
            if k % 4 == 3:
                c2.append(f'buffer_store_dwordx4 {v(O + 12 * mt + k - 3, 4)}, v1, s[4:7], s{30 + mt} offen offset:{1024 * (k // 4)}{FS_}')
        code += sched(c2)
    e3 = min(Cfg.e3, 30 - Cfg.m3)
    assert e3 + Cfg.m3 == 30
    code = weave(code, dma(g4, 40 + 4 * Cfg.m3, e3), 0.0, Cfg.w3)
    kl = max(k for k, t in enumerate(code) if ' lds' in t)
    emit(p, code[:kl + 1]); mS[0] = p.mark()
    code = code[kl + 1:]
    if Cfg.n4:
        E = xs4.init()
        for j in range(Cfg.n4): E += xitems(p, xs4, j)
        code = weave(code, E, Cfg.e4a, Cfg.e4b)
    emitx(p, code)
    stamp(p, 18)
    srd(p, 8, 'out', 2048 * 1280)
    ldsbases(True)
    exaddr(9, 10, 0)
    p(f'''
    v_and_b32 v5, 15, v0
    v_mul_u32_u24 v5, 2560, v5
    v_lshrrev_b32 v7, 4, v0
    v_lshl_add_u32 v6, v7, 3, v5
    v_and_b32 v8, 1, v7
    v_lshl_add_u32 v5, v8, 5, v5
    v_lshrrev_b32 v7, 1, v7
    v_lshl_add_u32 v5, v7, 4, v5
    s_lshr_b32 s32, s24, 1
    s_lshl_b32 s32, s32, 5
    s_add_u32 s32, s32, s51
    s_mul_i32 s32, s32, 1280
    s_mul_i32 s33, s25, 160
    s_add_u32 s32, s32, s33
    ''')
    mk = {}
    def setmk(k): return lambda: mk.__setitem__(k, p.mark())
    U4 = Cfg.U4
    X_ = lambda a_, b_: [(max(0, j - R4 + 1), j) for j in range(a_, b_)]
    D_ = lambda f, av, k: [(av, t) for t in dma(g4, f, 10) + [setmk(k)]]
    seq = X_(U4, Cfg.xa4) + D_(160, 3, 0) + X_(max(U4, Cfg.xa4), Cfg.xb4) + D_(200, 7, 1) + X_(Cfg.xb4, 24)
    plan4 = edf(seq, Cfg.r4, 24)
    if Cfg.show: print({k: [t if isinstance(t, int) else 'd' for t in L if isinstance(t, int) or (isinstance(t, str) and t.startswith('buffer'))] for k, L in plan4.items()})
    ex = {}
    def wb(k):
        def f(): p.wait_vm(mk[k]); p('s_barrier')
        return f
    bar = lambda: p('s_barrier')
    WB4 = 36; TX = 104
    bf = hop(4, 19, 's63', F4, su5)
    mainloop(p, 24, 5, mfk((HX, 16), WB4, xs4), wreads(g4, WB4, 10, 2), xs4, Cfg.U4, bf, ex, None, {3: bar, 7: bar, 14: wb(0), 18: wb(1)}, Cfg.st4, plan4)
    stamp(p, 21)
    emit(p, exch(9, 10, HX, 16))
    O = 128
    for pr in range(2):
        o = O + 4 * pr
        for h_ in range(2):
            A = HX + 4 * (2 * pr + h_)
            p(f'v_cvt_pk_bf16_f32 v{o + 2 * h_}, v{A}, v{A + 1}\nv_cvt_pk_bf16_f32 v{o + 2 * h_ + 1}, v{A + 2}, v{A + 3}')
        p(f'v_permlane16_swap_b32 v{o}, v{o + 2}\nv_permlane16_swap_b32 v{o + 1}, v{o + 3}')
        p(f'buffer_store_dwordx4 {v(o, 4)}, v5, s[8:11], s32 offen offset:{64 * pr}{Cfg.osc}')
    A = HX + 16
    p(f'v_cvt_pk_bf16_f32 v{O + 8}, v{A}, v{A + 1}\nv_cvt_pk_bf16_f32 v{O + 9}, v{A + 2}, v{A + 3}')
    p(f'buffer_store_dwordx2 {v(O + 8, 2)}, v6, s[8:11], s32 offen offset:128{Cfg.osc}')
    if dbg:
        p('s_waitcnt vmcnt(0)')
        p(f's_sub_u32 s61, {Cfg.spin}, s61\nv_writelane_b32 v255, s61, 28')
        stamp(p, 22)
        p('s_memtime s[98:99]\ns_waitcnt lgkmcnt(0)\nv_writelane_b32 v255, s98, 31')
        if Cfg.hdbg:
            p('s_mov_b32 s8, s90\ns_mov_b32 s9, s91\ns_mov_b32 s10, 64\ns_mov_b32 s11, 0x20000\nv_mov_b32 v2, 4096\nv_sub_u32 v3, 0, v255\nv_cmp_eq_u32 vcc, 0, v0\nv_cndmask_b32 v3, v255, v3, vcc')
            for w_, i_ in enumerate(Cfg.hdbg): p(f'v_writelane_b32 v2, {4 * w_}, {i_}')
            if Cfg.hsel: p(f's_cmp_{Cfg.hsel}_u32 s2, 160\ns_cbranch_scc1 k_end')
            p('buffer_atomic_umax v3, v2, s[8:11], 0 offen')
        p(f'''
        s_lshl_b32 s29, s2, 2
        s_add_u32 s29, s29, s3
        s_lshl_b32 s29, s29, 7
        s_add_u32 s29, s29, {DBGW}
        v_lshlrev_b32 v2, 2, v0
        s_mov_b32 exec_hi, 0
        buffer_store_dword v255, v2, s[4:7], s29 offen
        ''')
    p('k_end:\ns_endpgm')
    helper(p)
    emit(p, STUBS)
    p('@code_end:')
    return p

if __name__ == '__main__':
    import sys
    from build import HDR
    out = sys.argv[1]; dbg = 'dbg' in sys.argv[2:]
    for a_ in sys.argv[2:]:
        if '=' in a_:
            k_, v_ = a_.split('='); setattr(Cfg, k_, eval(v_))
    name = 'pers_kernel' if 'list' in sys.argv[2:] else NAME
    Cfg.kname = name
    open(out, 'w').write(file_text([(name, build(dbg), 256, 320, LDSZ)], HDR))
```

```python
import kern
from kern import *
kern.SC = ' sc1'
SC = ' sc1'
LDSZ = 163840
F0, F1, F2, F3, F4, EPW = [FLG + 65536 * k for k in range(6)]
NAME = 'sequential_preLN__ssm_conv_s4d__mixer_s_mlp__prompt_kernel'
FB, UC, RC = 0, 69632, 103040
CHY = 8512
XP, SR = 208, 224
XL = 122880
MF = 'v_mfma_f32_16x16x32_bf16'

TAG = 's_mul_i32 s60, s60, 0x9e3779b1\ns_add_u32 s60, s60, 0x7f4a7c15'
class Cfg:
    stamp = False
    spin = 0x10000
    inj = 0.72
    U1 = 6; U2 = 7; U3 = 8; U4 = 10
    pf = False
    warm = False
    FS = 7
    pw = 1
    own = True
    jc = 4
    m3 = 15
    slp = 0
    early = True
    w3 = 0.3
    fast = None
    fast1 = None
    osc = ''
    st3 = {}; st4 = {}
    R4 = 14; n4 = 0; e4a = 0.6; e4b = 0.95; xa4 = 14; xb4 = 18; r4 = 2.8; show = False
    h3c = 1
    ko4 = True
    ack4 = False
    daf = (1, 2, 3)
    cq0 = True; pb64 = True
    wfd = 3
    ipf = True; xdef = True; xh = True; pfw = 1; ph3 = True; hdbg = None; hsel = None; ob = True; pf3 = False; pf34 = 32; jl = 3; bw1 = True; hld = True; hx2 = 0; hq0 = 0; hb2 = 0; nopois = False; xrot = True; kname = NAME
    cf0 = 24
    hx = 16; hdl = 0
    c0 = 52; i2a = 0.1; i2b = 0.8
    ack = True
    sslp = 0
    jf = 7
    e3 = 15

def stamp(p, i):
    if Cfg.stamp:
        p(f's_memrealtime s[98:99]\ns_waitcnt lgkmcnt(0)\nv_writelane_b32 v255, s98, {i}')

def flag_store(p, lab, pairs, R=252, sc=' sc1'):
    p(f's_cmp_lg_u32 s3, 0\ns_cbranch_scc1 {lab}_np\nv_mov_b32 v{R}, s60\nv_mov_b32 v{R + 1}, 0\ns_mov_b64 exec, 1')
    for sidx, base in pairs:
        p(f's_lshl_b32 s56, {sidx}, {Cfg.FS}\ns_add_u32 s56, s56, {base}\nbuffer_store_dword v{R}, v{R + 1}, s[4:7], s56 offen{sc}')
    p(f's_mov_b64 exec, -1\n{lab}_np:')

def publish(p, sidx, base, lab, m=None, pf=None, sc=' sc1'):
    if m is None: p('s_waitcnt vmcnt(0)')
    else: p.wait_vm(m)
    if pf and Cfg.pf: p(pf)
    p('s_barrier')
    flag_store(p, lab, [(sidx, base)], 252, sc)

def spin(p, lab, width, R):
    sfx = {1: 'dword', 2: 'dwordx2', 4: 'dwordx4'}[width]
    p(f's_mov_b64 exec, s[58:59]\ns_mov_b32 s61, {Cfg.spin}\n{lab}_loop:')
    p(f'buffer_load_{sfx} {v(R, width)}, v253, s[4:7], s56 offen sc1\ns_waitcnt vmcnt(0)')
    for k in range(width): p(f'v_xor_b32 v{R + k}, s60, v{R + k}')
    if width == 2: p(f'v_or_b32 v{R}, v{R}, v{R + 1}')
    if width == 4: p(f'v_or3_b32 v{R}, v{R}, v{R + 1}, v{R + 2}\nv_or_b32 v{R}, v{R}, v{R + 3}')
    p(f'''
    v_cmp_ne_u32 vcc, 0, v{R}
    s_sub_u32 s61, s61, 1
    s_cbranch_scc1 {lab}_out
    s_cbranch_vccz {lab}_out
    {f's_sleep {Cfg.slp}' if Cfg.slp else ''}
    s_branch {lab}_loop
    {lab}_out:
    s_mov_b64 exec, -1
    ''')

def poll(p, lab, setup, every=False, own=None):
    if not every: p(f's_cmp_lg_u32 s3, {Cfg.pw}\ns_cbranch_scc1 {lab}_skip')
    setup()
    if own and Cfg.own:
        p(f's_cmp_lt_u32 {own}, 64\ns_cselect_b32 s57, 1, 0\ns_mov_b32 s61, 0\ns_and_b32 {own}, {own}, 63\ns_mov_b32 s96, s57\ns_mov_b32 s97, 0\ns_lshl_b64 s[96:97], s[96:97], {own}\ns_andn2_b64 s[58:59], s[58:59], s[96:97]')
    spin(p, lab, 1, 254)
    p(f'{lab}_skip:\ns_waitcnt vmcnt(0)\ns_barrier')

class PG:
    def __init__(self, NT, NS, WF, sJ, base):
        self.NT, self.NS, self.WF, self.sJ, self.base = NT, NS, WF, sJ, base

def dma(g, first, n, sr='s[4:7]'):
    slot = (g.base + first) % 160
    assert slot + 4 * n <= 160
    L = [f's_mul_i32 s54, s{g.sJ}, {g.NS * g.NT}', f's_mul_i32 s55, s3, {n}', 's_add_u32 s54, s54, s55', f's_add_u32 s55, s55, {slot}',
         's_lshl_b32 s54, s54, 10', 's_lshl_b32 m0, s55, 10', f's_add_u32 s54, s54, {g.WF + first * 1024}']
    for k in range(n):
        if k and k % 4 == 0: L += ['s_add_u32 m0, m0, 4096', 's_add_u32 s54, s54, 4096']
        L.append(f'buffer_load_dwordx4 v1, {sr}, s54 offen offset:{1024 * (k & 3)}{SC} lds')
    return L

def emit(p, L):
    for t in L: p(t)

def spread(L, steps):
    d = {}
    for k, s_ in enumerate(steps):
        d[s_] = L[len(L) * k // len(steps): len(L) * (k + 1) // len(steps)]
    return d

def weave(code, fill, lo=0.0, hi=1.0):
    n = len(code); a_, b_ = int(n * lo), int(n * hi); out = list(code[:a_]); k = 0
    for i in range(a_, b_):
        out.append(code[i])
        e = len(fill) * (i - a_ + 1) // (b_ - a_)
        out += fill[k:e]; k = e
    return out + list(code[b_:])

STUBS = []
CT = 250
class XS:
    def __init__(self, lab, reg, addr, run, R=99):
        self.lab, self.reg, self.addr, self.run, self.R = lab, reg, addr, run, R
        self.issued = []; self.marks = {}
        self.cur = {b: 0 for b in run}
    def init(self): return [f's_mov_b32 s{r}, s{b}' for b, r in self.run.items()]
    def main(self, i):
        L = []; Q = []
        for h, (vo, b, off) in enumerate(self.addr(i)):
            k = off >> 12
            if k != self.cur[b]:
                L.append(f's_add_u32 s{self.run[b]}, s{b}, {4096 * k}'); self.cur[b] = k
            Q.append(f'buffer_load_dwordx4 {v(self.reg(i) + 4 * h, 4)}, v{vo}, s[4:7], s{self.run[b]} offen offset:{off & 4095}{SC}')
        return L + Q
    def abs(self, i):
        L = []
        for h, (vo, b, off) in enumerate(self.addr(i)):
            L += [f's_add_u32 s57, s{b}, {off & ~4095}',
                  f'buffer_load_dwordx4 {v(self.reg(i) + 4 * h, 4)}, v{vo}, s[4:7], s57 offen offset:{off & 4095}{SC}']
        return L

def chk(x):
    return [f'v_max3_u32 v{CT}, v{x}, v{x + 1}, v{x + 2}', f'v_max3_u32 v{CT + 1}, v{x + 3}, v{x + 4}, v{x + 5}',
            f'v_max3_u32 v{CT}, v{CT}, v{x + 6}, v{x + 7}', f'v_max_u32 v{CT}, v{CT}, v{CT + 1}', f'v_cmp_eq_u32 vcc, -1, v{CT}']

def stub(lab, ents):
    L = [f'{lab}:', 's_waitcnt vmcnt(0)', 's_cmp_eq_u32 s61, 0', f's_cbranch_scc1 {lab}_b', 's_sub_u32 s61, s61, 1']
    if Cfg.sslp: L.append(f's_sleep {Cfg.sslp}')
    L += ents[0][1]
    for k, (x, rl) in enumerate(ents[1:]):
        L += chk(x) + [f's_cbranch_vccz {lab}_s{k}'] + rl + [f'{lab}_s{k}:']
    L += ['s_waitcnt vmcnt(0)'] + chk(ents[0][0]) + [f's_cbranch_vccnz {lab}', f's_branch {lab}_b']
    STUBS.extend('@' + t for t in L)
    return [f'@s_cbranch_vccnz {lab}\n@{lab}_b:']

def xitems(p, xs, j):
    x = xs.main(j); xs.issued.append(j)
    def last():
        p(x[-1]); xs.marks[j] = p.mark()
    last.t = x[-1]
    return x[:-1] + [last]

def emitx(p, L):
    for t in L:
        if callable(t): t()
        else: p(t)

def edf(seq, rate, n):
    plan = {i: [] for i in range(n)}; i = 0; credit = rate
    for av, it in seq:
        c = 2 if isinstance(it, int) else (1 if isinstance(it, str) and it.startswith('buffer') else 0)
        while i < n - 1 and (av > i or credit < c - 0.999):
            i += 1; credit = min(credit, 1) + rate
        plan[i].append(it); credit -= c
    return plan

def mainloop(p, n, NT, mf, wr, xs, U, bar, extra={}, pre=None, sync={}, st={}, plan=None):
    marks = xs.marks
    ck = bar is not None
    if plan is None: plan = {i: [i + U] for i in range(n - U)}
    if not ck: emit(p, wr(0) + wr(1))
    if not xs.issued: emit(p, xs.init())
    for i in range(len(xs.issued), min(U, n)): emitx(p, xitems(p, xs, i))
    if ck:
        bar()
        emit(p, wr(0) + wr(1))
    win = lambda i: stub(f'{xs.lab}{i}', [(xs.reg(j), xs.abs(j)) for j in xs.issued if j >= i])
    if ck: p.wait_vm(marks[0]); emit(p, chk(xs.reg(0)) + win(0))
    if pre: emit(p, pre(0))
    for i in range(n):
        if ck: p(f's_waitcnt lgkmcnt({NT if i + 1 < n else 0})')
        else: p.wait_vm(marks[i], NT if i + 1 < n else 0)
        if i in sync: sync[i]()
        if i in st: stamp(p, st[i])
        fill = list(wr(i + 2) if i + 2 < n else [])
        for it in plan.get(i, []):
            if isinstance(it, int):
                assert it - xs.R < i, (it, i)
                fill += xitems(p, xs, it)
            else: fill.append(it)
        fill += extra.get(i, [])
        M = mf(i); G_ = len(M) - (5 if pre else 4) if (ck and i + 1 < n) else len(M); k = 0
        c = chk(xs.reg(i + 1)) if i + 1 < n else []
        for gi, m_ in enumerate(M):
            p(m_)
            if gi < G_:
                e = -(-len(fill) * (gi + 1) // G_)
                emitx(p, fill[k:e]); k = e
            elif gi == G_: p.wait_vm(marks[i + 1]); emit(p, c[0:2])
            elif gi == G_ + 1: emit(p, c[2:4])
            elif gi == G_ + 2: emit(p, c[4:])
            elif gi == G_ + 3:
                emit(p, win(i + 1))
                if pre: emit(p, pre(i + 1))

UNIT = """
s_sub_u32 s20, s2, 180
s_and_b32 s21, s20, 7
s_mul_i32 s21, s21, 3
s_lshr_b32 s22, s20, 3
s_add_u32 s21, s21, s22
s_cmp_lt_u32 s20, 24
s_cselect_b32 s20, s21, s20
s_add_u32 s20, s20, 20
s_lshl_b32 s20, s20, 1
s_mov_b32 s22, 0
"""
def helper(p):
    assert Cfg.daf == (1, 2, 3)
    tot = (H3F - H1F) // 1024; x = Cfg.hx2
    y = -(-(tot - 22 * x) // 160)
    assert H1F + (160 * y + 22 * x) * 1024 <= W1F
    p('helper:')
    if Cfg.ipf:
        p(f'''
        @s_getpc_b64 s[30:31]
        @hlp_pc:
        s_sub_u32 s30, s30, hlp_pc-{Cfg.kname}
        s_subb_u32 s31, s31, 0
        s_lshr_b32 s28, s2, 3
        s_lshl_b32 s28, s28, 11
        v_lshl_add_u32 v8, v0, 4, s28
        v_add_u32 v9, 1024, v8
        v_min_u32 v8, code_end-{Cfg.kname}-16, v8
        v_min_u32 v9, code_end-{Cfg.kname}-16, v9
        @s_nop 0
        @global_load_dwordx4 v[12:15], v8, s[30:31]
        @global_load_dwordx4 v[16:19], v9, s[30:31]
        ''')
    if Cfg.ph3:
        srd(p, 44, 'w3', 640 * 3072)
        p('v_min_u32 v10, 59, v0\nv_lshlrev_b32 v10, 7, v10\ns_mul_i32 s28, s2, 60 * 128\nbuffer_load_dword v20, v10, s[44:47], s28 offen')
    for k in range(4): p(f'v_mov_b32 v{4 + k}, -1')
    p(f'''
    v_lshlrev_b32 v1, 4, v0
    s_cmp_ge_u32 s2, 160
    s_cbranch_scc1 hlp_b
    s_add_u32 s56, s92, {EPW}
    s_addc_u32 s57, s93, 0
    s_load_dword s60, s[56:57], 0
    s_and_b32 s50, s2, 7
    s_mul_i32 s50, s50, 20
    s_lshr_b32 s51, s2, 3
    s_add_u32 s50, s50, s51
    v_lshrrev_b32 v3, 4, v0
    v_mul_u32_u24 v3, 40960, v3
    v_and_b32 v2, 15, v0
    v_lshl_add_u32 v3, v2, 4, v3
    s_lshl_b32 s28, s50, 8
    s_add_u32 s28, s28, {HQ}
    ''')
    HS = [f'buffer_store_dwordx4 v[4:7], v3, s[4:7], s28 offen{SC}\ns_add_u32 s28, s28, {4 * 40960}' for k in range(16)]
    emit(p, HS[:Cfg.hq0])
    if Cfg.ob: p('s_barrier')
    if Cfg.hdl: p(f's_sleep {Cfg.hdl}')
    srd(p, 44, 'x', 2048 * 1280)
    p('v_mul_u32_u24 v2, 2560, v0\ns_lshl_b32 s42, s50, 3')
    p('''
    s_sub_u32 s36, s50, s51
    s_and_b32 s37, s50, 0xf0
    s_max_u32 s38, s36, s37
    s_add_u32 s36, s36, 20
    s_add_u32 s37, s37, 16
    s_min_u32 s36, s36, s37
    s_sub_u32 s36, s36, s38
    s_sub_u32 s51, s50, s38
    s_cmp_eq_u32 s36, 12
    s_cselect_b32 s37, 43, 32
    s_cmp_eq_u32 s36, 8
    s_cselect_b32 s37, 64, s37
    s_cmp_eq_u32 s36, 4
    s_cselect_b32 s37, 128, s37
    s_mul_i32 s51, s51, s37
    s_lshr_b32 s51, s51, 5
    ''')
    for k in range(16):
        p(f's_add_u32 s43, s51, {k}\ns_and_b32 s43, s43, 15\ns_mul_i32 s43, s43, {128 * 1280}\ns_add_u32 s43, s43, s42')
        p(f'buffer_load_dwordx2 {v(32 + 4 * k, 2)}, v2, s[44:47], s43 offen')
        p(f'buffer_load_dwordx2 {v(32 + 4 * k + 2, 2)}, v2, s[44:47], s43 offen offset:1280')
    SL = []
    for k in range(16):
        if k % 4 == 0: SL.append(f's_mov_b32 s42, {STAT + 1024 * k}')
        SL.append(f'buffer_load_dwordx4 {v(96 + 4 * k, 4)}, v1, s[4:7], s42 offen offset:{1024 * (k & 3)}{SC}')
    p('s_waitcnt lgkmcnt(0)')
    p(TAG)
    emit(p, SL)
    for k in range(16):
        p(f's_add_u32 s43, s51, {k}\ns_and_b32 s43, s43, 15\ns_lshl_b32 s43, s43, 10\ns_add_u32 s43, s43, {XL}\nv_add_u32 v{8 + (k & 3)}, s43, v1')
        p(f'ds_write_b128 v{8 + (k & 3)}, {v(32 + 4 * k, 4)}')
    if Cfg.stamp: p('s_memrealtime s[96:97]')
    p(f's_mov_b32 s61, {Cfg.spin}\nv_add_u32 v8, {XL + 16384}, v1\nsa_loop:\nv_mov_b32 v9, 0')
    for k in range(16):
        p(f'v_xor_b32 v{97 + 4 * k}, s60, v{97 + 4 * k}\nv_xor_b32 v{99 + 4 * k}, s60, v{99 + 4 * k}\nv_or3_b32 v9, v9, v{97 + 4 * k}, v{99 + 4 * k}')
        p(f'ds_write_b128 v8, {v(96 + 4 * k, 4)} offset:{1024 * k}')
    p(f'''
    v_cmp_ne_u32 vcc, 0, v9
    s_cbranch_vccz sa_out
    s_sub_u32 s61, s61, 1
    s_cbranch_scc1 sa_out
    s_waitcnt lgkmcnt(0)
    ''')
    emit(p, SL)
    p('s_branch sa_loop\nsa_out:\ns_waitcnt lgkmcnt(0)\ns_barrier')
    emit(p, HS[Cfg.hq0:])
    p(f's_mul_i32 s28, s2, {y * 1024}\ns_add_u32 s28, s28, {H1F}')
    for k in range(y):
        if k and k % 4 == 0: p('s_add_u32 s28, s28, 4096')
        p(f'buffer_store_dwordx4 v[4:7], v1, s[4:7], s28 offen offset:{1024 * (k & 3)}{SC}')
        if k == y - 1 - Cfg.hb2: p('s_barrier')
    p(f'''
    s_lshl_b32 s56, s2, {Cfg.FS}
    s_add_u32 s56, s56, {F1}
    v_mov_b32 v8, s60
    v_mov_b32 v9, 0
    s_mov_b64 exec, 1
    s_waitcnt vmcnt(0)
    buffer_store_dword v8, v9, s[4:7], s56 offen{SC}
    s_mov_b64 exec, -1
    s_branch hlp_end
    hlp_b:
    s_cmp_ge_u32 s2, 234
    s_cbranch_scc1 hlp_end
    s_cmp_lt_u32 s2, 192
    s_cbranch_scc1 hlp_l
    {'s_barrier' if Cfg.ob else ''}
    ''')
    if Cfg.hld:
        p('hlp_l:' + UNIT + 's_mov_b32 s3, 0\nhlp_lw:')
        relayout2(p, 'la', 0)
        p('s_add_u32 s3, s3, 1\ns_cmp_lt_u32 s3, 4\ns_cbranch_scc1 hlp_lw')
    p('hlp_end:\ns_waitcnt vmcnt(0)')
    if Cfg.stamp:
        p(f's_memrealtime s[98:99]\ns_lshl_b32 s28, s2, 2\ns_add_u32 s28, s28, {DBGW + 0x20000}\nv_mov_b32 v2, 0\ns_waitcnt lgkmcnt(0)\nv_mov_b32 v3, s98\nbuffer_store_dword v3, v2, s[4:7], s28 offen\nv_mov_b32 v3, s96\nbuffer_store_dword v3, v2, s[4:7], s28 offen offset:1024')
    p('s_endpgm')

F1L = ['v_lshlrev_b32 v244, %d, v0' % Cfg.FS, f's_lshl_b32 s57, s3, {6 + Cfg.FS}', f's_add_u32 s57, s57, {F1}',
       f'buffer_load_dword v240, v244, s[4:7], s57 offen{SC}']
CW = 65536

def kgen2(p, inject, inject2):
    ACC = 24; FR = 40; Lr = 104; T = 136
    p(f'''
    s_mul_i32 s26, s3, 17408
    s_mov_b32 m0, s26
    v_and_b32 v3, 31, v0
    v_mul_u32_u24 v3, 272, v3
    v_lshrrev_b32 v4, 5, v0
    v_lshl_add_u32 v3, v4, 4, v3
    v_add_u32 v3, s26, v3
    v_mov_b32 v4, 0x3f80
    ds_write_addtid_b32 v4
    s_mul_i32 s27, s3, 4608
    s_add_u32 s27, s27, {RC}
    v_lshlrev_b32 v5, 3, v0
    v_add_u32 v5, s27, v5
    v_mov_b32 v6, 0
    v_mov_b32 v7, 0
    ds_write_b64 v5, v[6:7]
    s_mov_b32 s36, {f2u(LOG2E)}
    s_mov_b32 s37, {f2u(1 / (2 * math.pi))}
    s_mov_b32 s38, 0x41000000
    s_mov_b32 s39, 0x43800000
    v_mul_f32 v20, s36, v20
    v_exp_f32 v20, v20
    v_cvt_pk_bf16_f32 v20, v20, v20
    v_lshlrev_b32 v20, 16, v20
    v_add_f32 v22, v20, v20
    v_cmp_eq_u32 vcc, 0, v0
    v_cndmask_b32 v21, 0, v21, vcc
    ''')
    code = []; tp = [T]
    def new(n=2):
        r = tp[0]; tp[0] += n; return r
    cv = [0]; CV = 240
    def put(val, rows, neg):
        r = CV + (cv[0] % 12); cv[0] += 1
        code.append(f'v_cvt_pk_bf16_f32 v{r}, v{val}, {"-" if neg else ""}v{val + 1}')
        for row in rows: code.append(f'ds_write_addtid_b32 v{r} offset:{272 * row}')
    for st in range(3):
        tp[0] = T
        la, ai, cr, ci = [8 + 4 * st + k for k in range(4)]
        E1, E256, G0 = new(), new(), new()
        E8 = Lr
        t = new(10)
        code += [f'v_mul_f32 v{la}, s36, v{la}', f'v_exp_f32 v{la}, v{la}', f'v_cvt_pk_bf16_f32 v{la}, v{la}, v{la}',
                 f'v_lshlrev_b32 v{la}, 16, v{la}', f'v_mul_f32 v{la}, v{la}, v20', f'v_mul_f32 v{la}, -v{la}, s36',
                 f'v_mul_f32 v{ai}, v{ai}, v20', f'v_mul_f32 v{ai}, s37, v{ai}',
                 f'v_mul_f32 v{G0}, v{cr}, v22', f'v_mul_f32 v{G0 + 1}, v{ci}, v22']
        for k, (E, sc) in enumerate(((E8, 's38'), (E1, None), (E256, 's39'))):
            m_, a_ = t + 3 * k, t + 3 * k + 1
            if sc:
                code += [f'v_mul_f32 v{m_}, {sc}, v{la}', f'v_mul_f32 v{a_}, {sc}, v{ai}', f'v_exp_f32 v{m_}, v{m_}', f'v_fract_f32 v{a_}, v{a_}']
            else:
                code += [f'v_exp_f32 v{m_}, v{la}', f'v_fract_f32 v{a_}, v{ai}']
            code += [f'v_cos_f32 v{E}, v{a_}', f'v_sin_f32 v{E + 1}, v{a_}',
                     f'v_mul_f32 v{E}, v{E}, v{m_}', f'v_mul_f32 v{E + 1}, v{E + 1}, v{m_}']
        Lx = lambda j: Lr + 2 * (j - 1)
        put(E8, [1], False)
        put(G0, [32 + r for r in HROW[0]], True)
        tmp = [new() for _ in range(6)]; ti = [0]
        def nt():
            r = tmp[ti[0] % len(tmp)]; ti[0] += 1; return r
        E2, E4 = new(), new()
        G = {0: G0}
        hi = [(E2, E1, E1, None), (E4, E2, E2, None)]
        HL = ((1, 0, E1), (2, 0, E2), (3, 1, E2), (4, 0, E4), (5, 1, E4), (6, 2, E4), (7, 3, E4), (8, 0, E8),
              (256, 0, E256), (264, 8, E256), (258, 2, E256), (260, 4, E256), (262, 6, E256),
              (512, 256, E256), (520, 264, E256), (516, 260, E256), (768, 512, E256), (776, 520, E256), (772, 516, E256),
              (1024, 768, E256), (1032, 776, E256), (1280, 1024, E256), (1288, 1032, E256),
              (1536, 1280, E256), (1544, 1288, E256), (1792, 1536, E256), (1800, 1544, E256))
        used = {a_ for _, a_, _ in HL}
        for h_, a_, b_ in HL:
            G[h_] = new() if h_ in used else None
            hi.append((G[h_], G[a_], b_, h_))
        lo = []
        for j in range(2, 32):
            pw = 1 << (j.bit_length() - 1)
            a_, b_ = (pw // 2, pw // 2) if j == pw else (j - pw, pw)
            lo.append((Lx(j) if j <= 16 else None, Lx(a_), Lx(b_), j))
        for k in range(max(len(lo), len(hi))):
            if k < len(lo):
                D_, X_, Y_, j = lo[k]; D_ = nt() if D_ is None else D_
                code += cmul(D_, X_, Y_); put(D_, [j], False)
            if k < len(hi):
                D_, X_, Y_, h_ = hi[k]; D_ = nt() if D_ is None else D_
                code += cmul(D_, X_, Y_)
                if h_ in HROW: put(D_, [32 + r for r in HROW[h_]], True)
        assert tp[0] <= XP, tp[0]
        for m in range(8):
            code.append(f'ds_read_b128 {v(FR + 4 * m, 4)}, v3 offset:{32 * 272 + 32 * m}')
            code.append(f'ds_read_b128 {v(FR + 32 + 4 * m, 4)}, v3 offset:{32 * m}')
        for m in range(8):
            c = '0' if (st == 0 and m == 0) else v(ACC, 16)
            code.append(f'v_mfma_f32_32x32x16_bf16 {v(ACC, 16)}, {v(FR + 4 * m, 4)}, {v(FR + 32 + 4 * m, 4)}, {c}')
    S = sched(code)
    k = int(len(S) * Cfg.inj)
    W_ = weave(S[:k], inject2, Cfg.i2a, Cfg.i2b)
    if Cfg.stamp:
        emit(p, W_[:12]); stamp(p, 25); emit(p, W_[12:len(W_) // 2]); stamp(p, 26); W_ = W_[len(W_) // 2:]
    emit(p, W_ + inject + S[k:])
    q = lambda i: f'v{ACC + i}'
    O = FR
    p(f'''
    v_lshlrev_b32 v5, 4, v0
    v_add_u32 v5, s27, v5
    v_lshrrev_b32 v6, 5, v0
    v_lshl_add_u32 v6, v6, 9, v5
    s_mov_b32 s40, 0xaaaaaaaa
    s_mov_b32 s41, 0xaaaaaaaa
    v_add_f32 {q(0)}, {q(0)}, v21
    v_cvt_pk_bf16_f32 v{O}, {q(7)}, {q(6)}
    v_cvt_pk_bf16_f32 v{O + 1}, {q(5)}, {q(4)}
    v_cvt_pk_bf16_f32 v{O + 2}, {q(3)}, {q(2)}
    v_cvt_pk_bf16_f32 v{O + 3}, {q(1)}, {q(0)}
    ds_write_b128 v5, {v(O, 4)} offset:512
    v_cvt_pk_bf16_f32 v{O + 4}, {q(14)}, {q(14)}
    v_cvt_pk_bf16_f32 v{O + 5}, {q(13)}, {q(13)}
    v_cvt_pk_bf16_f32 v{O + 6}, {q(13)}, {q(12)}
    v_cvt_pk_bf16_f32 v{O + 7}, {q(12)}, {q(12)}
    ds_write_b128 v5, {v(O + 4, 4)} offset:{96 * 16}
    ''')
    for k in range(2):
        a_, b_ = q(8 + 2 * k), q(9 + 2 * k); o = O + 8 + 4 * k
        p(f'''
        v_cndmask_b32 v7, {a_}, {b_}, s[40:41]
        v_cvt_pk_bf16_f32 v{o}, {b_}, {b_}
        v_cvt_pk_bf16_f32 v{o + 1}, {b_}, v7
        v_cvt_pk_bf16_f32 v{o + 2}, {a_}, {a_}
        v_mov_b32 v{o + 3}, v{o + 2}
        ds_write_b128 v6, {v(o, 4)} offset:{160 * 16 + 512 * k}
        ''')

def normalize(p):
    M0 = 40960
    p(f'''
    s_lshl_b32 s46, s3, 10
    s_add_u32 m0, s46, {M0}
    s_add_u32 s46, s46, {UC + 4160 + 30}
    v_lshl_add_u32 v8, v0, 2, s46
    s_mov_b32 s48, 0xffff0000
    ''')
    code = []
    for k in range(4):
        B = 64 + 32 * (k & 1)
        for pp in range(2):
            ms = SR + 4 * k + 2 * pp; rn = B + 16 + 2 * pp; F = B + 4 * pp; x = XP + 4 * k + 2 * pp
            code += [f'v_and_b32 v{rn}, s48, v{ms}', f'v_rcp_f32 v{rn}, v{rn}', f'v_lshlrev_b32 v{ms}, 16, v{ms}',
                     f'v_mul_f32 v{rn + 1}, -v{ms}, v{rn}'] + unpack(F, x, 48) + unpack(F + 2, x + 1, 48)
            for h_ in range(2):
                code.append(f'v_pk_fma_f32 {v(F + 2 * h_, 2)}, {v(F + 2 * h_, 2)}, {v(rn, 2)}, {v(rn, 2)} op_sel:[0,0,1] op_sel_hi:[1,0,1]')
        for c in range(4):
            E = B + 8 + c
            code += [f'v_cvt_pk_bf16_f32 v{E}, v{B + c}, v{B + 4 + c}',
                     f'ds_write_addtid_b32 v{E} offset:{UC + 32 - M0 + c * CHS + 256 * k}',
                     f'ds_write_b16 v8, v{E} offset:{c * CHS + 256 * k}',
                     f'ds_write_b16_d16_hi v8, v{E} offset:{c * CHS + 256 * k + 2}']
    emit(p, sched(code))

def conv2(p, fill):
    ACC = 24; KF = [56, 88]; UF = [120, 152]
    p(f'''
    v_and_b32 v8, 15, v0
    v_lshrrev_b32 v9, 4, v0
    v_and_b32 v10, 1, v0
    v_mul_u32_u24 v10, 4158, v10
    v_lshlrev_b32 v11, 1, v8
    v_sub_u32 v11, v11, v10
    v_lshl_add_u32 v11, v9, 4, v11
    s_mul_i32 s46, s3, {CHS}
    s_add_u32 s47, s46, {UC + 4160}
    v_add_u32 v11, s47, v11
    v_add_u32 v12, 1024, v11
    v_add_u32 v13, 2048, v11
    v_add_u32 v14, 3072, v11
    v_lshlrev_b32 v15, 5, v8
    v_lshlrev_b32 v16, 4, v9
    v_sub_u32 v15, v15, v16
    s_mul_i32 s47, s3, 4608
    s_add_u32 s47, s47, {RC + 16 + 512 - 448}
    v_add_u32 v15, s47, v15
    s_waitcnt lgkmcnt(0)
    s_barrier
    ''')
    if not Cfg.xh: flag_store(p, 'pba', [('s2', F1)], 245)
    stamp(p, 4)
    def loads(j0):
        b = j0 & 1; out = []
        kf = lambda d: f'ds_read_b128 {v(KF[b] + 4 * d, 4)}, v15 offset:{512 * d - 64 * j0 + 448}'
        out.append(kf(0))
        for jp in range(8):
            o = 128 * (jp & 1) + 16 * j0
            out.append(f'ds_read2_b32 {v(UF[b] + 4 * jp, 2)}, v{11 + (jp >> 1)} offset0:{o} offset1:{o + 1}')
            out.append(f'ds_read2_b32 {v(UF[b] + 4 * jp + 2, 2)}, v{11 + (jp >> 1)} offset0:{o + 2} offset1:{o + 3}')
        out += [kf(d) for d in range(1, 8)]
        return out
    emit(p, loads(0))
    p(f'''
    v_lshlrev_b32 v16, 2, v9
    v_lshl_add_u32 v16, v8, 4, v16
    s_mul_i32 s47, s3, {CHY}
    s_add_u32 s47, s47, {UC}
    v_add_u32 v16, s47, v16
    v_bfe_u32 v17, v0, 2, 2
    v_mul_u32_u24 v17, {CHY}, v17
    v_and_b32 v18, 3, v0
    v_lshl_add_u32 v17, v18, 3, v17
    v_lshl_add_u32 v17, v9, 5, v17
    s_lshl_b32 s47, s3, 10
    s_add_u32 s47, s47, {UC}
    v_add_u32 v17, s47, v17
    v_mul_u32_u24 v18, 40960, v9
    v_lshl_add_u32 v18, v8, 4, v18
    s_mul_i32 s44, s3, {16 * 40960}
    s_lshl_b32 s45, s50, 8
    s_add_u32 s44, s44, s45
    s_add_u32 s44, s44, {HQ}
    ''')
    order = []
    for d in range(8):
        Is = list(range(d, 8))
        if d == 5: Is = [7, 5, 6]
        if d == 6: Is = [7, 6]
        order += [(I, d) for I in Is]
    F = spread(fill, range(Cfg.jc, 8))
    for j0 in range(8):
        b = j0 & 1
        nx = loads(j0 + 1) if j0 < 7 else []
        if j0: p('s_waitcnt lgkmcnt(0)')
        if j0 == Cfg.jc:
            p('''
            v_cmp_ne_u32 vcc, s60, v253
            s_mov_b32 s8, s4
            s_mov_b32 s9, s5
            s_mov_b32 s11, s7
            s_cmp_eq_u64 vcc, 0
            s_cselect_b32 s10, s6, 0
            ''')
        fl = (F1L if j0 == Cfg.jf else []) + F.get(j0, []); k0 = 0
        if j0 == Cfg.jl: p(f'buffer_load_dword v253, v253, s[4:7], s49 offen{SC}')
        for k, (I, d) in enumerate(order):
            c = v(ACC + 4 * I, 4)
            src = '0' if (j0 == 0 and d == 0) else c
            p(f'{MF} {c}, {v(UF[b] + 4 * (I - d), 4)}, {v(KF[b] + 4 * d, 4)}, {src}')
            if k < len(nx): p(nx[k])
            if k >= Cfg.cf0:
                e = len(fl) * (k - Cfg.cf0 + 1) // (36 - Cfg.cf0)
                emit(p, fl[k0:e]); k0 = e
    stamp(p, 5)
    for I in (0, 1, 2, 3, 4, 5, 6, 7):
        o = 56 + 2 * I
        p(f'v_cvt_pk_bf16_f32 v{o}, v{ACC + 4 * I}, v{ACC + 4 * I + 2}')
        p(f'v_cvt_pk_bf16_f32 v{o + 1}, v{ACC + 4 * I + 1}, v{ACC + 4 * I + 3}')
        p(f'ds_write2st64_b32 v16, v{o}, v{o + 1} offset0:{2 * I} offset1:{2 * I + 1}')
    U_ = 128
    for r in range(16): emit(p, unpack(U_ + 2 * r, XP + r, 48))
    p(f'''
    s_lshl_b32 s57, s3, 2
    s_add_u32 s57, s57, {CW}
    v_mov_b32 v242, s57
    v_mov_b32 v243, {CW}
    v_cmp_ne_u32 vcc, s60, v240
    s_cmp_eq_u32 s10, 0
    s_cselect_b32 s57, 1, vcc_lo
    s_or_b32 s57, s57, vcc_hi
    v_mov_b32 v241, s57
    ds_write_b32 v242, v241
    s_waitcnt lgkmcnt(0)
    s_barrier
    ds_read_b128 v[240:243], v243
    ''')
    Y = 72
    for k in range(4):
        for pp in range(2):
            p(f'ds_read_b64_tr_b16 {v(Y + 4 * k + 2 * pp, 2)}, v17 offset:{512 * (k >> 1) + 256 * pp + 128 * (k & 1)}')
    code = []
    for k in range(4):
        for r in range(4 * k, 4 * k + 4):
            t = 96 + 2 * r
            code += unpack(t, Y + r, 48) + [f'v_pk_add_f32 {v(t, 2)}, {v(t, 2)}, {v(U_ + 2 * r, 2)}', f'v_cvt_pk_bf16_f32 v{Y + r}, v{t}, v{t + 1}']
        code.append(f'buffer_store_dwordx4 {v(Y + 4 * k, 4)}, v18, s[4:7], s44 offen{SC}')
        if k < 3: code.append(f's_add_u32 s44, s44, {4 * 40960}')
    emit(p, code)

def ln_stats(p, sl, part):
    XS = [8, 100]; F = 32
    p(f'''
    v_lshrrev_b32 v1, 4, v0
    v_and_b32 v2, 15, v0
    s_lshl_b32 s24, s{sl}, 2
    s_add_u32 s24, s24, s3
    ''')
    if part == 0:
        srd(p, 8, 'x', 2048 * 1280)
        p(f'''
        v_mul_u32_u24 v3, 1280, v1
        v_lshl_add_u32 v3, v2, 4, v3
        s_mul_i32 s24, s24, {8 * 1280}
        ''')
        for n in range(2):
            if n: p('s_add_u32 s24, s24, 5120')
            for i in range(5):
                p(f'buffer_load_dwordx4 {v(XS[n] + 4 * i, 4)}, v3, s[8:11], s24 offen offset:{256 * i}')
        return
    p(f'''
    s_lshl_b32 s25, s24, 6
    s_add_u32 s25, s25, {STAT}
    v_lshl_add_u32 v4, v2, 2, v1
    v_lshlrev_b32 v4, 3, v4
    s_mov_b32 s28, 0xffff0000
    ''')
    for n in range(2):
        X = XS[n]
        for i in range(5):
            for d in range(4):
                k = 4 * i + d
                emit(p, unpack(F + 2 * k, X + k, 28))
            if i == 0:
                p(f'v_pk_add_f32 v[72:73], {v(F, 2)}, {v(F + 2, 2)}')
                p(f'v_pk_add_f32 v[74:75], {v(F + 4, 2)}, {v(F + 6, 2)}')
            else:
                for d in range(4):
                    a_ = 72 + 2 * (d & 1)
                    p(f'v_pk_add_f32 {v(a_, 2)}, {v(a_, 2)}, {v(F + 8 * i + 2 * d, 2)}')
        p('v_pk_add_f32 v[72:73], v[72:73], v[74:75]')
        p('v_add_f32 v72, v72, v73')
        row16_reduce(p, 72)
        p(f'v_mul_f32 v72, {f2u(1 / 640)}, v72')
        for k in range(20):
            p(f'v_pk_add_f32 {v(F + 2 * k, 2)}, {v(F + 2 * k, 2)}, v[72:73] op_sel_hi:[1,0] neg_lo:[0,1] neg_hi:[0,1]')
        for k in range(20):
            a_ = 74 + 2 * (k & 1)
            if k < 2: p(f'v_pk_mul_f32 {v(a_, 2)}, {v(F + 2 * k, 2)}, {v(F + 2 * k, 2)}')
            else: p(f'v_pk_fma_f32 {v(a_, 2)}, {v(F + 2 * k, 2)}, {v(F + 2 * k, 2)}, {v(a_, 2)}')
        p('v_pk_add_f32 v[74:75], v[74:75], v[76:77]')
        p('v_add_f32 v74, v74, v75')
        row16_reduce(p, 74)
        p(f'''
        v_mul_f32 v74, {f2u(1 / 640)}, v74
        v_cvt_pk_bf16_f32 v74, v74, v74
        v_lshlrev_b32 v74, 16, v74
        v_add_f32 v74, {f2u(EPS)}, v74
        v_cvt_pk_bf16_f32 v74, v74, v74
        v_lshlrev_b32 v74, 16, v74
        v_sqrt_f32 v74, v74
        v_cvt_pk_bf16_f32 v{78 + n}, v72, v74
        ''')
    p(TAG)
    p(f'''
    v_cmp_eq_u32 vcc, 0, v2
    v_cndmask_b32 v78, v79, v78, vcc
    v_mov_b32 v79, s60
    s_mov_b32 s30, 0x00030003
    s_mov_b32 s31, 0x00030003
    s_mov_b64 exec, s[30:31]
    buffer_store_dwordx2 v[78:79], v4, s[4:7], s25 offen{SC}
    s_mov_b64 exec, -1
    ''')

def relayout2(p, lab, part, *a):
    p(f'''
    s_cmp_lt_u32 s20, 20
    s_cbranch_scc1 {lab}_w1
    s_cmp_lt_u32 s20, 40
    s_cbranch_scc1 {lab}_w2
    s_cmp_lt_u32 s20, 88
    s_cbranch_scc1 {lab}_w3
    ''')
    def params(name, rs, nrows, u0, dest, nt, ns, sp, cs):
        srd(p, 8, name, nrows * rs)
        if name == 'w4':
            p(f'''
            s_sub_u32 s24, s20, 88
            s_mul_i32 s35, s24, 205
            s_lshr_b32 s35, s35, 12
            s_mul_i32 s25, s35, 20
            s_sub_u32 s24, s24, s25
            s_lshl_b32 s35, s35, 4
            s_add_u32 s35, s35, s3
            s_lshl_b32 s25, s35, 5
            s_mov_b32 s38, 4
            ''')
        else:
            p(f's_sub_u32 s24, s20, {u0}\ns_mov_b32 s35, s3\ns_mov_b32 s38, 5')
            if sp: p('s_lshr_b32 s25, s3, 1\ns_mul_i32 s25, s25, 80\ns_and_b32 s26, s3, 1\ns_lshl_b32 s26, s26, 5\ns_add_u32 s25, s25, s26')
            else: p('s_lshl_b32 s25, s3, 5')
        p(f's_mul_i32 s25, s25, {rs}\ns_mov_b32 s26, {(160 if sp else 128) * rs}')
        if sp: p(f's_mul_i32 s27, s3, {160 * rs}\ns_add_u32 s27, s27, {64 * rs}')
        else: p(f's_add_u32 s27, s25, {512 * rs}')
        P = nt * 1024
        if name == 'w2':
            p(f'''
            s_lshl_b32 s35, s3, 1
            s_mov_b32 s39, {8 * P}
            s_mov_b32 s40, {(-7 * P) & 0xffffffff}
            s_and_b32 s41, s3, 1
            s_lshl_b32 s41, s41, 1
            s_lshr_b32 s43, s3, 1
            s_add_u32 s41, s41, s43
            s_add_u32 s41, s41, 7
            s_sub_u32 s41, s41, s35
            s_mul_i32 s41, s41, {P}
            ''')
        else:
            p(f's_mov_b32 s39, {4 * P}\ns_mov_b32 s40, {4 * P}\ns_mov_b32 s41, {4 * P}')
        p('s_mov_b32 s23, s39')
        if name == 'w4' and Cfg.ko4:
            for g_ in range(48): assert (g_ * 86) >> 8 == g_ // 3
            p(f'''
            s_mul_i32 s41, s35, 86
            s_lshr_b32 s41, s41, 8
            s_mul_i32 s43, s41, 3
            s_sub_u32 s43, s35, s43
            s_lshl_b32 s35, s43, 4
            s_add_u32 s35, s35, s41
            s_mov_b32 s41, {17 * P}
            s_cmp_eq_u32 s43, 2
            s_cselect_b32 s39, {(-30 * P) & 0xffffffff}, s41
            s_cmp_eq_u32 s43, 1
            s_cselect_b32 s40, {(-30 * P) & 0xffffffff}, s41
            s_cmp_eq_u32 s43, 0
            s_cselect_b32 s23, {(-30 * P) & 0xffffffff}, s41
            ''')
        p(f'''
        s_mov_b32 s28, {(8 if sp else 16) * rs}
        s_mov_b32 s29, {(80 if sp else 8) * rs}
        s_mov_b32 s31, {rs}
        s_mov_b32 s32, {dest}
        s_mov_b32 s33, {nt}
        s_mov_b32 s34, {ns * nt}
        s_mov_b32 s36, {cs}
        s_mov_b32 s37, {205 if nt == 5 else 171}
        ''')
    for g in range(40): assert (g * 205) >> 10 == g // 5
    for g in range(96): assert (g * 171) >> 10 == g // 6
    for g in range(60): assert (g * 205) >> 12 == g // 20
    params('w4', 1280, 1536, 88, W4F, 5, 48, False, 0); p(f's_branch {lab}_go')
    p(f'{lab}_w1:'); params('w1', 1280, 640, 0, W1F, 5, 20, False, CS1); p(f's_branch {lab}_go')
    p(f'{lab}_w2:'); params('w2', 1280, 640, 20, W2F, 5, 20, True, 0); p(f's_branch {lab}_go')
    p(f'{lab}_w3:'); params('w3', 3072, 640, 40, W3F, 6, 20, True, CS3)
    p(f'{lab}_go:')
    if part == 0: rl_load(p, lab)
    else: rl_store(p, lab, *a)

def rl_load(p, lab):
    p(f'''
    v_lshrrev_b32 v3, 1, v0
    v_lshrrev_b32 v4, 4, v0
    v_xor_b32 v3, v3, v4
    v_and_b32 v3, 1, v3
    v_and_b32 v4, 1, v0
    v_lshl_add_u32 v3, v3, 1, v4
    s_lshl_b32 s42, s24, 6
    v_lshl_add_u32 v3, v3, 4, s42
    v_lshrrev_b32 v1, 2, v0
    v_mul_lo_u32 v1, v1, s31
    v_add_u32 v1, v1, v3
    v_bfe_u32 v2, v0, 2, 3
    v_mul_lo_u32 v2, v2, s31
    v_lshrrev_b32 v4, 5, v0
    v_mul_lo_u32 v4, v4, s29
    v_add3_u32 v2, v2, v4, v3
    s_mul_i32 s42, s3, 10240
    s_add_u32 m0, s42, s22
    s_lshl_b32 s43, s31, 4
    ''')
    def ld(va, so):
        return f'''
        buffer_load_dwordx4 {va}, s[8:11], {so} offen lds
        s_add_u32 m0, m0, {49152 - 64}
        buffer_load_dwordx4 {va}, s[8:11], {so} offen offset:64 lds
        s_sub_u32 m0, m0, {49152 - 64 - 1024}
        '''
    for i in range(5):
        if i == 4:
            p(f's_cmp_eq_u32 s38, 4\ns_cbranch_scc1 {lab}_ld_done')
            p(ld('v2', 's27')); p('s_add_u32 s27, s27, s28'); p(ld('v2', 's27'))
        else:
            p(ld('v1', 's25')); p('s_add_u32 s30, s25, s43'); p(ld('v1', 's30')); p('s_add_u32 s25, s25, s26')
    p(f'{lab}_ld_done:')

def rl_store(p, lab, pre=None, mid=None, post=None):
    p(f'''
    s_mul_i32 s42, s3, 10240
    v_lshrrev_b32 v2, 2, v0
    v_bfe_u32 v3, v0, 4, 1
    v_and_b32 v9, 3, v0
    v_lshlrev_b32 v9, 3, v9
    v_lshl_add_u32 v9, v2, 6, v9
    v_add_u32 v9, s42, v9
    v_lshlrev_b32 v8, 4, v0
    v_mov_b32 v10, 0x3f803f80
    v_mov_b32 v11, 0x3f803f80
    v_mov_b32 v12, 0x3f803f80
    v_mov_b32 v13, 0x3f803f80
    s_mul_i32 s43, s35, s33
    ''')
    for t in range(4):
        if t < 2: p(f'v_xor_b32 v{4 + t}, {t}, v3\nv_lshl_add_u32 v{4 + t}, v{4 + t}, 5, v9')
        p(f'''
        s_lshl_b32 s48, s24, 1
        s_add_u32 s48, s48, {t}
        s_mul_i32 s49, s48, s37
        s_lshr_b32 s49, s49, 10
        s_mul_i32 s46, s49, s33
        s_sub_u32 s48, s48, s46
        s_mul_i32 s49, s49, s34
        s_add_u32 s48, s48, s49
        s_add_u32 s48, s48, s43
        s_lshl_b32 s48, s48, 10
        s_add_u32 s{12 + t}, s48, s32
        ''')
    CSL = 40960
    p(f'''
    s_lshl_b32 s48, s3, 8
    s_add_u32 s48, s48, {CSL}
    v_and_b32 v2, 48, v0
    v_add_u32 v2, s48, v2
    s_mov_b32 s46, 0x00010001
    s_mov_b32 s47, 0x00010001
    v_lshlrev_b32 v6, 2, v0
    v_add_u32 v7, {CSL}, v6
    s_lshl_b32 s48, s24, 7
    s_add_u32 s48, s48, s36
    ''')
    if pre: pre()
    p('s_barrier')
    stamp(p, 27)
    if mid: mid()
    def rd(i):
        R = 32 + 16 * i
        for t in range(4):
            p(f'ds_read_b64_tr_b16 {v(R + 4 * t, 2)}, v{4 + (t & 1)} offset:{2048 * i + 49152 * (t >> 1)}')
            p(f'ds_read_b64_tr_b16 {v(R + 4 * t + 2, 2)}, v{4 + (t & 1)} offset:{2048 * i + 1024 + 49152 * (t >> 1)}')
    for i in range(5): rd(i)
    for i in range(5):
        if i == 4: p(f's_cmp_eq_u32 s38, 4\ns_cbranch_scc1 {lab}_st_done')
        R = 32 + 16 * i
        for t in range(4):
            p(f'buffer_store_dwordx4 {v(R + 4 * t, 4)}, v8, s[4:7], s{12 + t} offen{SC}')
            if i < 4: p(f's_add_u32 s{12 + t}, s{12 + t}, s{(39, 40, 23, 41)[i]}')
            p(f'{MF} {v(16 + 4 * t, 4)}, {v(R + 4 * t, 4)}, v[10:13], {v(16 + 4 * t, 4) if i else 0}')
    p(f'{lab}_st_done:')
    stamp(p, 24)
    p(f'''
    s_cmp_eq_u32 s36, 0
    s_cbranch_scc1 {lab}_done
    s_mov_b64 exec, s[46:47]
    ds_write_b128 v2, v[16:19]
    ds_write_b128 v2, v[20:23] offset:64
    ds_write_b128 v2, v[24:27] offset:128
    ds_write_b128 v2, v[28:31] offset:192
    s_mov_b64 exec, -1
    s_waitcnt lgkmcnt(0)
    s_barrier
    s_cmp_lg_u32 s3, 0
    s_cbranch_scc1 {lab}_done
    ds_read_b32 v4, v7
    ds_read_b32 v5, v7 offset:256
    ds_read_b32 v8, v7 offset:512
    ds_read_b32 v9, v7 offset:768
    v_add_f32 v4, v4, v5
    v_add_f32 v8, v8, v9
    v_add_f32 v4, v4, v8
    buffer_store_dword v4, v6, s[4:7], s48 offen{SC}
    {lab}_done:
    ''')
    if post: post()

def build(dbg=False):
    Cfg.stamp = dbg
    p = Prog()
    g1 = PG(5, 20, W1F, 25, 120); g2 = PG(5, 20, W2F, 25, 60); g3 = PG(6, 20, W3F, 53, 0); g4 = PG(5, 48, W4F, 25, 120)
    prologue(p, 256, 'k')
    p('s_cmp_eq_u32 s3, 4\ns_cbranch_scc1 helper')
    if dbg: p('v_mov_b32 v255, 0')
    stamp(p, 0)
    if dbg: p('s_memtime s[98:99]\ns_waitcnt lgkmcnt(0)\nv_writelane_b32 v255, s98, 30')
    p(f'''
    s_add_u32 s56, s92, {EPW}
    s_addc_u32 s57, s93, 0
    s_load_dword s60, s[56:57], 0
    s_cmp_ge_u32 s2, 160
    s_cbranch_scc1 role_b
    ''')
    def ids():
        p('''
        s_lshr_b32 s28, s2, 3
        s_and_b32 s29, s2, 7
        s_and_b32 s25, s28, 7
        s_lshr_b32 s24, s28, 3
        s_lshl_b32 s30, s29, 2
        s_add_u32 s24, s24, s30
        s_lshl_b32 s62, s24, 3
        s_add_u32 s62, s62, s25
        s_lshl_b32 s24, s24, 2
        s_add_u32 s24, s24, s3
        s_and_b32 s53, s28, 15
        s_lshr_b32 s52, s28, 4
        s_lshl_b32 s30, s29, 1
        s_add_u32 s52, s52, s30
        s_lshl_b32 s63, s52, 4
        s_add_u32 s63, s63, s53
        s_lshl_b32 s52, s52, 2
        s_add_u32 s52, s52, s3
        s_lshl_b32 s52, s52, 1
        s_and_b32 s51, s3, 1
        v_lshlrev_b32 v1, 4, v0
        ''')
    W1DMA = dma(g1, 0, 10) + dma(g1, 40, 15)
    p('s_and_b32 s50, s2, 7\ns_mul_i32 s50, s50, 20\ns_lshr_b32 s51, s2, 3\ns_add_u32 s50, s50, s51')
    emit_kgen_loads(p, 50)
    if Cfg.pfw:
        p(f'''
        s_cmp_ge_u32 s3, {Cfg.pfw}
        s_cbranch_scc1 pfw_end
        s_cmp_eq_u32 s3, 1
        s_cselect_b64 s[44:45], s[82:83], s[80:81]
        s_cmp_eq_u32 s3, 2
        s_cselect_b64 s[44:45], s[84:85], s[44:45]
        s_cmp_eq_u32 s3, 3
        s_cselect_b64 s[44:45], s[86:87], s[44:45]
        s_cmp_lt_u32 s3, 2
        s_cselect_b32 s43, 39, {Cfg.pf34 - 1}
        s_mov_b32 s47, 0x20000
        s_add_u32 s42, s43, 1
        s_mul_i32 s46, s42, 20480
        s_mul_i32 s42, s42, s2
        s_lshl_b32 s42, s42, 7
        v_min_u32 v252, s43, v0
        v_lshlrev_b32 v252, 7, v252
        buffer_load_dword v254, v252, s[44:47], s42 offen
        pfw_end:
        ''')
    if Cfg.ob: p('s_barrier')
    p(f'''
    s_cmp_lg_u32 s3, 0
    s_cbranch_scc1 nozero
    v_lshrrev_b32 v5, 4, v0
    v_mul_u32_u24 v5, {CHS}, v5
    v_bfe_u32 v6, v0, 3, 1
    v_mul_u32_u24 v6, 4160, v6
    v_and_b32 v7, 7, v0
    v_lshl_add_u32 v5, v7, 2, v5
    v_add3_u32 v5, v5, v6, v2
    v_add_u32 v5, {UC}, v5
    ds_write_b32 v5, v2
    nozero:
    ''')
    stamp(p, 1)
    assert Cfg.xh
    kgen2(p, [], [])
    p(TAG)
    stamp(p, 2)
    ids()
    def w1flags():
        p(f'''
        s_mul_i32 s56, s25, 5
        s_lshr_b32 s56, s56, 1
        s_lshl_b32 s56, s56, {Cfg.FS}
        s_add_u32 s56, s56, {F0}
        v_min_u32 v253, 2, v0
        v_lshlrev_b32 v253, {Cfg.FS}, v253
        s_mov_b64 s[58:59], 7
        ''')
    if Cfg.xh:
        p(f's_lshl_b32 s46, s3, 12\ns_add_u32 s46, s46, {XL}\nv_add_u32 v8, s46, v1\ns_barrier')
        stamp(p, 3)
        for k in range(4): p(f'ds_read_b128 {v(SR + 4 * k, 4)}, v8 offset:{16384 + 1024 * k}\nds_read_b128 {v(XP + 4 * k, 4)}, v8 offset:{1024 * k}')
    normalize(p)
    w1flags()
    p('s_mov_b32 s49, s56')
    conv2(p, dma(g1, 0, 10, 's[8:11]') + dma(g1, 40, 15, 's[8:11]'))
    stamp(p, 6)
    p('''
    v_or3_b32 v240, v240, v241, v242
    v_or_b32 v240, v240, v243
    v_cmp_ne_u32 vcc, 0, v240
    s_cbranch_vccz join1
    s_branch slow1
    ''')
    p('role_b:')
    p('s_sub_u32 s21, s2, 192\ns_cmp_lt_u32 s2, 192\ns_cbranch_scc1 rl_c')
    ln_stats(p, 21, 0)
    if Cfg.ob: p('s_barrier')
    ln_stats(p, 21, 1)
    stamp(p, 1)
    p('s_cmp_lt_u32 s2, 234\ns_cbranch_scc1 rl_a')
    if Cfg.pf3:
        srd(p, 8, 'w3', 640 * 3072)
        p('s_sub_u32 s20, s2, 234\ns_lshl_b32 s20, s20, 2\ns_add_u32 s20, s20, s3\ns_mul_i32 s20, s20, 192 * 128\nv_lshlrev_b32 v1, 7, v0')
        for k in range(3): p(f'buffer_load_dword v{8 + k}, v1, s[8:11], s20 offen\ns_add_u32 s20, s20, 8192')
    x_ = Cfg.hx2; y_ = -(-((H3F - H1F) // 1024 - 22 * x_) // 160)
    p(f's_lshl_b32 s28, s2, 2\ns_add_u32 s28, s28, s3\ns_mul_i32 s28, s28, {x_ * 256}\ns_add_u32 s28, s28, {H1F + (160 * y_ - 234 * x_) * 1024}\nv_lshlrev_b32 v1, 4, v0')
    for k in range(4): p(f'v_mov_b32 v{4 + k}, -1')
    for k in range(x_ // 4):
        if k and k % 4 == 0: p('s_add_u32 s28, s28, 4096')
        p(f'buffer_store_dwordx4 v[4:7], v1, s[4:7], s28 offen offset:{1024 * (k & 3)}{SC}')
    p('s_waitcnt vmcnt(0)\ns_barrier')
    flag_store(p, 'pbq', [('s2', F1)])
    p('s_branch rl_end\nrl_c:')
    p(TAG)
    p('rl_a:' + UNIT)
    assert Cfg.hld
    flag_store(p, 'pbt', [('s2', F1)])
    def pre():
        ids(); w1flags()
        p('v_mov_b32 v240, s60\nv_mov_b32 v241, 45072\ns_cmp_lg_u32 s3, 0\ns_cbranch_scc1 rl_tg\nds_write_b32 v241, v240\ns_waitcnt lgkmcnt(0)\nrl_tg:')
    def mid(): p(f'ds_read_b32 v240, v241\nbuffer_load_dword v253, v253, s[4:7], s56 offen{SC}\nv_readfirstlane_b32 s60, v240')
    def post():
        p(f'''
        v_cmp_ne_u32 vcc, s60, v253
        s_or_b32 s57, vcc_lo, vcc_hi
        v_mov_b32 v241, s57
        s_lshl_b32 s57, s3, 2
        s_add_u32 s57, s57, 45056
        v_mov_b32 v242, s57
        v_mov_b32 v243, 45056
        ds_write_b32 v242, v241
        s_waitcnt lgkmcnt(0)
        s_barrier
        ds_read_b128 v[240:243], v243
        s_add_u32 s21, s20, 1
        v_or3_b32 v240, v240, v241, v242
        v_or_b32 v240, v240, v243
        v_cmp_ne_u32 vcc, 0, v240
        s_cbranch_vccnz rl_late
        s_barrier
        ''')
        emit(p, W1DMA)
        p('s_waitcnt vmcnt(25)\ns_barrier')
        flag_store(p, 'pbs', [('s20', F0), ('s21', F0)])
        p('s_branch rl_f1\nrl_late:')
    relayout2(p, 'rl', 1, pre, mid, post)
    p('s_waitcnt vmcnt(0)\ns_barrier')
    flag_store(p, 'pbr', [('s20', F0), ('s21', F0)])
    p('rl_end:')
    ids()
    stamp(p, 3)
    p('slow1:')
    w1flags()
    spin(p, 'pb', 1, 254)
    emit(p, W1DMA)
    p('rl_f1:')
    stamp(p, 4)
    p(f'v_lshlrev_b32 v253, {Cfg.FS}, v0\ns_lshl_b32 s56, s3, {6 + Cfg.FS}\ns_add_u32 s56, s56, {F1}\ns_mov_b64 s[58:59], -1')
    spin(p, 'pf1', 1, 254)
    p('s_barrier')
    p(f'join1:\ns_mov_b32 s61, {Cfg.spin}')
    mj = p.mark()
    stamp(p, 7)
    A0, A1, SUM, GR, ONES, WB, X, CS, HP, HX = 16, 36, 56, 64, 72, 76, 136, 228, 216, 228
    def ldsbases(kh):
        if kh: p('s_mul_i32 s28, s51, 5120\nv_add_u32 v2, s28, v1\nv_add_u32 v3, 65536, v2\nv_add_u32 v15, 131072, v2')
        else: p('v_add_u32 v3, 65536, v1\nv_add_u32 v15, 131072, v1')
    def wreads(g, WB_, per, b0):
        def f(i):
            out = []
            for t in range(g.NT):
                o = ((g.base + per * i) % 160 + t) * 1024
                out.append(f'ds_read_b128 {v(WB_ + 4 * g.NT * (i % 3) + 4 * t, 4)}, v{(b0, 3, 15)[o >> 16]} offset:{o & 65535}')
            return out
        return f
    def exaddr(vw, vr, EXB):
        p(f'''
        s_mul_i32 s28, s3, 5120
        s_xor_b32 s29, s3, 1
        s_mul_i32 s29, s29, 5120
        s_add_u32 s28, s28, {EXB}
        s_add_u32 s29, s29, {EXB}
        v_add_u32 v{vw}, s28, v1
        v_add_u32 v{vr}, s29, v1
        ''')
    ldsbases(True)
    class g5: NT = 5
    kern.cs_loads(p, g5, CS, CS1, 29)
    EXS = 20480
    exaddr(5, 6, 0)
    p(f'''
    s_lshl_b32 s28, s51, 3
    v_add_u32 v4, s28, v1
    s_lshl_b32 s28, s3, 11
    s_add_u32 s28, s28, {EXS}
    v_add_u32 v7, s28, v1
    s_lshl_b32 s28, s3, 9
    s_add_u32 s28, s28, {EXS + 8192}
    v_lshl_add_u32 v8, v0, 2, s28
    s_and_b32 s29, s3, 2
    s_lshl_b32 s28, s29, 9
    s_lshl_b32 s30, s51, 8
    s_add_u32 s28, s28, s30
    s_add_u32 s28, s28, {EXS + 8192}
    v_lshl_add_u32 v9, v0, 2, s28
    s_lshl_b32 s28, s29, 11
    s_lshl_b32 s30, s51, 10
    s_add_u32 s28, s28, s30
    s_add_u32 s28, s28, {EXS}
    v_bfe_u32 v10, v0, 2, 2
    v_lshlrev_b32 v10, 8, v10
    v_and_b32 v11, 15, v0
    v_lshl_add_u32 v10, v11, 4, v10
    v_and_b32 v11, 3, v0
    v_lshl_add_u32 v10, v11, 2, v10
    v_add_u32 v10, s28, v10
    s_lshr_b32 s30, s24, 1
    s_mul_i32 s30, s30, 40960
    s_add_u32 s30, s30, {HQ}
    s_mul_i32 s31, s25, 5120
    s_add_u32 s31, s31, s30
    s_add_u32 s32, s31, 4096
    s_lshl_b32 s28, s51, 11
    s_add_u32 s30, s30, s28
    ''')
    for k in range(4): p(f'v_mov_b32 v{ONES + k}, 0x3f803f80')
    for l in range(15): assert (l * 86) >> 8 == l // 3
    p(f'''
    v_min_u32 v11, 14, v0
    v_mul_u32_u24 v12, 86, v11
    v_lshrrev_b32 v12, 8, v12
    v_mul_u32_u24 v13, 17, v12
    s_mul_i32 s28, s25, 5
    s_lshr_b32 s28, s28, 1
    s_add_u32 s29, s28, 48
    v_add3_u32 v13, v13, v11, s29
    s_add_u32 s28, s28, 20
    v_add_u32 v14, s28, v11
    v_cmp_eq_u32 vcc, 0, v12
    v_cndmask_b32 v13, v13, v14, vcc
    s_mul_i32 s28, s53, 3
    s_add_u32 s28, s28, 37
    v_add_u32 v14, s28, v11
    v_cmp_eq_u32 vcc, 1, v12
    v_cndmask_b32 v13, v13, v14, vcc
    v_lshlrev_b32 v14, {Cfg.FS}, v13
    s_mov_b32 s33, {F0}
    ''')
    WFL = f'buffer_load_dword v13, v14, s[4:7], s33 offen{SC}'
    STUBS.extend('@' + t for t in ['wfs:', 's_cmp_eq_u32 s61, 0', 's_cbranch_scc1 wfs_b', 's_sub_u32 s61, s61, 1', WFL, 's_waitcnt vmcnt(0)',
                                   'v_cmp_ne_u32 vcc, s60, v13', 's_cbranch_vccnz wfs', 's_branch wfs_b'])
    xs1 = XS('x1_', lambda i: X + 8 * i, lambda i: [(1, 30, 4096 * i + 1024 * h_) for h_ in range(2)], {30: 34})
    def mf1(i):
        c = lambda r: v(r, 4) if i else '0'
        M = []
        for t in range(5):
            for sl in range(2):
                r = (A0, A1)[sl] + 4 * t
                M.append(f'{MF} {v(r, 4)}, {v(WB + 20 * (i % 3) + 4 * t, 4)}, {v(X + 8 * i + 4 * sl, 4)}, {c(r)}')
            if t < 2:
                x = v(X + 8 * i + 4 * t, 4)
                M.append(f'{MF} {v(SUM + 4 * t, 4)}, {v(ONES, 4)}, {x}, {c(SUM + 4 * t)}')
                M.append(f'{MF} {v(GR + 4 * t, 4)}, {x}, {x}, {c(GR + 4 * t)}')
        return M
    def epoch():
        p(f'''
        s_or_b32 s29, s2, s3
        s_cmp_lg_u32 s29, 0
        s_cbranch_scc1 noep
        v_mov_b32 v252, s60
        v_mov_b32 v253, 0
        s_mov_b32 s56, {EPW}
        s_mov_b64 exec, 1
        buffer_store_dword v252, v253, s[4:7], s56 offen sc1
        s_mov_b64 exec, -1
        noep:
        ''')
    HPL = [f'buffer_load_dwordx2 {v(HP + 2 * t, 2)}, v4, s[4:7], s{31 if t < 4 else 32} offen offset:{1024 * (t & 3)}{SC}' for t in range(5)]
    ex = spread(dma(g2, 0, 15), range(10 - Cfg.U1, 10))
    k0 = 10 - Cfg.U1
    ex[k0] = ['v_cmp_ne_u32 vcc, s60, v13', '@s_cbranch_vccnz wfs\n@wfs_b:'] + ex[k0]
    ex[max(0, k0 - Cfg.wfd)] = [WFL]
    def bar1():
        p(f's_waitcnt vmcnt({p.vm_since(mj) + 4})\ns_barrier')
        stamp(p, 8)
    mainloop(p, 10, 5, mf1, wreads(g1, WB, 10, 2), xs1, Cfg.U1, bar1, ex,
             lambda i: [f'v_swap_b32 v{X + 8 * i + 2 + k}, v{X + 8 * i + 4 + k}' for k in range(2)])
    stamp(p, 9)
    TX = WB
    p('s_barrier')
    emit(p, HPL)
    emit(p, dma(g2, 60, 10))
    p(f'''
    ds_write_b128 v7, {v(GR, 4)}
    ds_write_b128 v7, {v(GR + 4, 4)} offset:1024
    ds_write2st64_b32 v8, v{SUM}, v{SUM + 4} offset0:0 offset1:1
    s_cmp_lg_u32 s51, 0
    s_cbranch_scc1 x1_odd
    ''')
    xr = [f'ds_read2st64_b32 v[8:9], v9 offset0:0 offset1:2', f'ds_read2st64_b32 v[10:11], v10 offset0:0 offset1:8'] + \
         [f'ds_read_b128 {v(TX + 4 * t, 4)}, v6 offset:{1024 * t}' for t in range(5)]
    for t in range(5): p(f'ds_write_b128 v5, {v(A1 + 4 * t, 4)} offset:{1024 * t}')
    p('s_waitcnt lgkmcnt(0)\ns_barrier'); emit(p, xr)
    for k in range(10): p(f'v_pk_add_f32 {v(A0 + 2 * k, 2)}, {v(A0 + 2 * k, 2)}, {v(TX + 2 * k, 2)}')
    p('s_branch x1_join\nx1_odd:')
    for t in range(5): p(f'ds_write_b128 v5, {v(A0 + 4 * t, 4)} offset:{1024 * t}')
    p('s_waitcnt lgkmcnt(0)\ns_barrier'); emit(p, xr)
    for k in range(10): p(f'v_pk_add_f32 {v(A0 + 2 * k, 2)}, {v(A1 + 2 * k, 2)}, {v(TX + 2 * k, 2)}')
    p('x1_join:')
    K, ONE, O, T = 56, 58, 60, 136
    code = [f'v_mov_b32 v{K}, {f2u(C0)}', f'v_mov_b32 v{K + 1}, {f2u(C1)}', f'v_mov_b32 v{ONE}, 1.0',
            'v_add_f32 v8, v8, v9', 'v_add_f32 v10, v10, v11',
            f'v_mul_f32 v8, {f2u(1 / 640)}, v8', 'v_mul_f32 v9, v8, v8', f'v_mov_b32 v13, {f2u(1 / 640)}',
            'v_fma_f32 v10, v10, v13, -v9', 'v_max_f32 v10, 0, v10', f'v_add_f32 v11, {f2u(EPS)}, v10', 'v_rsq_f32 v12, v11',
            'v_mul_f32 v11, v12, v12', f'v_mov_b32 v13, {f2u(EPS)}', 'v_fma_f32 v11, v11, v10, v13', 'v_rsq_f32 v11, v11',
            'v_mul_f32 v13, -v8, v12', 'v_mul_f32 v10, v12, v11', 'v_mul_f32 v11, v13, v11']
    for k in range(10):
        A = A0 + 2 * k; t = T + 2 * k
        code += [f'v_pk_mul_f32 {v(CS + 2 * k, 2)}, {v(CS + 2 * k, 2)}, v[10:11] op_sel:[0,1] op_sel_hi:[1,1]',
                 f'v_pk_fma_f32 {v(A, 2)}, {v(A, 2)}, v[10:11], {v(CS + 2 * k, 2)} op_sel_hi:[1,0,1]']
        code += gelu_code(A, t, K, ONE, O + k)
    emit(p, sched(code))
    mS = [p.mark()]
    FS1 = SC if Cfg.fast1 is None else Cfg.fast1
    kern.SC = FS1
    frag_store80(p, O, H1F)
    kern.SC = SC
    stamp(p, 10)
    epoch()
    p('''
    v_and_b32 v9, 15, v0
    v_lshlrev_b32 v9, 1, v9
    v_and_b32 v10, 48, v0
    v_lshlrev_b32 v10, 4, v10
    s_movk_i32 s32, 0x800
    v_bfrev_b32 v56, 1
    s_mov_b32 s33, 0xffff0000
    s_lshr_b32 s29, s24, 1
    s_lshl_b32 s29, s29, 5
    s_lshl_b32 s30, s51, 1
    ''')
    for ds_, sl, expr in ((0, 0, 's_sub_u32 s28, s29, 1'), (0, 1, 's_sub_u32 s28, s29, s30'),
                          (1, 0, 's_add_u32 s28, s29, s30\ns_add_u32 s28, s28, 1'), (1, 1, 's_add_u32 s28, s29, 2')):
        p(expr)
        p(f'''
        v_add_u32 v11, s28, v9
        v_cmp_gt_u32 vcc, s32, v11
        v_lshrrev_b32 v57, 5, v11
        v_and_b32 v58, 1, v11
        v_lshl_add_u32 v57, v57, 1, v58
        v_mul_u32_u24 v57, 20480, v57
        v_bfe_u32 v11, v11, 1, 4
        v_lshl_add_u32 v57, v11, 4, v57
        v_add_u32 v57, v57, v10
        v_cndmask_b32 v{5 + 2 * ds_ + sl}, v56, v57, vcc
        ''')
    for k in range(10):
        emit(p, unpack(HX + 2 * k, HP + k, 33))
        p(f'v_pk_fma_f32 {v(A0 + 2 * k, 2)}, {v(HX + 2 * k, 2)}, v[12:13], v[12:13] op_sel:[0,0,1] op_sel_hi:[1,0,1]')
    exaddr(9, 10, 120 * 1024)
    p(f'''
    s_lshl_b32 s30, s51, 13
    s_add_u32 s30, s30, {H1F}
    s_lshl_b32 s31, s51, 11
    s_add_u32 s31, s31, {H1F + 16384}
    ''')
    def hop(k, i, sidx, F, su):
        if k not in Cfg.daf:
            publish(p, sidx, F, f'pb{k}x'); stamp(p, i)
            poll(p, f'p{k}', su, False, 's95'); stamp(p, i + 1)
            p(f's_mov_b32 s61, {Cfg.spin}')
            return None
        ack = Cfg.ack4 if k == 4 else Cfg.ack
        if ack: p('s_waitcnt vmcnt(0)')
        stamp(p, i)
        m = p.mark() if ack else mS[0]
        def f():
            p.wait_vm(m); p('s_barrier'); stamp(p, i + 1)
        return f
    def su3():
        p(f'''
        s_and_b32 s56, s62, 0xf8
        s_sub_u32 s56, s56, 8
        v_add_u32 v253, s56, v0
        s_movk_i32 s57, 0x100
        v_cmp_gt_u32 vcc, s57, v253
        v_lshlrev_b32 v253, {Cfg.FS}, v253
        s_and_b32 s58, vcc_lo, 0xffffff
        s_mov_b32 s59, 0
        s_sub_u32 s95, s62, s56
        s_mov_b32 s56, {F2}
        ''')
    def su4():
        p(f'''
        s_and_b32 s56, s63, 0xf0
        s_sub_u32 s95, s62, s56
        s_lshl_b32 s56, s56, {Cfg.FS}
        s_add_u32 s56, s56, {F3}
        v_lshlrev_b32 v253, {Cfg.FS}, v0
        s_mov_b64 s[58:59], 0xffff
        ''')
    def su5():
        p(f'''
        s_and_b32 s56, s62, 0xf0
        s_sub_u32 s95, s63, s56
        s_lshl_b32 s56, s56, {Cfg.FS}
        s_add_u32 s56, s56, {F4}
        v_lshlrev_b32 v253, {Cfg.FS}, v0
        s_mov_b64 s[58:59], 0xffff
        ''')
    def xa2(i):
        ds_ = (i >> 2) if i < 8 else i - 8
        so, off = (30, 1024 * i) if i < 8 else (31, 1024 * (i - 8))
        return [(5 + 2 * ds_ + sl, so, off) for sl in range(2)]
    xs2 = XS('x2_', lambda i: X + 8 * i, xa2, {30: 34, 31: 35})
    def mfk(AS, WB_, xs):
        def f(i):
            M = []
            for t in range(5):
                for sl in range(2):
                    r = AS[sl] + 4 * t
                    M.append(f'{MF} {v(r, 4)}, {v(WB_ + 20 * (i % 3) + 4 * t, 4)}, {v(xs.reg(i) + 4 * sl, 4)}, {v(r, 4) if (i or not sl) else 0}')
            return M
        return f
    ex = spread(dma(g3, 0, 15), range(10 - Cfg.U2, 10))
    bf = hop(2, 11, 's62', F2, su3)
    mainloop(p, 10, 5, mfk((A0, A1), WB, xs2), wreads(g2, WB, 10, 2), xs2, Cfg.U2, bf, ex)
    stamp(p, 13)
    def exch(vw, vr, Akeep, Agive, fill=[]):
        p('s_barrier')
        for t in range(5): p(f'ds_write_b128 v{vw}, {v(Agive + 4 * t, 4)} offset:{1024 * t}')
        emit(p, fill)
        p('s_waitcnt lgkmcnt(0)\ns_barrier')
        for t in range(5): p(f'ds_read_b128 {v(TX + 4 * t, 4)}, v{vr} offset:{1024 * t}')
        return [f'v_pk_add_f32 {v(Akeep + 2 * k, 2)}, {v(Akeep + 2 * k, 2)}, {v(TX + 2 * k, 2)}' for k in range(10)]
    code = exch(9, 10, A0, A1, dma(g3, 60, 15) if Cfg.early else [])
    O = 60
    code += ['v_mov_b32 v8, 0', 'v_mov_b32 v9, 0', 'v_mov_b32 v10, 0', 'v_mov_b32 v11, 0', 'v_lshlrev_b32 v4, 3, v0']
    for k in range(10):
        A = A0 + 2 * k
        code += [f'v_cvt_pk_bf16_f32 v{O + k}, v{A}, v{A + 1}',
                 f'v_dot2c_f32_bf16 v{8 + 2 * (k & 1)}, v{O + k}, v{ONES}', f'v_dot2c_f32_bf16 v{9 + 2 * (k & 1)}, v{O + k}, v{O + k}']
    code += ['v_pk_add_f32 v[8:9], v[8:9], v[10:11]'] + qreduce(8, 10) + qreduce(9, 11)
    emit(p, sched(code))
    mS[0] = p.mark()
    FS_ = SC if Cfg.fast is None else Cfg.fast
    kern.SC = FS_
    frag_store80(p, O, X1F)
    kern.SC = SC
    p(f'''
    s_lshl_b32 s29, s24, 3
    s_add_u32 s29, s29, s25
    s_lshl_b32 s29, s29, 7
    s_add_u32 s29, s29, {PS2}
    s_mov_b64 exec, 0xffff
    buffer_store_dwordx2 v[8:9], v4, s[4:7], s29 offen{FS_}
    s_mov_b64 exec, -1
    ''')
    HA = [f'v_pk_add_f32 {v(HX + 2 * k, 2)}, {v(HX + 2 * k, 2)}, {v(A0 + 2 * k, 2)}' for k in range(10)]
    emit(p, HA)
    stamp(p, 14)
    R3 = Cfg.U3 + 1
    PS = X + 8 * R3; WB3 = 64
    CS = X + 8 * ((20 - R3) % R3)
    assert PS + 8 <= 228 and (20 - R3) % R3 + 3 <= R3
    ldsbases(False)
    p(f'''
    v_and_b32 v6, 15, v0
    v_and_b32 v7, 48, v0
    v_lshlrev_b32 v7, 4, v7
    v_lshl_add_u32 v7, v6, 3, v7
    s_lshl_b32 s29, s52, 10
    s_add_u32 s29, s29, {PS2}
    s_mul_i32 s30, s52, 20480
    s_add_u32 s30, s30, {X1F}
    s_add_u32 s31, s30, 20480
    v_and_b32 v4, 48, v0
    s_mul_i32 s32, s53, 384
    s_add_u32 s32, s32, {CS3}
    ''')
    acc3 = lambda mt, t: 16 + 24 * mt + 4 * t
    PSL = [f'buffer_load_dwordx2 {v(PS + 4 * mt + 2 * i, 2)}, v7, s[4:7], s29 offen offset:{1024 * mt + 128 * i}{SC}' for mt in range(2) for i in range(2)]
    C3L = [f'buffer_load_dwordx4 {v(CS + 4 * t, 4)}, v4, s[4:7], s32 offen offset:{64 * t}{SC}' for t in range(6)]
    xs3 = XS('x3_', lambda i: X + 8 * (i % R3), lambda i: [(1, 30 + mt, 1024 * i) for mt in range(2)], {30: 34, 31: 35}, R3)
    def mf3(i):
        return [f'{MF} {v(acc3(mt, t), 4)}, {v(WB3 + 24 * (i % 3) + 4 * t, 4)}, {v(xs3.reg(i) + 4 * mt, 4)}, {v(acc3(mt, t), 4) if i else 0}'
                for t in range(6) for mt in range(2)]
    code = [f'v_mov_b32 v13, {f2u(1 / 640)}']
    for mt in range(2):
        r = PS + 4 * mt
        code += [f'v_add_f32 v{r}, v{r}, v{r + 2}', f'v_add_f32 v{r + 1}, v{r + 1}, v{r + 3}'] + qreduce(r, r + 2) + qreduce(r + 1, r + 3) + [
            f'v_mul_f32 v{r}, v13, -v{r}', f'v_mul_f32 v{r + 2}, v{r}, v{r}', f'v_fma_f32 v{r + 1}, v{r + 1}, v13, -v{r + 2}',
            f'v_max_f32 v{r + 1}, 0, v{r + 1}', f'v_add_f32 v{r + 1}, {f2u(EPS)}, v{r + 1}', f'v_rsq_f32 v{r + 1}, v{r + 1}',
            f'v_mul_f32 v{r}, v{r}, v{r + 1}']
    n3 = 20 - Cfg.U3
    D4 = dma(g4, 0, 10) + (dma(g4, 40, Cfg.m3) if Cfg.m3 else [])
    ex = spread(D4, range(max(n3, 10) if Cfg.m3 else n3, 20))
    ex[4] = PSL
    if 3 in Cfg.daf: ex[10] = chk(PS) + stub('ps3', [(PS, PSL)]) + ex.get(10, [])
    for k_, L in spread(sched(code), range(11, 17)).items(): ex[k_] = ex.get(k_, []) + L
    c0 = 20 - R3 + 3
    for k_, L in spread(C3L, range(c0, c0 + 2)).items(): ex[k_] = L + ex.get(k_, [])
    bf = hop(3, 15, 's62', F3, su4)
    mainloop(p, 20, 6, mf3, wreads(g3, WB3, 6, 1), xs3, Cfg.U3, bf, ex, None, {10: lambda: p('s_barrier')} if Cfg.m3 else {}, Cfg.st3)
    stamp(p, 17)
    p('s_barrier')
    K, ONE, O, T = 8, 10, 64, 88
    p(f'''
    v_mov_b32 v{K}, {f2u(C0)}
    v_mov_b32 v{K + 1}, {f2u(C1)}
    v_mov_b32 v{ONE}, 1.0
    s_mul_i32 s30, s52, 49152
    s_mul_i32 s31, s53, 3072
    s_add_u32 s30, s30, s31
    s_add_u32 s30, s30, {H3F}
    s_add_u32 s31, s30, 49152
    s_mul_i32 s28, s51, 3072
    s_add_u32 s28, s28, {H3F}
    s_mul_i32 s36, s24, 49152
    s_add_u32 s36, s36, s28
    s_xor_b32 s37, s24, 1
    s_mul_i32 s37, s37, 49152
    s_add_u32 s37, s37, s28
    ''')
    R4 = Cfg.R4; XB4 = 104
    xs4 = XS('x4_', lambda i: XB4 + 8 * (i % R4), lambda i: [(1, 36 + sl, 1024 * (6 * (i & 7) + (i >> 3))) for sl in range(2)], {36: 34, 37: 35}, R4)
    assert XB4 + 8 * R4 <= 228 and XB4 + 8 * Cfg.n4 <= CS and Cfg.ko4
    code = []
    for grp in ([[(mt, k) for mt in range(2) for k in range(4 * pc, 4 * pc + 4)] for pc in range(3)] if Cfg.ko4 else [[(mt, k) for k in range(12)] for mt in range(2)]):
        c2 = []
        for mt, k in grp:
            A = acc3(mt, 0) + 2 * k; t = T + 2 * (k & 3) + 8 * mt; r = PS + 4 * mt
            c2 += [f'v_pk_mul_f32 {v(t, 2)}, {v(CS + 2 * k, 2)}, {v(r, 2)} op_sel_hi:[1,0]',
                   f'v_pk_fma_f32 {v(A, 2)}, {v(A, 2)}, {v(r, 2)}, {v(t, 2)} op_sel:[0,1,0] op_sel_hi:[1,1,1]']
            c2 += gelu_code(A, t, K, ONE, O + 12 * mt + k)
            if k % 4 == 3:
                c2.append(f'buffer_store_dwordx4 {v(O + 12 * mt + k - 3, 4)}, v1, s[4:7], s{30 + mt} offen offset:{1024 * (k // 4)}{FS_}')
        code += sched(c2)
    e3 = min(Cfg.e3, 30 - Cfg.m3)
    assert e3 + Cfg.m3 == 30
    code = weave(code, dma(g4, 40 + 4 * Cfg.m3, e3), 0.0, Cfg.w3)
    kl = max(k for k, t in enumerate(code) if ' lds' in t)
    emit(p, code[:kl + 1]); mS[0] = p.mark()
    code = code[kl + 1:]
    if Cfg.n4:
        E = xs4.init()
        for j in range(Cfg.n4): E += xitems(p, xs4, j)
        code = weave(code, E, Cfg.e4a, Cfg.e4b)
    emitx(p, code)
    stamp(p, 18)
    srd(p, 8, 'out', 2048 * 1280)
    ldsbases(True)
    exaddr(9, 10, 0)
    p(f'''
    v_and_b32 v5, 15, v0
    v_mul_u32_u24 v5, 2560, v5
    v_lshrrev_b32 v7, 4, v0
    v_lshl_add_u32 v6, v7, 3, v5
    v_and_b32 v8, 1, v7
    v_lshl_add_u32 v5, v8, 5, v5
    v_lshrrev_b32 v7, 1, v7
    v_lshl_add_u32 v5, v7, 4, v5
    s_lshr_b32 s32, s24, 1
    s_lshl_b32 s32, s32, 5
    s_add_u32 s32, s32, s51
    s_mul_i32 s32, s32, 1280
    s_mul_i32 s33, s25, 160
    s_add_u32 s32, s32, s33
    ''')
    mk = {}
    def setmk(k): return lambda: mk.__setitem__(k, p.mark())
    U4 = Cfg.U4
    X_ = lambda a_, b_: [(max(0, j - R4 + 1), j) for j in range(a_, b_)]
    D_ = lambda f, av, k: [(av, t) for t in dma(g4, f, 10) + [setmk(k)]]
    seq = X_(U4, Cfg.xa4) + D_(160, 3, 0) + X_(max(U4, Cfg.xa4), Cfg.xb4) + D_(200, 7, 1) + X_(Cfg.xb4, 24)
    plan4 = edf(seq, Cfg.r4, 24)
    if Cfg.show: print({k: [t if isinstance(t, int) else 'd' for t in L if isinstance(t, int) or (isinstance(t, str) and t.startswith('buffer'))] for k, L in plan4.items()})
    ex = {}
    def wb(k):
        def f(): p.wait_vm(mk[k]); p('s_barrier')
        return f
    bar = lambda: p('s_barrier')
    WB4 = 36; TX = 104
    bf = hop(4, 19, 's63', F4, su5)
    mainloop(p, 24, 5, mfk((HX, 16), WB4, xs4), wreads(g4, WB4, 10, 2), xs4, Cfg.U4, bf, ex, None, {3: bar, 7: bar, 14: wb(0), 18: wb(1)}, Cfg.st4, plan4)
    stamp(p, 21)
    emit(p, exch(9, 10, HX, 16))
    O = 128
    for pr in range(2):
        o = O + 4 * pr
        for h_ in range(2):
            A = HX + 4 * (2 * pr + h_)
            p(f'v_cvt_pk_bf16_f32 v{o + 2 * h_}, v{A}, v{A + 1}\nv_cvt_pk_bf16_f32 v{o + 2 * h_ + 1}, v{A + 2}, v{A + 3}')
        p(f'v_permlane16_swap_b32 v{o}, v{o + 2}\nv_permlane16_swap_b32 v{o + 1}, v{o + 3}')
        p(f'buffer_store_dwordx4 {v(o, 4)}, v5, s[8:11], s32 offen offset:{64 * pr}{Cfg.osc}')
    A = HX + 16
    p(f'v_cvt_pk_bf16_f32 v{O + 8}, v{A}, v{A + 1}\nv_cvt_pk_bf16_f32 v{O + 9}, v{A + 2}, v{A + 3}')
    p(f'buffer_store_dwordx2 {v(O + 8, 2)}, v6, s[8:11], s32 offen offset:128{Cfg.osc}')
    if dbg:
        p('s_waitcnt vmcnt(0)')
        p(f's_sub_u32 s61, {Cfg.spin}, s61\nv_writelane_b32 v255, s61, 28')
        stamp(p, 22)
        p('s_memtime s[98:99]\ns_waitcnt lgkmcnt(0)\nv_writelane_b32 v255, s98, 31')
        if Cfg.hdbg:
            p('s_mov_b32 s8, s90\ns_mov_b32 s9, s91\ns_mov_b32 s10, 64\ns_mov_b32 s11, 0x20000\nv_mov_b32 v2, 4096\nv_sub_u32 v3, 0, v255\nv_cmp_eq_u32 vcc, 0, v0\nv_cndmask_b32 v3, v255, v3, vcc')
            for w_, i_ in enumerate(Cfg.hdbg): p(f'v_writelane_b32 v2, {4 * w_}, {i_}')
            if Cfg.hsel: p(f's_cmp_{Cfg.hsel}_u32 s2, 160\ns_cbranch_scc1 k_end')
            p('buffer_atomic_umax v3, v2, s[8:11], 0 offen')
        p(f'''
        s_lshl_b32 s29, s2, 2
        s_add_u32 s29, s29, s3
        s_lshl_b32 s29, s29, 7
        s_add_u32 s29, s29, {DBGW}
        v_lshlrev_b32 v2, 2, v0
        s_mov_b32 exec_hi, 0
        buffer_store_dword v255, v2, s[4:7], s29 offen
        ''')
    p('k_end:\ns_endpgm')
    helper(p)
    emit(p, STUBS)
    p('@code_end:')
    return p

if __name__ == '__main__':
    import sys
    from build import HDR
    out = sys.argv[1]; dbg = 'dbg' in sys.argv[2:]
    for a_ in sys.argv[2:]:
        if '=' in a_:
            k_, v_ = a_.split('='); setattr(Cfg, k_, eval(v_))
    name = 'pers_kernel' if 'list' in sys.argv[2:] else NAME
    Cfg.kname = name
    open(out, 'w').write(file_text([(name, build(dbg), 256, 320, LDSZ)], HDR))
```
